```python
import torch

def _softmax(x, axis=-1):
    return torch.softmax(x, dim=axis)
def _gelu(x):
    return torch.nn.functional.gelu(x, approximate="tanh")
def _silu(x):
    return torch.nn.functional.silu(x)
def _sigmoid(x):
    return torch.sigmoid(x)
def _layernorm(x, axis=-1, eps=1e-5):
    m = x.mean(dim=axis, keepdim=True)
    v = x.var(dim=axis, keepdim=True, unbiased=False)
    return (x - m) / torch.sqrt(v + eps)
def _scatter_add(tgt, idx, src, axis=0):
    return tgt.clone().index_add_(axis, idx, src)
def _segment_sum(src, seg, n):
    out = torch.zeros((n,) + src.shape[1:], dtype=src.dtype)
    return out.index_add_(0, seg, src)
def _pad(x, pw):
    flat = tuple(v for pair in reversed(pw) for v in pair)
    return torch.nn.functional.pad(x, flat)

kernel_name = 'gated_mix__ssm_conv_s5__glu_gated_bilinear__prompt'

def setup_inputs():

    _w = (lambda a: (lambda t: t.to(torch.bfloat16) if t.is_floating_point() else t)(torch.as_tensor(a)))
    def _A_setup():
        B, S, D = 1, 2048, 640
        P = D
        Lambda_re = -0.5 * (lambda _x: torch.exp(torch.as_tensor(_x)))((lambda *s: torch.randn(*s, dtype=torch.bfloat16) * 0.2)(P))
        Lambda_im = (lambda *s: torch.randn(*s, dtype=torch.bfloat16) * 0.4)(P) * 1.0
        B_re = (lambda *s: torch.randn(*s, dtype=torch.bfloat16) * 0.2)(P, D) * (D ** -0.5)
        B_im = (lambda *s: torch.randn(*s, dtype=torch.bfloat16) * 0.2)(P, D) * (D ** -0.5)
        C_re = (lambda *s: torch.randn(*s, dtype=torch.bfloat16) * 0.2)(D, P) * (P ** -0.5)
        C_im = (lambda *s: torch.randn(*s, dtype=torch.bfloat16) * 0.2)(D, P) * (P ** -0.5)
        log_dt = (lambda *s: torch.randn(*s, dtype=torch.bfloat16) * 0.2)(P) * 0.3 - 2.0
        Dskip = (lambda *s: torch.randn(*s, dtype=torch.bfloat16) * 0.05)(D)
        return {
            "x": _w((lambda *s: torch.randn(*s, dtype=torch.bfloat16) * 0.05)(B, S, D)),
            "Lambda_re": _w(Lambda_re),
            "Lambda_im": _w(Lambda_im),
            "B_re": _w(B_re),
            "B_im": _w(B_im),
            "C_re": _w(C_re),
            "C_im": _w(C_im),
            "log_dt": _w(log_dt),
            "Dskip": _w(Dskip),
        }
    _A_in = _A_setup()

    def _B_setup():
        B, S, D, F = 1, 2048, 640, 1536
        return {
            "x": _w((lambda *s: torch.randn(*s, dtype=torch.bfloat16) * 0.05)(B, S, D)),
            "w_gate": _w((lambda *s: torch.randn(*s, dtype=torch.bfloat16) * 0.8)(D, F) * (D ** -0.5)),
            "w_up": _w((lambda *s: torch.randn(*s, dtype=torch.bfloat16) * 0.8)(D, F) * (D ** -0.5)),
            "w_down": _w((lambda *s: torch.randn(*s, dtype=torch.bfloat16) * 0.8)(F, D) * (F ** -0.5)),
        }
    _B_in = _B_setup()

    return {
        "A_x": _A_in["x"],
        "A_Lambda_re": _A_in["Lambda_re"],
        "A_Lambda_im": _A_in["Lambda_im"],
        "A_B_re": _A_in["B_re"],
        "A_B_im": _A_in["B_im"],
        "A_C_re": _A_in["C_re"],
        "A_C_im": _A_in["C_im"],
        "A_log_dt": _A_in["log_dt"],
        "A_Dskip": _A_in["Dskip"],
        "B_x": _B_in["x"],
        "B_w_gate": _B_in["w_gate"],
        "B_w_up": _B_in["w_up"],
        "B_w_down": _B_in["w_down"],
        "gate_w": _w((lambda *s: torch.randn(*s, dtype=torch.bfloat16) * 0.05)(640) * 16.0),
    }

def reference(A_x, A_Lambda_re, A_Lambda_im, A_B_re, A_B_im, A_C_re, A_C_im, A_log_dt, A_Dskip, B_x, B_w_gate, B_w_up, B_w_down, gate_w):
    def _A_ref(x, Lambda_re, Lambda_im, B_re, B_im, C_re, C_im, log_dt, Dskip):
        Bsz, L, H = x.shape
        Lam = Lambda_re + 1j * Lambda_im
        Bmat = B_re + 1j * B_im
        Cmat = C_re + 1j * C_im
        dt = torch.exp(log_dt)
        Lam_bar = torch.exp(dt * Lam)
        B_bar = ((Lam_bar - 1.0) / Lam)[:, None] * Bmat
        Bu = torch.einsum("bld,pd->blp", x + 0j, B_bar)
        h = torch.zeros_like(Bu[:, 0, :])
        hs = []
        for t in range(L):
            h = Lam_bar[None, :] * h + Bu[:, t, :]
            hs.append(h)
        hseq = torch.stack(hs, 1)
        y = 2.0 * torch.einsum("blp,dp->bld", hseq, Cmat).real + x * Dskip[None, None, :]
        return y

    def _B_ref(x, w_gate, w_up, w_down):
        g = torch.einsum("bsd,df->bsf", x, w_gate)
        u = torch.einsum("bsd,df->bsf", x, w_up)
        h = g * u
        return torch.einsum("bsf,fd->bsd", h, w_down)

    x = A_x
    g = _sigmoid((x * gate_w).sum(-1, keepdims=True))
    a = _A_ref(x, A_Lambda_re, A_Lambda_im, A_B_re, A_B_im, A_C_re, A_C_im, A_log_dt, A_Dskip)
    b = _B_ref(x, B_w_gate, B_w_up, B_w_down)
    return g * a + (1 - g) * b
```

```python
class G:
    def __init__(s):
        s.L = []
        s.lq = []
        s.vq = []
        s.nlab = 0
    def e(s, t):
        for ln in t.split('\n'):
            ln = ln.strip()
            if ln: s.L.append(ln)
    def c(s, t): s.L.append('; ' + t)
    def label(s, name): s.L.append(name + ':')
    def newlab(s, p='L'):
        s.nlab += 1
        return '%s_%d' % (p, s.nlab)
    def lds(s, t, tag=None):
        s.e(t); s.lq.append(tag)
    def wl(s, tags, force=False):
        if not isinstance(tags, (list, tuple, set)): tags = [tags]
        idx = -1
        for i, t in enumerate(s.lq):
            if t in tags: idx = i
        if idx < 0: return False
        n = len(s.lq) - 1 - idx
        assert n <= 15
        s.e('s_waitcnt lgkmcnt(%d)' % n)
        s.lq = s.lq[idx+1:]
        return True
    def wl0(s):
        s.e('s_waitcnt lgkmcnt(0)'); s.lq = []
    def vm(s, t, tag=None):
        s.e(t); s.vq.append(tag)
    def wv(s, tags):
        if not isinstance(tags, (list, tuple, set)): tags = [tags]
        idx = -1
        for i, t in enumerate(s.vq):
            if t in tags: idx = i
        if idx < 0: return False
        n = len(s.vq) - 1 - idx
        assert n <= 63, n
        s.e('s_waitcnt vmcnt(%d)' % n)
        s.vq = s.vq[idx+1:]
        return True
    def wv_n(s, tags):
        if not isinstance(tags, (list, tuple, set)): tags = [tags]
        idx = -1
        for i, t in enumerate(s.vq):
            if t in tags: idx = i
        if idx < 0: return None
        n = len(s.vq) - 1 - idx
        assert n <= 63, n
        s.vq = s.vq[idx+1:]
        return n
    def wv0(s):
        s.e('s_waitcnt vmcnt(0)'); s.vq = []
    def wall(s):
        s.e('s_waitcnt vmcnt(0) lgkmcnt(0)'); s.vq = []; s.lq = []
    def text(s):
        out = []
        for ln in s.L:
            if ln.endswith(':') or ln.startswith('.') or ln.startswith(';'): out.append(ln)
            else: out.append('    ' + ln)
        return '\n'.join(out) + '\n'

def vr(a, n=1):
    return 'v%d' % a if n == 1 else 'v[%d:%d]' % (a, a + n - 1)
def ar(a, n=1):
    return 'a%d' % a if n == 1 else 'a[%d:%d]' % (a, a + n - 1)
def sr(a, n=1):
    return 's%d' % a if n == 1 else 's[%d:%d]' % (a, a + n - 1)
```

```python
import sys
from asmlib import G, vr, ar, sr

NAME = 'gated_mix__ssm_conv_s5__glu_gated_bilinear__prompt'
WS_A2   = 0x0
WS_W2   = 0xB00000
WS_G    = 0xE70000
WS_EP   = 0xE80000
WS_DIAG = 0xF00000
WS_SIZE = 0x1000000
L_X = 0; L_B = 49152; L_W = 79872; L_S = 129024
XS = 16384; BS = 10240; WSZ = 16384
L_TE = L_S
L_TQ = L_S + 7680
L_TH = L_S + 9728
TH_PITCH = 72
TH_W = 80 * TH_PITCH
LDS1 = 163840
LOG2E = 0x3fb8aa3b
INV2PI = 0x3e22f983

class Opt:
    diag = False
    mimic = True
    st_flags = ''
    code_bytes = 40960

def srd(g, d, ptr, nbytes):
    g.e(f's_mov_b32 s{d}, s{ptr}')
    g.e(f's_and_b32 s{d+1}, s{ptr+1}, 0xffff')
    g.e(f's_mov_b32 s{d+2}, {nbytes}')
    g.e(f's_mov_b32 s{d+3}, 0x20000')

P_X, P_LRE, P_LIM, P_BRE, P_BIM, P_CRE, P_CIM, P_LDT = 64, 66, 68, 70, 72, 74, 76, 78
P_DSK, P_BX, P_WG, P_WU, P_WD, P_GW, P_OUT, P_DBG, P_WS = 80, 82, 84, 86, 88, 90, 92, 94, 96
S_W, S_J, S_C = 4, 5, 6
R_X, R_BRE, R_BIM, R_WG, R_WU, R_WS, R_T, R_DBG = 8, 12, 16, 20, 24, 28, 32, 36

def stamp(g, o, idx, vdiag):
    if not o.diag: return
    g.wl0()
    g.e('s_memtime s[40:41]')
    g.e('s_waitcnt lgkmcnt(0)')
    g.e(f'v_writelane_b32 v{vdiag}, s40, {idx}')

def cmul_sq(g, r, i, ro, io, t):
    g.e(f'v_mul_f32 v{t}, v{r}, v{r}')
    g.e(f'v_add_f32 v{io}, v{r}, v{r}')
    g.e(f'v_fma_f32 v{ro}, -v{i}, v{i}, v{t}')
    g.e(f'v_mul_f32 v{io}, v{io}, v{i}')

def cmul(g, ar_, ai, br, bi, ro, io):
    g.e(f'v_mul_f32 v{ro}, v{ar_}, v{br}')
    g.e(f'v_mul_f32 v{io}, v{ar_}, v{bi}')
    g.e(f'v_fma_f32 v{ro}, -v{ai}, v{bi}, v{ro}')
    g.e(f'v_fmac_f32 v{io}, v{ai}, v{br}')

def cfma(g, lr, li, hr, hi, ur, ui, ro, io):
    g.e(f'v_fma_f32 v{ro}, v{lr}, v{hr}, v{ur}')
    g.e(f'v_fma_f32 v{io}, v{lr}, v{hi}, v{ui}')
    g.e(f'v_fma_f32 v{ro}, -v{li}, v{hi}, v{ro}')
    g.e(f'v_fmac_f32 v{io}, v{li}, v{hr}')

def gen_k1(o):
    g = G()
    e = g.e
    VL = 1
    VXO = 2
    VBO = 6
    VWO = 10
    VW2O = 12
    VXA = 13
    VBR = 17
    VXX = 21
    VWR = 25
    VP2 = 27
    VDIAG = 29
    VNON = 30
    LR, LI, L16R, L16I, PWR, PWI, CFR, CFI = range(32, 40)
    XLR, XLI, XL16R, XL16I, XPWR, XPWI, XCFR, XCFI = range(40, 48)
    D128R, D128I, D512R, D512I = range(48, 52)
    PR, PI, XPR, XPI = range(52, 56)
    VT = 56
    aR, aI, aX = 112, 128, 144
    aG = [160, 176, 224]; aU = [192, 208, 240]
    AX = 0
    AF = [160, 188]
    APF = 216
    e('s_cmp_ge_u32 s2, 256')
    e('s_cbranch_scc1 K1_END')
    e('s_load_dwordx16 s[64:79], s[0:1], 0')
    e('s_load_dwordx16 s[80:95], s[0:1], 64')
    e('s_load_dwordx2 s[96:97], s[0:1], 128')
    e('s_getpc_b64 s[40:41]')
    g.label('K1_PC')
    e(f'v_and_b32 v{VL}, 63, v0')
    e('v_lshrrev_b32 v56, 6, v0')
    e('s_lshr_b32 s3, s2, 3')
    e('s_lshl_b32 s3, s3, 11')
    e('v_lshlrev_b32 v57, 3, v0')
    e('v_add_u32 v57, s3, v57')
    e(f'v_min_u32 v57, CODE_END-K1_PC-8, v57')
    g.vm(f'global_load_dwordx2 {ar(APF,2)}, v57, s[40:41]', 'pf')
    e(f'v_readfirstlane_b32 s{S_W}, v56')
    if o.diag:
        e(f'v_mov_b32 v{VDIAG}, 0')
    e('s_and_b32 s3, s2, 7')
    e('s_lshr_b32 s7, s2, 3')
    e(f's_and_b32 s{S_J}, s3, 1'); e(f's_lshl_b32 s{S_J}, s{S_J}, 3')
    e('s_and_b32 s42, s7, 7'); e(f's_add_u32 s{S_J}, s{S_J}, s42')
    e(f's_lshr_b32 s{S_C}, s3, 1'); e(f's_lshl_b32 s{S_C}, s{S_C}, 2')
    e('s_lshr_b32 s42, s7, 3'); e(f's_add_u32 s{S_C}, s{S_C}, s42')
    T = 56
    e(f'v_lshrrev_b32 v{T}, 3, v{VL}')
    e(f'v_and_b32 v{T+1}, 7, v{VL}')
    e(f'v_lshrrev_b32 v{T+2}, 4, v{VL}')
    e(f'v_lshrrev_b32 v{T+3}, 5, v{VL}')
    e(f'v_and_b32 v{T+4}, 3, v{T}')
    e(f'v_lshl_add_u32 v{T+5}, v{T+3}, 4, v{T+4}')
    e(f's_lshl_b32 s42, s{S_J}, 7'); e(f's_lshl_b32 s43, s{S_W}, 5'); e('s_add_u32 s42, s42, s43')
    e(f'v_add_u32 v{T+5}, s42, v{T+5}')
    e('s_movk_i32 s43, 1280')
    e(f'v_mul_lo_u32 v{T+5}, v{T+5}, s43')
    e(f'v_xor_b32 v{T+6}, v{T+1}, v{T+2}')
    e(f'v_xor_b32 v{T+7}, 4, v{T+6}')
    for q in range(4):
        e(f'v_lshl_add_u32 v{VXO+q}, v{T+6+(q&1)}, 4, v{T+5}')
        if q: e(f'v_add_u32 v{VXO+q}, {q*4096}, v{VXO+q}')
    e(f's_mul_i32 s42, s{S_W}, 10')
    e(f'v_add_u32 v{T+8}, s42, v{T}')
    e(f's_mul_i32 s44, s{S_C}, 40')
    for b in range(2):
        if b: e(f'v_add_u32 v{T+8}, 8, v{T+8}')
        e(f'v_bfe_u32 v{T+9}, v{T+8}, 1, 3')
        e(f'v_xor_b32 v{T+9}, v{T+9}, v{T+1}')
        e(f'v_add_u32 v{T+10}, s44, v{T+8}')
        e(f'v_mul_lo_u32 v{T+10}, v{T+10}, s43')
        if b: e(f'v_subrev_u32 v{T+10}, 1024, v{T+10}')
        e(f'v_lshl_add_u32 v{VBO+b}, v{T+9}, 4, v{T+10}')
        e(f'v_xor_b32 v{T+9}, 4, v{T+9}')
        e(f'v_lshl_add_u32 v{VBO+2+b}, v{T+9}, 4, v{T+10}')
    e(f's_lshr_b32 s45, s{S_C}, 1'); e('s_mul_i32 s45, s45, 384')
    e(f's_and_b32 s46, s{S_C}, 1')
    e('s_lshl_b32 s47, s46, 8'); e('s_add_u32 s47, s47, s45')
    e('s_lshl_b32 s48, s46, 6'); e('s_add_u32 s48, s48, s45'); e('s_add_u32 s48, s48, 128')
    e(f's_lshl_b32 s42, s{S_W}, 4')
    e(f'v_add_u32 v{T+8}, s42, v{T}')
    e('s_movk_i32 s49, 3072')
    e(f'v_mul_lo_u32 v{T+8}, v{T+8}, s49')
    e(f'v_and_b32 v{T+9}, 1, v{T+2}')
    e(f'v_lshlrev_b32 v{T+9}, 2, v{T+9}')
    e(f'v_xor_b32 v{T+9}, v{T+9}, v{T+1}')
    e(f'v_lshl_add_u32 v{T+8}, v{T+9}, 4, v{T+8}')
    e(f'v_add_u32 v{VWO}, s47, v{T+8}')
    e(f'v_add_u32 v{VWO+1}, {8*3072-1024}, v{VWO}')
    e(f'v_lshrrev_b32 v{T+8}, 2, v{VL}')
    e(f'v_add_u32 v{T+8}, s42, v{T+8}')
    e(f'v_mul_lo_u32 v{T+8}, v{T+8}, s49')
    e(f'v_and_b32 v{T+9}, 3, v{VL}')
    e(f'v_lshl_add_u32 v{T+8}, v{T+9}, 4, v{T+8}')
    e(f'v_add_u32 v{VW2O}, s48, v{T+8}')
    e('s_waitcnt lgkmcnt(0)')
    stamp(g, o, 0, VDIAG)
    srd(g, R_X, P_X, 2048*1280)
    srd(g, R_BRE, P_BRE, 640*1280)
    srd(g, R_BIM, P_BIM, 640*1280)
    srd(g, R_WG, P_WG, 640*3072)
    srd(g, R_WU, P_WU, 640*3072)
    GX, GW = 112, 124
    srd(g, R_T, P_GW, 1280)
    e(f'v_and_b32 v{T+8}, 31, v{VL}')
    e(f's_lshl_b32 s42, s{S_J}, 7'); e(f's_lshl_b32 s50, s{S_C}, 3'); e('s_add_u32 s42, s42, s50')
    e(f's_lshl_b32 s50, s{S_W}, 1'); e('s_add_u32 s42, s42, s50')
    e(f'v_add_u32 v{T+9}, s42, v{T+3}')
    e(f'v_mov_b32 v{T+20}, v{T+9}')
    e(f'v_mul_lo_u32 v{T+9}, v{T+9}, s43')
    e(f'v_lshl_add_u32 v{T+9}, v{T+8}, 4, v{T+9}')
    e(f'v_lshlrev_b32 v{T+10}, 4, v{T+8}')
    e(f'v_cmp_gt_u32 vcc, 16, v{T+8}')
    e(f'v_mov_b32 v{T+11}, 0x7fff0000')
    e(f'v_cndmask_b32 v{T+11}, v{T+11}, v{T+9}, vcc')
    g.vm(f'buffer_load_dwordx4 {vr(GX,4)}, v{T+9}, s[{R_X}:{R_X+3}], 0 offen', 'gate')
    g.vm(f'buffer_load_dwordx4 {vr(GX+4,4)}, v{T+9}, s[{R_X}:{R_X+3}], 0 offen offset:512', 'gate')
    g.vm(f'buffer_load_dwordx4 {vr(GX+8,4)}, v{T+11}, s[{R_X}:{R_X+3}], 0 offen offset:1024', 'gate')
    g.vm(f'buffer_load_dwordx4 {vr(GW,4)}, v{T+10}, s[{R_T}:{R_T+3}], 0 offen', 'gate')
    g.vm(f'buffer_load_dwordx4 {vr(GW+4,4)}, v{T+10}, s[{R_T}:{R_T+3}], 0 offen offset:512', 'gate')
    g.vm(f'buffer_load_dwordx4 {vr(GW+8,4)}, v{T+10}, s[{R_T}:{R_T+3}], 0 offen offset:1024', 'gate')
    e(f'v_add_u32 v{T+12}, 32, v{T+1}')
    e(f'v_cmp_gt_u32 vcc, 32, v{VL}')
    e(f'v_cndmask_b32 v{T+12}, v{T+12}, v{VL}, vcc')
    e(f'v_add_u32 v{T+13}, s44, v{T+12}')
    e(f'v_lshlrev_b32 v{T+13}, 1, v{T+13}')
    PL = 140
    for k, p in enumerate((P_LRE, P_LIM, P_LDT)):
        srd(g, R_T, p, 1280)
        g.vm(f'buffer_load_ushort v{PL+k}, v{T+13}, s[{R_T}:{R_T+3}], 0 offen', 'par')
    srd(g, R_WS, P_WS, WS_SIZE)
    srd(g, R_DBG, P_DBG, 256)

    def dma_stage(s):
        slot = s % 3
        P = []
        tag = f'st{s}'
        if s < 10:
            def px():
                e(f's_lshl_b32 s42, s{S_W}, 12'); e(f's_add_u32 m0, s42, {L_X + slot*XS}')
                e(f's_movk_i32 s43, {s*128}')
            P.append(px)
            for q in range(4):
                P.append(lambda q=q: g.vm(f'buffer_load_dwordx4 v{VXO+q}, s[{R_X}:{R_X+3}], s43 offen offset:{q*1024} lds', tag))
            def pb(m):
                e(f's_mul_i32 s42, s{S_W}, 1280'); e(f's_add_u32 m0, s42, {L_B + slot*BS + m*5120}'); e('s_nop 0')
            P.append(lambda: pb(0))
            P.append(lambda: g.vm(f'buffer_load_dwordx4 v{VBO}, s[{R_BRE}:{R_BRE+3}], s43 offen lds', tag))
            def pbb(m):
                e('s_mov_b64 exec, 0xffff')
                r = R_BRE if m == 0 else R_BIM
                g.vm(f'buffer_load_dwordx4 v{VBO+2*m+1}, s[{r}:{r+3}], s43 offen offset:1024 lds', tag)
                e('s_mov_b64 exec, -1')
            P.append(lambda: pbb(0))
            P.append(lambda: pb(1))
            P.append(lambda: g.vm(f'buffer_load_dwordx4 v{VBO+2}, s[{R_BIM}:{R_BIM+3}], s43 offen lds', tag))
            P.append(lambda: pbb(1))
            def pw(m):
                e(f's_lshl_b32 s42, s{S_W}, 11'); e(f's_add_u32 m0, s42, {L_W + slot*WSZ + m*8192}')
                e(f's_mov_b32 s45, {s*64*3072}')
            for m in range(2):
                r = R_WG if m == 0 else R_WU
                P.append(lambda m=m: pw(m))
                for q in range(2):
                    P.append(lambda q=q, r=r: g.vm(f'buffer_load_dwordx4 v{VWO+q}, s[{r}:{r+3}], s45 offen offset:{q*1024} lds', tag))
        else:
            for sub in range(5):
                ss = (s - 10) * 5 + sub
                base = p2_base(ss)
                for m in range(2):
                    r = R_WG if m == 0 else R_WU
                    def pp(base=base, m=m, ss=ss, r=r):
                        e(f's_lshl_b32 s42, s{S_W}, 10'); e(f's_add_u32 m0, s42, {base + m*4096}')
                        e(f's_mov_b32 s45, {ss*64*3072}')
                        g.vm(f'buffer_load_dwordx4 v{VW2O}, s[{r}:{r+3}], s45 offen lds', tag)
                    P.append(pp)
        return P
    def p2_base(ss):
        slot = (10 + ss // 5) % 3
        sub = ss % 5
        if sub < 2: return L_X + slot*XS + sub*8192
        if sub == 2: return L_B + slot*BS
        return L_W + slot*WSZ + (sub-3)*8192
    for s in range(3):
        for p in dma_stage(s): p()

    e(f'v_and_b32 v{T+8}, 31, v{VL}')
    e(f'v_bfe_u32 v{T+9}, v{VL}, 1, 3')
    e(f'v_xor_b32 v{T+9}, v{T+9}, v{T+3}')
    e(f'v_lshlrev_b32 v{T+10}, 7, v{T+8}')
    e(f's_lshl_b32 s42, s{S_W}, 12')
    for kk in range(4):
        e(f'v_xor_b32 v{T+11}, {2*kk}, v{T+9}')
        e(f'v_lshl_add_u32 v{T+11}, v{T+11}, 4, v{T+10}')
        e(f'v_add_u32 v{VXA+kk}, s42, v{T+11}')
        e(f'v_add_u32 v{VBR+kk}, {L_B}, v{T+11}')
    e(f'v_bfe_u32 v{T+11}, v{VL}, 3, 1')
    e(f'v_lshrrev_b32 v{T+12}, 1, v{T+1}')
    e(f'v_lshl_add_u32 v{T+12}, v{T+11}, 2, v{T+12}')
    e(f'v_xor_b32 v{T+12}, v{T+12}, v{T+3}')
    e(f'v_mul_u32_u24 v{T+13}, 5120, v{T+11}')
    e(f'v_lshl_add_u32 v{T+13}, v{T+1}, 7, v{T+13}')
    e(f'v_add_u32 v{T+13}, {L_B + 32*128}, v{T+13}')
    for kk in range(4):
        e(f'v_xor_b32 v{T+14}, {2*kk}, v{T+12}')
        e(f'v_lshl_add_u32 v{VXX+kk}, v{T+14}, 4, v{T+13}')
    e(f'v_bfe_u32 v{T+11}, v{VL}, 2, 2')
    e(f'v_lshl_add_u32 v{T+12}, v{T+3}, 3, v{T+11}')
    e(f'v_and_b32 v{T+13}, 1, v{T+2}')
    e(f'v_bfe_u32 v{T+14}, v{VL}, 1, 1')
    e(f'v_lshl_add_u32 v{T+14}, v{T+13}, 1, v{T+14}')
    e(f'v_bfe_u32 v{T+15}, v{VL}, 3, 1')
    e(f'v_lshl_add_u32 v{T+14}, v{T+15}, 2, v{T+14}')
    e(f'v_and_b32 v{T+15}, 1, v{VL}')
    e(f'v_lshlrev_b32 v{T+15}, 3, v{T+15}')
    e(f'v_lshl_add_u32 v{T+15}, v{T+12}, 7, v{T+15}')
    e(f'v_add_u32 v{T+15}, {L_W}, v{T+15}')
    e(f'v_lshl_add_u32 v{VWR}, v{T+14}, 4, v{T+15}')
    e(f'v_xor_b32 v{T+14}, 4, v{T+14}')
    e(f'v_lshl_add_u32 v{VWR+1}, v{T+14}, 4, v{T+15}')
    e(f'v_and_b32 v{T+14}, 3, v{VL}')
    e(f'v_lshlrev_b32 v{T+14}, 3, v{T+14}')
    e(f'v_lshl_add_u32 v{T+14}, v{T+13}, 5, v{T+14}')
    e(f'v_lshl_add_u32 v{VP2}, v{T+12}, 6, v{T+14}')
    e(f'v_add_u32 v{VP2+1}, 49152, v{VP2}')

    e(f'v_lshlrev_b32 v{T+11}, 4, v0')
    for k in range(4): e(f'v_mov_b32 v{T+12+k}, 0')
    g.lds(f'ds_write_b128 v{T+11}, {vr(T+12,4)} offset:{L_TE % 65536}' if False else f'v_add_u32 v{T+11}, {L_TE}, v{T+11}', None)
    g.lq.pop()
    g.lds(f'ds_write_b128 v{T+11}, {vr(T+12,4)}', 'zero')

    e(f'v_add_u32 v0, 98304, v{VP2}')
    g.wv('gate')
    PL0 = 150
    e('s_mov_b32 s42, 0x3f803f80')
    for d in range(12):
        e(f'v_and_b32 v{T+12}, 0xffff, v{GW+d}')
        e(f'v_and_b32 v{T+13}, 0xffff0000, v{GW+d}')
        e(f'v_dot2_f32_bf16 v{PL0+2*d}, v{GX+d}, v{T+12}, 0')
        e(f'v_dot2_f32_bf16 v{PL0+2*d+1}, v{GX+d}, v{T+13}, 0')
    e('s_nop 2')
    for d in range(12):
        e(f'v_cvt_pk_bf16_f32 v{PL0+d}, v{PL0+2*d}, v{PL0+2*d+1}')
    e(f'v_mov_b32 v{T+12}, 0')
    for d in range(12):
        e(f'v_dot2_f32_bf16 v{T+12}, v{PL0+d}, s42, v{T+12}')
    e('s_nop 2')
    for sh in (1, 2, 4, 8):
        e(f'v_add_f32_dpp v{T+12}, v{T+12}, v{T+12} row_ror:{sh} row_mask:0xf bank_mask:0xf')
        e('s_nop 1')
    g.lds(f'ds_swizzle_b32 v{T+13}, v{T+12} offset:0x401f', 'sw')
    g.wl('sw')
    e(f'v_add_f32 v{T+12}, v{T+12}, v{T+13}')
    e(f'v_cvt_pk_bf16_f32 v{T+12}, v{T+12}, v{T+12}')
    e(f'v_lshlrev_b32 v{T+12}, 16, v{T+12}')
    e(f'v_mul_f32 v{T+12}, 0xbfb8aa3b, v{T+12}')
    e(f'v_exp_f32 v{T+12}, v{T+12}')
    e('s_nop 0')
    e(f'v_add_f32 v{T+12}, 1.0, v{T+12}')
    e(f'v_rcp_f32 v{T+12}, v{T+12}')
    e('s_nop 0')
    e(f'v_cvt_pk_bf16_f32 v{T+12}, v{T+12}, v{T+12}')
    e(f'v_lshlrev_b32 v{T+12}, 16, v{T+12}')
    e(f'v_lshlrev_b32 v{T+13}, 2, v{T+20}')
    e(f'v_add_u32 v{T+13}, {WS_G}, v{T+13}')
    e(f'v_and_b32 v{T+14}, 31, v{VL}')
    e(f'v_cmp_eq_u32 vcc, 0, v{T+14}')
    e('s_and_saveexec_b64 s[40:41], vcc')
    g.vm(f'buffer_store_dword v{T+12}, v{T+13}, s[{R_WS}:{R_WS+3}], 0 offen {o.st_flags}', 'gst')
    e('s_mov_b64 exec, s[40:41]')

    lab = g.newlab('NN')
    e(f's_or_b32 s42, s2, s{S_W}')
    e('s_cmp_lg_u32 s42, 0')
    e(f's_cbranch_scc1 {lab}')
    g.wl0()
    e('s_memrealtime s[40:41]')
    e('s_waitcnt lgkmcnt(0)')
    e('s_or_b32 s40, s40, 1')
    e(f'v_mov_b32 v{T+12}, s40')
    e(f'v_mov_b32 v{T+13}, 0')
    e('s_mov_b64 exec, 1')
    e(f'buffer_store_dword v{T+12}, v{T+13}, s[{R_DBG}:{R_DBG+3}], 0 offen sc0 sc1')
    e('s_mov_b64 exec, -1')
    e('s_waitcnt vmcnt(0)')
    g.label(lab)

    g.wv('par')
    A_, B_, DT = T+8, T+9, T+10
    e(f'v_lshlrev_b32 v{PL}, 16, v{PL}')
    e(f'v_lshlrev_b32 v{PL+1}, 16, v{PL+1}')
    e(f'v_lshlrev_b32 v{PL+2}, 16, v{PL+2}')
    e(f'v_mul_f32 v{DT}, {LOG2E}, v{PL+2}')
    e(f'v_exp_f32 v{DT}, v{DT}')
    e('s_nop 0')
    e(f'v_cvt_pk_bf16_f32 v{DT}, v{DT}, v{DT}')
    e(f'v_lshlrev_b32 v{DT}, 16, v{DT}')
    e(f'v_mul_f32 v{A_}, v{DT}, v{PL}')
    e(f'v_mul_f32 v{B_}, v{DT}, v{PL+1}')
    e(f'v_mul_f32 v{A_}, {LOG2E}, v{A_}')
    e(f'v_mul_f32 v{B_}, {INV2PI}, v{B_}')
    e(f'v_exp_f32 v{A_}, v{A_}')
    e(f'v_fract_f32 v{B_}, v{B_}')
    e('s_nop 0')
    Q = 150
    e(f'v_cos_f32 v{Q}, v{B_}')
    e(f'v_sin_f32 v{Q+1}, v{B_}')
    e('s_nop 0')
    e(f'v_mul_f32 v{Q}, v{Q}, v{A_}')
    e(f'v_mul_f32 v{Q+1}, v{Q+1}, v{A_}')
    e(f'v_add_f32 v{Q+2}, -1.0, v{Q}')
    e(f'v_mul_f32 v{Q+3}, v{PL}, v{PL}')
    e(f'v_fmac_f32 v{Q+3}, v{PL+1}, v{PL+1}')
    e(f'v_rcp_f32 v{Q+3}, v{Q+3}')
    e(f'v_mul_f32 v{Q+4}, v{Q+2}, v{PL}')
    e(f'v_fmac_f32 v{Q+4}, v{Q+1}, v{PL+1}')
    e(f'v_mul_f32 v{Q+5}, v{Q+1}, v{PL}')
    e(f'v_fma_f32 v{Q+5}, -v{Q+2}, v{PL+1}, v{Q+5}')
    e(f'v_mul_f32 v{Q+4}, v{Q+4}, v{Q+3}')
    e(f'v_mul_f32 v{Q+5}, v{Q+5}, v{Q+3}')
    pr, pi_ = Q, Q+1
    pw = {}
    for k, n in enumerate((2, 4, 8, 16, 32, 64, 128, 256, 512)):
        ro, io = Q+10+2*k, Q+11+2*k
        cmul_sq(g, pr, pi_, ro, io, Q+6)
        pw[n] = (ro, io); pr, pi_ = ro, io
    e(f'v_mov_b32 v{D128R}, v{pw[128][0]}'); e(f'v_mov_b32 v{D128I}, v{pw[128][1]}')
    e(f'v_mov_b32 v{D512R}, v{pw[512][0]}'); e(f'v_mov_b32 v{D512I}, v{pw[512][1]}')
    Z = Q + 30
    e(f's_and_b32 s42, s{S_W}, 1'); e('s_cmp_lg_u32 s42, 0'); e('s_cselect_b64 s[40:41], -1, 0')
    e(f'v_mov_b32 v{Z}, 1.0'); e(f'v_mov_b32 v{Z+1}, 0')
    e(f'v_cndmask_b32 v{Z}, v{Z}, v{pw[32][0]}, s[40:41]'); e(f'v_cndmask_b32 v{Z+1}, v{Z+1}, v{pw[32][1]}, s[40:41]')
    e(f's_and_b32 s42, s{S_W}, 2'); e('s_cmp_lg_u32 s42, 0'); e('s_cselect_b64 s[40:41], -1, 0')
    e(f'v_mov_b32 v{Z+2}, 1.0'); e(f'v_mov_b32 v{Z+3}, 0')
    e(f'v_cndmask_b32 v{Z+2}, v{Z+2}, v{pw[64][0]}, s[40:41]'); e(f'v_cndmask_b32 v{Z+3}, v{Z+3}, v{pw[64][1]}, s[40:41]')
    cmul(g, Z, Z+1, Z+2, Z+3, Z+4, Z+5)
    cmul(g, Z+4, Z+5, pw[16][0], pw[16][1], Z+6, Z+7)
    def redis(srcA, srcB, dRI, dX):
        e(f'v_mov_b32 v{dRI}, v{srcA}'); e(f'v_mov_b32 v{dX}, v{srcB}')
        e('s_nop 1')
        e(f'v_permlane32_swap_b32 v{dRI}, v{dX}')
    redis(Q, Q, LR, XLR); redis(Q+1, Q+1, LI, XLI)
    redis(pw[16][0], pw[16][0], L16R, XL16R); redis(pw[16][1], pw[16][1], L16I, XL16I)
    redis(Z+4, Z+6, PWR, XPWR); redis(Z+5, Z+7, PWI, XPWI)
    redis(Q+4, Q+4, CFR, XCFR); redis(Q+5, Q+5, CFI, XCFI)

    tiles = ['R', 'I', 'X', 'G0', 'G1', 'U0', 'U1']
    accs = {'R': aR, 'I': aI, 'X': aX, 'G0': aG[0], 'G1': aG[1], 'U0': aU[0], 'U1': aU[1]}
    def reads(K):
        s, kk = divmod(K, 4); slot = s % 3; fs = AF[K % 2]
        R = []
        R.append((f'x{K}', f'ds_read_b128 {ar(AX+4*K,4)}, v{VXA+kk} offset:{slot*XS}'))
        R.append((f'R{K}', f'ds_read_b128 {ar(fs,4)}, v{VBR+kk} offset:{slot*BS}'))
        R.append((f'I{K}', f'ds_read_b128 {ar(fs+4,4)}, v{VBR+(kk^2)} offset:{slot*BS+5120}'))
        R.append((f'X{K}', f'ds_read_b128 {ar(fs+8,4)}, v{VXX+kk} offset:{slot*BS}'))
        for m in range(2):
            for ft in range(2):
                t = ('G', 'U')[m] + str(ft)
                fr = fs + 12 + 4*(2*m+ft)
                for rd in range(2):
                    R.append((f'{t}{K}', f'ds_read_b64_tr_b16 {ar(fr+2*rd,2)}, v{VWR+ft} offset:{slot*WSZ + m*8192 + kk*2048 + rd*512}'))
        return R
    def mfma(t, K):
        fs = AF[K % 2]; x = ar(AX+4*K, 4); d = vr(accs[t], 16); cc = d if K else '0'
        idx = tiles.index(t); f = ar(fs + 4*idx, 4)
        if idx < 3: e(f'v_mfma_f32_32x32x16_bf16 {d}, {x}, {f}, {cc}')
        else:       e(f'v_mfma_f32_32x32x16_bf16 {d}, {f}, {x}, {cc}')
    g.wl0()
    n = g.wv_n('st0')
    e(f's_waitcnt vmcnt({n})')
    e('s_barrier')
    stamp(g, o, 1, VDIAG)
    for tg, tx in reads(0): g.lds(tx, tg)
    pend_dma = []
    for K in range(40):
        s, kk = divmod(K, 4)
        nxt = reads(K+1) if K < 39 else []
        gaps = [[] for _ in range(7)]
        if kk < 3:
            for i_, rd in enumerate(nxt): gaps[i_ // 2].append(rd)
        else:
            for i_, rd in enumerate(nxt): gaps[3 + i_ // 3].append(rd)
        for ti, t in enumerate(tiles):
            need = [f'{t}{K}'] + ([f'x{K}'] if ti == 0 else [])
            g.wl(need)
            mfma(t, K)
            if kk == 3 and ti == 2:
                nv = g.wv_n(f'st{s+1}')
                g.lq = []
                e(f's_waitcnt vmcnt({nv}) lgkmcnt(0)' if nv is not None else 's_waitcnt lgkmcnt(0)')
                e('s_barrier')
                if s + 3 <= 11: pend_dma = dma_stage(s + 3)
                if s == 5:
                    g.vm(f'buffer_load_dword v{VNON}, off, s[{R_DBG}:{R_DBG+3}], 0 sc0 sc1', 'non')
            for tg, tx in gaps[ti]: g.lds(tx, tg)
            if pend_dma and not (kk == 3 and ti < 3):
                k_ = 1 if kk != 3 else 0
                if kk < 3 and ti in (0, 2, 4, 5, 6): k_ = 2 if ti == 6 else 1
                for _ in range(k_):
                    if pend_dma: pend_dma.pop(0)()
        if kk == 2:
            while pend_dma: pend_dma.pop(0)()
    assert not pend_dma
    e('s_nop 7'); e('s_nop 7')
    stamp(g, o, 2, VDIAG)

    T = VT
    er, ei, tr_, ti_ = T, T+1, T+2, T+3
    e(f'v_mov_b32 v{er}, v{aR}'); e(f'v_mov_b32 v{ei}, v{aI}')
    XB = T+4; xo, xt = T+5, T+6
    e(f'v_bfe_u32 v{T+7}, v{VL}, 3, 1')
    e(f'v_cmp_eq_u32 vcc, 1, v{T+7}')
    e(f'v_sub_f32 v{XB}, 0, v{XLI}')
    e(f'v_mov_b32 v{xo}, v{aX}')
    e(f'v_cndmask_b32 v{XB}, v{XB}, v{XLI}, vcc')
    cur = (er, ei); alt = (tr_, ti_); xc, xa = xo, xt
    for r in range(1, 16):
        e(f'v_fma_f32 v{xa}, v{XLR}, v{xc}, v{aX+r}')
        cfma(g, LR, LI, cur[0], cur[1], aR+r, aI+r, alt[0], alt[1])
        e(f'v_fmac_f32_dpp v{xa}, v{xc}, v{XB} row_ror:8 row_mask:0xf bank_mask:0xf')
        cur, alt = alt, cur; xc, xa = xa, xc
    e(f'v_lshrrev_b32 v{T+8}, 5, v{VL}')
    e(f's_lshl_b32 s42, s{S_W}, 1'); e('s_add_u32 s42, s42, 7')
    e(f'v_add_u32 v{T+8}, s42, v{T+8}')
    e(f'v_lshlrev_b32 v{T+8}, 9, v{T+8}')
    e(f'v_add_u32 v{T+8}, {L_TE}, v{T+8}')
    e(f'v_and_b32 v{T+9}, 31, v{VL}')
    e(f'v_lshl_add_u32 v{T+10}, v{T+9}, 3, v{T+8}')
    g.lds(f'ds_write_b64 v{T+10}, {vr(cur[0],2)}', 'ew')
    e(f'v_and_b32 v{T+11}, 7, v{VL}')
    e(f'v_lshl_add_u32 v{T+11}, v{T+11}, 3, v{T+8}')
    e(f'v_add_u32 v{T+11}, 256, v{T+11}')
    e(f'v_lshl_add_u32 v{T+12}, v{T+7}, 2, v{T+11}')
    e(f'v_cmp_gt_u32 vcc, 16, v{T+9}')
    e('s_and_saveexec_b64 s[40:41], vcc')
    g.lds(f'ds_write_b32 v{T+12}, v{xc}', 'ew')
    e('s_mov_b64 exec, s[40:41]')
    g.wl0()
    e('s_barrier')
    RD = T+16
    for m in range(8):
        g.lds(f'ds_read_b64 {vr(RD+2*m,2)}, v{T+10} offset:0' .replace('offset:0', '') if m == 0 else f'ds_read_b64 {vr(RD+2*m,2)}, v{T+13} offset:{(7-m)*512}', f'er{m}') if m == 0 else None
        if m == 0:
            e(f'v_subrev_u32 v{T+13}, {7*512}, v{T+10}')
            e(f'v_subrev_u32 v{T+14}, {7*512}, v{T+11}')
        else:
            g.lds(f'ds_read_b64 {vr(RD+2*m,2)}, v{T+13} offset:{(7-m)*512}', f'er{m}')
    RX = T+32
    g.lds(f'ds_read_b64 {vr(RX,2)}, v{T+11}', 'ex0')
    for m in range(1, 8):
        g.lds(f'ds_read_b64 {vr(RX+2*m,2)}, v{T+14} offset:{(7-m)*512}', f'ex{m}')
        if len(g.lq) >= 14: g.wl('er1')
    g.wl0()
    def horner(RDb, lr, li, pr_, pi2):
        cur = (RDb+14, RDb+15); alt = (T+48, T+49); alt2 = (T+50, T+51)
        for m in range(6, 0, -1):
            dst = (pr_, pi2) if m == 1 else (alt if cur != alt else alt2)
            cfma(g, lr, li, cur[0], cur[1], RDb+2*m, RDb+2*m+1, dst[0], dst[1])
            cur = dst
    horner(RD, L16R, L16I, PR, PI)
    horner(RX, XL16R, XL16I, XPR, XPI)
    g.wv('non')
    lab = g.newlab('NP'); lab2 = g.newlab('NPD')
    g.label(lab)
    e(f'v_readfirstlane_b32 s50, v{VNON}')
    e('s_nop 3')
    e('s_cmp_lg_u32 s50, 0')
    e(f's_cbranch_scc1 {lab2}')
    e('s_sleep 2')
    e(f'buffer_load_dword v{VNON}, off, s[{R_DBG}:{R_DBG+3}], 0 sc0 sc1')
    e('s_waitcnt vmcnt(0)')
    e(f's_branch {lab}')
    g.label(lab2)
    lab = g.newlab('PUB')
    e(f's_cmp_lg_u32 s{S_W}, 3')
    e(f's_cbranch_scc1 {lab}')
    cfma(g, L16R, L16I, PR, PI, RD, RD+1, T+48, T+50)
    cfma(g, XL16R, XL16I, XPR, XPI, RX, RX+1, T+52, T+54)
    e(f'v_mov_b32 v{T+49}, s50'); e(f'v_mov_b32 v{T+51}, s50')
    e(f'v_mov_b32 v{T+53}, s50'); e(f'v_mov_b32 v{T+55}, s50')
    e(f's_lshl_b32 s42, s{S_C}, 4'); e(f's_add_u32 s42, s42, s{S_J}'); e('s_mul_i32 s42, s42, 640'); e(f's_add_u32 s42, s42, {WS_EP}')
    e(f'v_lshlrev_b32 v{T+12}, 4, v{T+9}')
    e('s_mov_b32 exec_lo, 0'); e('s_mov_b32 exec_hi, -1')
    e(f'buffer_store_dwordx4 {vr(T+48,4)}, v{T+12}, s[{R_WS}:{R_WS+3}], s42 offen sc0 sc1')
    e('s_mov_b32 exec_hi, 0xff')
    e(f'buffer_store_dwordx4 {vr(T+52,4)}, v{T+12}, s[{R_WS}:{R_WS+3}], s42 offen offset:512 sc0 sc1')
    e('s_mov_b64 exec, -1')
    e('s_waitcnt vmcnt(0)')
    g.label(lab)
    g.vq = ['st11'] * 10 if True else g.vq
    stamp(g, o, 3, VDIAG)

    def glu_epi(q):
        Gr, Ur = aG[q], aU[q]
        H = T + 16
        if o.mimic:
            for p in range(8):
                e(f'v_cvt_pk_bf16_f32 v{T}, v{Gr+2*p}, v{Gr+2*p+1}')
                e(f'v_cvt_pk_bf16_f32 v{T+1}, v{Ur+2*p}, v{Ur+2*p+1}')
                e(f'v_lshlrev_b32 v{T+2}, 16, v{T}'); e(f'v_and_b32 v{T+3}, 0xffff0000, v{T}')
                e(f'v_lshlrev_b32 v{T+4}, 16, v{T+1}'); e(f'v_and_b32 v{T+5}, 0xffff0000, v{T+1}')
                e(f'v_mul_f32 v{T+2}, v{T+2}, v{T+4}'); e(f'v_mul_f32 v{T+3}, v{T+3}, v{T+5}')
                e(f'v_cvt_pk_bf16_f32 v{H+p}, v{T+2}, v{T+3}')
        else:
            for p in range(8):
                e(f'v_mul_f32 v{T+2}, v{Gr+2*p}, v{Ur+2*p}'); e(f'v_mul_f32 v{T+3}, v{Gr+2*p+1}, v{Ur+2*p+1}')
                e(f'v_cvt_pk_bf16_f32 v{H+p}, v{T+2}, v{T+3}')
        e(f's_lshr_b32 s42, s{S_C}, 1'); e('s_mul_i32 s42, s42, 6')
        e(f's_and_b32 s43, s{S_C}, 1'); e('s_cmp_lg_u32 s43, 0')
        e(f's_cselect_b32 s43, {(4,5,3)[q]}, {q}')
        e('s_add_u32 s42, s42, s43')
        e(f's_lshl_b32 s43, s{S_J}, 3'); e(f's_lshl_b32 s44, s{S_W}, 1'); e('s_add_u32 s43, s43, s44'); e('s_mul_i32 s43, s43, 88')
        e('s_add_u32 s42, s42, s43'); e('s_lshl_b32 s42, s42, 10')
        g.vm(f'buffer_store_dwordx4 {vr(H,4)}, v{VHO}, s[{R_WS}:{R_WS+3}], s42 offen {o.st_flags}', 'hst')
        g.vm(f'buffer_store_dwordx4 {vr(H+4,4)}, v{VHO}, s[{R_WS}:{R_WS+3}], s42 offen offset:512 {o.st_flags}', 'hst')
        e('s_nop 1')
    VHO = 31
    e(f'v_bfe_u32 v{T}, v{VL}, 4, 1'); e(f'v_mul_u32_u24 v{T}, {88*1024}, v{T}')
    e(f'v_lshrrev_b32 v{T+1}, 5, v{VL}'); e(f'v_lshl_add_u32 v{T}, v{T+1}, 8, v{T}')
    e(f'v_and_b32 v{T+1}, 15, v{VL}'); e(f'v_lshl_add_u32 v{VHO}, v{T+1}, 4, v{T}')
    glu_epi(0); glu_epi(1)
    stamp(g, o, 4, VDIAG)

    def reads2(K):
        ss, kk = divmod(K, 4); base = p2_base(ss); fs = AF[K % 2]
        b = base // 49152
        off = base - b*49152
        breg = (VP2, VP2+1, 0)[b]
        R = []
        for m in range(2):
            for rd in range(2):
                o_ = off + m*4096 + kk*1024 + rd*256
                assert o_ < 65536
                R.append((f'p{m}_{K}', f'ds_read_b64_tr_b16 {ar(fs+4*m+2*rd,2)}, v{breg} offset:{o_}'))
        return R
    for tg, tx in reads2(0): g.lds(tx, tg)
    for K in range(40):
        fs = AF[K % 2]; x = ar(AX+4*K, 4)
        if K == 19:
            pass
        nxt = reads2(K+1) if K < 39 else []
        for m in range(2):
            g.wl(f'p{m}_{K}')
            d = vr((aG[2], aU[2])[m], 16); cc = d if K else '0'
            e(f'v_mfma_f32_32x32x16_bf16 {d}, {ar(fs+4*m,4)}, {x}, {cc}')
            if K == 19 and m == 0:
                nv = g.wv_n('st11')
                e(f's_waitcnt vmcnt({nv})' if nv is not None else 's_nop 0')
                e('s_barrier')
            for tg, tx in nxt[2*m:2*m+2]: g.lds(tx, tg)
    e('s_nop 7'); e('s_nop 7')
    stamp(g, o, 5, VDIAG)
    glu_epi(2)

    e(f's_lshl_b32 s42, s2, 2'); e(f's_add_u32 s42, s42, s{S_W}')
    labS = g.newlab('PKS'); labE = g.newlab('PKE')
    e('s_cmp_ge_u32 s42, 880'); e(f's_cbranch_scc1 {labE}')
    e('s_cmp_ge_u32 s42, 480'); e(f's_cbranch_scc1 {labS}')
    e('s_mul_i32 s43, s42, 6554'); e('s_lshr_b32 s43, s43, 16')
    e('s_mul_i32 s44, s43, 10'); e('s_sub_u32 s44, s42, s44')
    srd(g, R_T, P_WD, 1536*1280)
    e(f'v_lshrrev_b32 v{T}, 3, v{VL}'); e('s_movk_i32 s45, 1280'); e(f'v_mul_lo_u32 v{T}, v{T}, s45')
    e(f'v_and_b32 v{T+1}, 7, v{VL}'); e(f'v_lshl_add_u32 v{T}, v{T+1}, 4, v{T}')
    e('s_mul_i32 s46, s43, 40960'); e('s_lshl_b32 s47, s44, 7'); e('s_add_u32 s46, s46, s47')
    e(f's_lshl_b32 s47, s{S_W}, 12'); e(f's_add_u32 m0, s47, {L_X}'); e('s_nop 0')
    for q in range(4):
        if q: e(f'v_add_u32 v{T}, {8*1280-1024}, v{T}')
        e(f'buffer_load_dwordx4 v{T}, s[{R_T}:{R_T+3}], s46 offen offset:{q*1024} lds')
    e(f'v_lshrrev_b32 v{T+2}, 5, v{VL}'); e(f'v_lshlrev_b32 v{T+2}, 4, v{T+2}')
    e(f'v_bfe_u32 v{T+3}, v{VL}, 4, 1'); e(f'v_lshl_add_u32 v{T+2}, v{T+3}, 2, v{T+2}')
    e(f'v_bfe_u32 v{T+3}, v{VL}, 2, 2'); e(f'v_add_u32 v{T+2}, v{T+2}, v{T+3}')
    e(f'v_lshlrev_b32 v{T+2}, 7, v{T+2}')
    e(f'v_and_b32 v{T+3}, 3, v{VL}'); e(f'v_lshl_add_u32 v{T+2}, v{T+3}, 3, v{T+2}')
    e(f'v_add_u32 v{T+2}, s47, v{T+2}')
    e('s_waitcnt vmcnt(0)')
    for tp in range(4):
        e(f'ds_read_b64_tr_b16 {vr(T+8+4*tp,2)}, v{T+2} offset:{L_X + tp*32}')
        e(f'ds_read_b64_tr_b16 {vr(T+10+4*tp,2)}, v{T+2} offset:{L_X + tp*32 + 8*128}')
    e(f'v_lshlrev_b32 v{T+4}, 4, v{VL}')
    e('s_waitcnt lgkmcnt(0)')
    for tp in range(4):
        e(f's_lshl_b32 s46, s44, 2'); e(f's_add_u32 s46, s46, {tp}')
        e('s_mul_i32 s47, s46, 52429'); e('s_lshr_b32 s47, s47, 18')
        e('s_mul_i32 s48, s47, 5'); e('s_sub_u32 s48, s46, s48')
        e('s_mul_i32 s47, s47, 88'); e('s_add_u32 s47, s47, s43'); e('s_mul_i32 s47, s47, 5'); e('s_add_u32 s47, s47, s48')
        e('s_lshl_b32 s47, s47, 10'); e(f's_add_u32 s47, s47, {WS_W2}')
        e(f'buffer_store_dwordx4 {vr(T+8+4*tp,4)}, v{T+4}, s[{R_WS}:{R_WS+3}], s47 offen {o.st_flags}')
    e(f's_branch {labE}')
    g.label(labS)
    e('s_sub_u32 s42, s42, 480')
    e('s_cmp_ge_u32 s42, 200'); e('s_cselect_b32 s43, 1, 0')
    e('s_mul_i32 s44, s43, 200'); e('s_sub_u32 s42, s42, s44')
    e('s_mul_i32 s44, s42, 52429'); e('s_lshr_b32 s44, s44, 18')
    e('s_mul_i32 s45, s44, 5'); e('s_sub_u32 s45, s42, s45')
    e('s_cmp_lg_u32 s43, 0')
    e(f's_cselect_b32 s{R_T}, s{P_CIM}, s{P_CRE}'); e(f's_cselect_b32 s{R_T+1}, s{P_CIM+1}, s{P_CRE+1}')
    e(f's_and_b32 s{R_T+1}, s{R_T+1}, 0xffff'); e(f's_mov_b32 s{R_T+2}, {640*1280}'); e(f's_mov_b32 s{R_T+3}, 0x20000')
    e(f'v_lshrrev_b32 v{T}, 4, v{VL}')
    e(f'v_and_b32 v{T+1}, 15, v{VL}')
    e('s_movk_i32 s46, 1280')
    e('s_mul_i32 s47, s44, 20480'); e('s_lshl_b32 s48, s45, 8'); e('s_add_u32 s47, s47, s48')
    e(f's_lshl_b32 s48, s{S_W}, 12'); e(f's_add_u32 m0, s48, {L_X}')
    for q in range(4):
        e(f'v_add_u32 v{T+2}, {4*q}, v{T}')
        e(f'v_xor_b32 v{T+3}, v{T+2}, v{T+1}')
        e(f'v_mul_lo_u32 v{T+2}, v{T+2}, s46')
        e(f'v_lshl_add_u32 v{T+2}, v{T+3}, 4, v{T+2}')
        if q: e(f'v_subrev_u32 v{T+2}, {q*1024}, v{T+2}')
        e(f'buffer_load_dwordx4 v{T+2}, s[{R_T}:{R_T+3}], s47 offen offset:{q*1024} lds')
    e(f'v_lshrrev_b32 v{T}, 4, v{VL}')
    e(f'v_lshlrev_b32 v{T+2}, 8, v{T+1}'); e(f'v_add_u32 v{T+2}, s48, v{T+2}')
    e('s_waitcnt vmcnt(0)')
    for tp in range(4):
        e(f'v_add_u32 v{T+3}, {4*tp}, v{T}'); e(f'v_xor_b32 v{T+3}, v{T+3}, v{T+1}')
        e(f'v_lshl_add_u32 v{T+3}, v{T+3}, 4, v{T+2}')
        e(f'ds_read_b128 {vr(T+8+4*tp,4)}, v{T+3} offset:{L_X}')
    e(f'v_lshlrev_b32 v{T+4}, 4, v{VL}')
    e('s_waitcnt lgkmcnt(0)')
    e('s_mul_i32 s47, s44, 52429'); e('s_lshr_b32 s47, s47, 18'); e('s_mul_i32 s48, s47, 5'); e('s_sub_u32 s48, s44, s48')
    for tp in range(4):
        e(f's_lshl_b32 s46, s45, 3'); e(f's_add_u32 s46, s46, {48 + 2*tp}'); e('s_add_u32 s46, s46, s43')
        e('s_mul_i32 s49, s47, 88'); e('s_add_u32 s49, s49, s46'); e('s_mul_i32 s49, s49, 5'); e('s_add_u32 s49, s49, s48')
        e('s_lshl_b32 s49, s49, 10'); e(f's_add_u32 s49, s49, {WS_W2}')
        e(f'buffer_store_dwordx4 {vr(T+8+4*tp,4)}, v{T+4}, s[{R_WS}:{R_WS+3}], s49 offen {o.st_flags}')
    g.label(labE)
    g.vq = []; g.lq = []
    stamp(g, o, 6, VDIAG)

    e(f'v_and_b32 v{T}, 7, v{VL}'); e(f'v_add_u32 v{T}, 32, v{T}')
    e(f'v_cmp_gt_u32 vcc, 32, v{VL}')
    e('s_nop 1')
    e(f'v_cndmask_b32 v{T}, v{T}, v{VL}, vcc')
    e(f'v_lshlrev_b32 v{T}, 4, v{T}')
    EL = T + 8
    for mp in range(4):
        e(f's_lshl_b32 s42, s{S_W}, 2'); e(f's_add_u32 s42, s42, {1+mp}')
        e(f's_cmp_ge_u32 s{S_J}, s42')
        e(f's_cselect_b32 s{56+mp}, s50, 0')
        e(f's_cselect_b32 s43, 0, 0x7ff00000')
        e(f's_sub_u32 s42, s{S_J}, s42'); e('s_and_b32 s42, s42, 15')
        e(f's_lshl_b32 s44, s{S_C}, 4'); e('s_add_u32 s42, s42, s44'); e('s_mul_i32 s42, s42, 640'); e(f's_add_u32 s42, s42, {WS_EP}')
        e('s_add_u32 s42, s42, s43')
        e(f'v_add_u32 v{T+1+mp}, s42, v{T}')
    lab = g.newlab('LB'); lab2 = g.newlab('LBD')
    g.label(lab)
    for mp in range(4):
        e(f'buffer_load_dwordx4 {vr(EL+4*mp,4)}, v{T+1+mp}, s[{R_WS}:{R_WS+3}], 0 offen sc0 sc1')
    e('s_waitcnt vmcnt(0)')
    e('s_mov_b64 s[42:43], 0')
    for mp in range(4):
        e(f'v_cmp_ne_u32 vcc, s{56+mp}, v{EL+4*mp+1}'); e('s_or_b64 s[42:43], s[42:43], vcc')
        e(f'v_cmp_ne_u32 vcc, s{56+mp}, v{EL+4*mp+3}'); e('s_or_b64 s[42:43], s[42:43], vcc')
    e('s_cmp_eq_u64 s[42:43], 0')
    e(f's_cbranch_scc1 {lab2}')
    e('s_sleep 1')
    e(f's_branch {lab}')
    g.label(lab2)
    cfma(g, D128R, D128I, EL+12, EL+14, EL+8, EL+10, T+24, T+25)
    cfma(g, D128R, D128I, T+24, T+25, EL+4, EL+6, T+26, T+27)
    cfma(g, D128R, D128I, T+26, T+27, EL, EL+2, T+24, T+25)
    e(f'v_lshlrev_b32 v{T+5}, 3, v{VL}')
    e(f's_lshl_b32 s42, s{S_W}, 9'); e(f's_add_u32 s42, s42, {L_TQ}')
    e(f'v_add_u32 v{T+6}, s42, v{T+5}')
    g.lds(f'ds_write_b64 v{T+6}, {vr(T+24,2)}', 'q')
    g.wl0()
    e('s_barrier')
    e(f'v_add_u32 v{T+5}, {L_TQ}, v{T+5}')
    for k in range(4):
        g.lds(f'ds_read_b64 {vr(T+28+2*k,2)}, v{T+5} offset:{k*512}', 'qr')
    g.wl0()
    cfma(g, D512R, D512I, T+34, T+35, T+32, T+33, T+24, T+25)
    cfma(g, D512R, D512I, T+24, T+25, T+30, T+31, T+26, T+27)
    cfma(g, D512R, D512I, T+26, T+27, T+28, T+29, T+24, T+25)
    CR, CI, XCR, XCI = T+36, T+37, T+38, T+39
    redis(T+24, T+24, CR, XCR); redis(T+25, T+25, CI, XCI)
    cfma(g, PWR, PWI, CR, CI, PR, PI, T+40, T+41)
    cfma(g, XPWR, XPWI, XCR, XCI, XPR, XPI, T+42, T+43)
    stamp(g, o, 7, VDIAG)
    XB = T+4
    e(f'v_bfe_u32 v{T+7}, v{VL}, 3, 1')
    e(f'v_cmp_eq_u32 vcc, 1, v{T+7}')
    e(f'v_sub_f32 v{XB}, 0, v{XLI}')
    e(f'v_sub_f32 v{T+8}, 0, v{LI}')
    e(f'v_cndmask_b32 v{XB}, v{XB}, v{XLI}, vcc')
    e(f'v_cndmask_b32 v{T+44}, v{T+42}, v{T+43}, vcc')
    NLI = T+8
    hr, hi, xp = T+40, T+41, T+44
    for r in range(16):
        e(f'v_fmac_f32 v{aX+r}, v{XLR}, v{xp}')
        e(f'v_fmac_f32 v{aR+r}, v{LR}, v{hr}')
        e(f'v_fmac_f32 v{aI+r}, v{LR}, v{hi}')
        e(f'v_fmac_f32 v{aR+r}, v{NLI}, v{hi}')
        e(f'v_fmac_f32 v{aI+r}, v{LI}, v{hr}')
        e(f'v_fmac_f32_dpp v{aX+r}, v{xp}, v{XB} row_ror:8 row_mask:0xf bank_mask:0xf')
        hr, hi, xp = aR+r, aI+r, aX+r
    XA, XBb = T+9, T+10
    e(f'v_sub_f32 v{XA}, 0, v{XCFR}')
    e(f'v_cndmask_b32 v{XA}, v{XCFR}, v{XA}, vcc')
    e(f'v_sub_f32 v{XBb}, 0, v{XCFI}')
    PK = T + 12
    for p in range(8):
        for h_ in range(2):
            r = 2*p + h_
            e(f'v_mul_f32 v{T+40+h_}, v{CFR}, v{aR+r}')
            e(f'v_mul_f32 v{T+42+h_}, v{CFR}, v{aI+r}')
            e(f'v_mul_f32 v{T+44+h_}, v{XA}, v{aX+r}')
            e(f'v_fma_f32 v{T+40+h_}, -v{CFI}, v{aI+r}, v{T+40+h_}')
            e(f'v_fmac_f32 v{T+42+h_}, v{CFI}, v{aR+r}')
            e(f'v_fmac_f32_dpp v{T+44+h_}, v{aX+r}, v{XBb} row_ror:8 row_mask:0xf bank_mask:0xf')
        e(f'v_cvt_pk_bf16_f32 v{PK+p}, v{T+40}, v{T+41}')
        e(f'v_cvt_pk_bf16_f32 v{PK+8+p}, -v{T+42}, -v{T+43}')
        e(f'v_cvt_pk_bf16_f32 v{PK+16+p}, v{T+44}, v{T+45}')
    e(f's_mul_i32 s42, s{S_W}, {TH_W}'); e(f's_add_u32 s42, s42, {L_TH}')
    e(f'v_and_b32 v{T}, 31, v{VL}'); e(f'v_mul_u32_u24 v{T+1}, {TH_PITCH}, v{T}')
    e(f'v_lshrrev_b32 v{T+2}, 5, v{VL}'); e(f'v_lshl_add_u32 v{T+1}, v{T+2}, 5, v{T+1}')
    e(f'v_add_u32 v{T+1}, s42, v{T+1}')
    for cmp_ in range(2):
        for k in range(4):
            g.lds(f'ds_write_b64 v{T+1}, {vr(PK+8*cmp_+2*k,2)} offset:{cmp_*32*TH_PITCH + k*8}', 'tw')
    e(f'v_cmp_gt_u32 vcc, 16, v{T}')
    e('s_and_saveexec_b64 s[40:41], vcc')
    for k in range(4):
        g.lds(f'ds_write_b64 v{T+1}, {vr(PK+16+2*k,2)} offset:{64*TH_PITCH + k*8}', 'tw')
    e('s_mov_b64 exec, s[40:41]')
    e(f'v_bfe_u32 v{T+2}, v{VL}, 2, 2')
    e(f'v_lshrrev_b32 v{T+3}, 5, v{VL}')
    e(f'v_lshl_add_u32 v{T+4}, v{T+3}, 5, v{T+2}')
    e(f'v_lshl_add_u32 v{T+5}, v{T+3}, 3, v{T+2}')
    e(f'v_and_b32 v{T+6}, 1, v{VL}'); e(f'v_lshlrev_b32 v{T+6}, 5, v{T+6}')
    e(f'v_bfe_u32 v{T+7}, v{VL}, 4, 1'); e(f'v_lshl_add_u32 v{T+6}, v{T+7}, 4, v{T+6}')
    e(f'v_bfe_u32 v{T+7}, v{VL}, 1, 1'); e(f'v_lshl_add_u32 v{T+6}, v{T+7}, 3, v{T+6}')
    e(f'v_add_u32 v{T+6}, s42, v{T+6}')
    e(f'v_mad_u32_u24 v{T+4}, v{T+4}, {TH_PITCH if TH_PITCH <= 64 else "s43"}, v{T+6}' if TH_PITCH <= 64 else f's_movk_i32 s43, {TH_PITCH}')
    if TH_PITCH > 64:
        e(f'v_mad_u32_u24 v{T+4}, v{T+4}, s43, v{T+6}')
    e(f'v_mad_u32_u24 v{T+5}, v{T+5}, s43, v{T+6}')
    g.wl0()
    HO = T + 40
    for u in range(5):
        for rd in range(2):
            if u < 4: g.lds(f'ds_read_b64_tr_b16 {vr(HO+4*u+2*rd,2)}, v{T+4} offset:{(8*u + 4*rd)*TH_PITCH}', 'tr')
            else:     g.lds(f'ds_read_b64_tr_b16 {vr(HO+4*u+2*rd,2)}, v{T+5} offset:{(64 + 4*rd)*TH_PITCH}', 'tr')
    e(f'v_bfe_u32 v{T}, v{VL}, 4, 1'); e(f'v_mul_u32_u24 v{T}, {88*1024}, v{T}')
    e(f'v_lshl_add_u32 v{T}, v{T+3}, 10, v{T}')
    e(f'v_and_b32 v{T+1}, 15, v{VL}'); e(f'v_lshl_add_u32 v{T}, v{T+1}, 4, v{T}')
    e(f's_lshl_b32 s43, s{S_J}, 3'); e(f's_lshl_b32 s44, s{S_W}, 1'); e('s_add_u32 s43, s43, s44'); e('s_mul_i32 s43, s43, 88')
    e(f's_mul_i32 s44, s{S_C}, 5')
    g.wl0()
    for u in range(5):
        e(f's_add_u32 s45, s44, {u}'); e('s_lshr_b32 s46, s45, 2'); e('s_lshl_b32 s46, s46, 1'); e('s_add_u32 s46, s46, s43'); e('s_add_u32 s46, s46, 48')
        e('s_lshl_b32 s46, s46, 10'); e('s_and_b32 s45, s45, 3'); e('s_lshl_b32 s45, s45, 8'); e('s_add_u32 s46, s46, s45')
        g.vm(f'buffer_store_dwordx4 {vr(HO+4*u,4)}, v{T}, s[{R_WS}:{R_WS+3}], s46 offen {o.st_flags}', 'hst')
    if o.diag:
        g.wv0()
        stamp(g, o, 8, VDIAG)
        e(f's_lshl_b32 s42, s2, 2'); e(f's_add_u32 s42, s42, s{S_W}'); e('s_lshl_b32 s42, s42, 6'); e(f's_add_u32 s42, s42, {WS_DIAG}')
        e(f'v_lshlrev_b32 v{T}, 2, v{VL}')
        e('s_mov_b64 exec, 0xffff')
        e(f'buffer_store_dword v{VDIAG}, v{T}, s[{R_WS}:{R_WS+3}], s42 offen')
        e('s_mov_b64 exec, -1')
    g.label('K1_END')
    e('s_endpgm')
    return g

def gen_k2(o):
    g = G(); e = g.e
    VL = 1; VAO = 2; VWO = 3; VRD = 4; VDIAG = 5; T = 8
    AFR = 64
    BFR = 128
    aB_, aA_ = 168, 188
    XV = 208
    GV = 228; DV = 232
    S_W_, S_TB, S_DB = 4, 5, 6
    R_WS2, R_X2, R_O, R_T2 = 8, 12, 16, 20
    NS = 22
    e('s_cmp_ge_u32 s2, 256')
    e('s_cbranch_scc1 K2_END')
    e('s_load_dwordx2 s[64:65], s[0:1], 0')
    e('s_load_dwordx2 s[66:67], s[0:1], 64')
    e('s_load_dwordx2 s[68:69], s[0:1], 112')
    e('s_load_dwordx2 s[70:71], s[0:1], 128')
    e(f'v_and_b32 v{VL}, 63, v0')
    e(f'v_lshrrev_b32 v{T}, 6, v0')
    if o.diag: e(f'v_mov_b32 v{VDIAG}, 0')
    e('s_and_b32 s3, s2, 7'); e('s_lshr_b32 s7, s2, 3')
    e(f'v_readfirstlane_b32 s{S_W_}, v{T}')
    e(f's_and_b32 s{S_TB}, s3, 3'); e(f's_lshl_b32 s{S_TB}, s{S_TB}, 3'); e('s_and_b32 s42, s7, 7'); e(f's_add_u32 s{S_TB}, s{S_TB}, s42')
    e(f's_lshr_b32 s{S_DB}, s3, 2'); e(f's_lshl_b32 s{S_DB}, s{S_DB}, 2'); e('s_lshr_b32 s42, s7, 3'); e(f's_add_u32 s{S_DB}, s{S_DB}, s42')
    e(f'v_lshlrev_b32 v{VAO}, 4, v{VL}')
    e(f'v_add_u32 v{VRD}, 0, v{VAO}')
    e(f's_lshl_b32 s44, s{S_TB}, 2'); e(f's_add_u32 s44, s44, s{S_W_}'); e(f's_mul_i32 s44, s44, {88*1024}')
    e(f's_mul_i32 s45, s{S_DB}, 88'); e(f's_add_u32 s45, s45, s{S_W_}'); e('s_mul_i32 s45, s45, 5120'); e(f's_add_u32 s45, s45, {WS_W2}')
    e(f's_mul_i32 s46, s{S_W_}, 5120')
    e('s_waitcnt lgkmcnt(0)')
    stamp_k2 = lambda idx: stamp(g, o, idx, VDIAG)
    stamp_k2(0)
    srd(g, R_WS2, 70, WS_SIZE)
    SLOT = 20480
    def issue(S):
        P = []
        tag = f's{S}'
        def w0():
            e(f's_add_u32 m0, s46, {(S % 4)*SLOT}')
            e(f's_add_u32 s47, s45, {S*4*5120}')
        P.append(w0)
        for t in range(4):
            P.append(lambda t=t: g.vm(f'buffer_load_dwordx4 v{VAO}, s[{R_WS2}:{R_WS2+3}], s47 offen offset:{t*1024} lds', tag))
        def w4():
            e(f's_add_u32 m0, s46, {(S % 4)*SLOT + 4096}')
            e(f's_add_u32 s47, s47, 4096')
            g.vm(f'buffer_load_dwordx4 v{VAO}, s[{R_WS2}:{R_WS2+3}], s47 offen lds', tag)
        P.append(w4)
        def a0(): e(f's_add_u32 s48, s44, {S*4096}')
        P.append(a0)
        for k in range(4):
            P.append(lambda k=k: g.vm(f'buffer_load_dwordx4 {vr(AFR + 16*(S % 4) + 4*k, 4)}, v{VAO}, s[{R_WS2}:{R_WS2+3}], s48 offen offset:{k*1024}', tag))
        return P
    for S in range(4):
        for p in issue(S): p()
    srd(g, R_X2, 64, 2048*1280); srd(g, R_T2, 66, 1280); srd(g, R_O, 68, 2048*2560)
    e(f's_lshl_b32 s42, s{S_TB}, 6'); e(f's_lshr_b32 s43, s{S_W_}, 1'); e('s_lshl_b32 s43, s43, 5'); e('s_add_u32 s42, s42, s43')
    e(f's_and_b32 s43, s{S_W_}, 1'); e('s_lshl_b32 s43, s43, 3'); e('s_add_u32 s42, s42, s43')
    e(f'v_bfe_u32 v{T}, v{VL}, 4, 1'); e(f'v_lshlrev_b32 v{T}, 4, v{T}')
    e(f'v_lshrrev_b32 v{T+1}, 5, v{VL}'); e(f'v_lshl_add_u32 v{T}, v{T+1}, 2, v{T}')
    e(f'v_add_u32 v{T}, s42, v{T}')
    VTOK = 6;
    e(f'v_mov_b32 v{VTOK}, v{T}')
    e(f'v_and_b32 v{T+1}, 15, v{VL}')
    e(f's_mul_i32 s43, s{S_DB}, 80')
    e(f'v_add_u32 v{T+1}, s43, v{T+1}')
    VD = 7
    e(f'v_mov_b32 v{VD}, v{T+1}')
    e(f'v_lshlrev_b32 v{T+2}, 2, v{T}'); e(f'v_add_u32 v{T+2}, {WS_G}, v{T+2}')
    g.vm(f'buffer_load_dwordx4 {vr(GV,4)}, v{T+2}, s[{R_WS2}:{R_WS2+3}], 0 offen', 'ep')
    e('s_movk_i32 s43, 1280')
    e(f'v_mul_lo_u32 v{T+3}, v{T}, s43'); e(f'v_lshl_add_u32 v{T+3}, v{T+1}, 1, v{T+3}')
    for r in range(4):
        for t in range(5):
            g.vm(f'buffer_load_ushort v{XV+5*r+t}, v{T+3}, s[{R_X2}:{R_X2+3}], 0 offen offset:{r*1280 + t*32}', 'ep')
    e(f'v_lshlrev_b32 v{T+4}, 1, v{T+1}')
    for t in range(5):
        g.vm(f'buffer_load_ushort v{DV+t}, v{T+4}, s[{R_T2}:{R_T2+3}], 0 offen offset:{t*32}', 'ep')
    def breads(S, k):
        fs = BFR + 20*((4*S + k) % 2)
        return [(f'b{S}_{k}_{t}', f'ds_read_b128 {vr(fs+4*t,4)}, v{VRD} offset:{(S % 4)*SLOT + k*5120 + t*1024}') for t in range(5)]
    VRD2 = 2 + 30
    e(f'v_add_u32 v{VRD2}, {2*SLOT}, v{VRD}')
    def breads(S, k):
        fs = BFR + 20*((4*S + k) % 2)
        sl = S % 4
        base = VRD if sl < 2 else VRD2
        o0 = (sl % 2)*SLOT
        return [(f'b{S}_{k}_{t}', f'ds_read_b128 {vr(fs+4*t,4)}, v{base} offset:{o0 + k*5120 + t*1024}') for t in range(5)]
    n = g.wv_n('s0')
    e(f's_waitcnt vmcnt({n})')
    e('s_barrier')
    stamp_k2(1)
    for tg, tx in breads(0, 0): g.lds(tx, tg)
    pend = []
    for S in range(NS):
        for k in range(4):
            ks = 4*S + k
            acc = aB_ if ks < 48 else aA_
            first = ks in (0, 48)
            last_k = (k == 3)
            nxt = []
            if not last_k: nxt = breads(S, k+1)
            fs = BFR + 20*(ks % 2)
            for t in range(5):
                g.wl(f'b{S}_{k}_{t}')
                d = vr(acc+4*t, 4); cc = '0' if first else d
                e(f'v_mfma_f32_16x16x32_bf16 {d}, {vr(AFR + 16*(S % 4) + 4*k, 4)}, {vr(fs+4*t,4)}, {cc}')
                if last_k and t == 1 and S + 1 < NS:
                    nv = g.wv_n(f's{S+1}')
                    g.lq = []
                    e(f's_waitcnt vmcnt({nv}) lgkmcnt(0)' if nv is not None else 's_waitcnt lgkmcnt(0)')
                    e('s_barrier')
                    nxt = breads(S+1, 0)
                    assert not pend
                    if S + 4 < NS: pend = issue(S + 4)
                if last_k:
                    if t >= 2 and nxt:
                        for _ in range(2 if t < 4 else 1):
                            if nxt:
                                tg, tx = nxt.pop(0); g.lds(tx, tg)
                else:
                    tg, tx = nxt[t]; g.lds(tx, tg)
                if pend and not (last_k and t < 2):
                    pend.pop(0)()
            if last_k:
                assert not nxt
            if k == 2:
                while pend: pend.pop(0)()
    assert not pend
    e('s_nop 7'); e('s_nop 7')
    stamp_k2(2)
    g.wall()
    OG = T + 8
    for r in range(4):
        e(f'v_sub_f32 v{OG+r}, 1.0, v{GV+r}')
        e(f'v_cvt_pk_bf16_f32 v{OG+r}, v{OG+r}, v{OG+r}')
        e(f'v_lshlrev_b32 v{OG+r}, 16, v{OG+r}')
    for t in range(5): e(f'v_lshlrev_b32 v{DV+t}, 16, v{DV+t}')
    e('s_movk_i32 s43, 2560')
    e(f'v_mul_lo_u32 v{T}, v{VTOK}, s43'); e(f'v_lshl_add_u32 v{T}, v{VD}, 2, v{T}')
    e(f'v_add_u32 v{T+1}, {2*2560}, v{T}')
    for t in range(5):
        for r in range(4):
            xv = XV + 5*r + t; b = aB_ + 4*t + r; a = aA_ + 4*t + r
            e(f'v_lshlrev_b32 v{xv}, 16, v{xv}')
            e(f'v_mul_f32 v{xv}, v{xv}, v{DV+t}')
            e(f'v_cvt_pk_bf16_f32 v{b}, v{b}, v{xv}')
            e(f'v_and_b32 v{xv}, 0xffff0000, v{b}')
            e(f'v_lshlrev_b32 v{b}, 16, v{b}')
            e(f'v_fmac_f32 v{xv}, 2.0, v{a}')
            e(f'v_mul_f32 v{b}, v{OG+r}, v{b}')
            e(f'v_cvt_pk_bf16_f32 v{b}, v{b}, v{b}')
            e(f'v_lshlrev_b32 v{b}, 16, v{b}')
            e(f'v_fmac_f32 v{b}, v{GV+r}, v{xv}')
            base = T if r < 2 else T+1
            g.vm(f'buffer_store_dword v{b}, v{base}, s[{R_O}:{R_O+3}], 0 offen offset:{(r % 2)*2560 + t*64}', 'o')
    if o.diag:
        g.wv0()
        stamp_k2(3)
        e(f's_lshl_b32 s42, s2, 2'); e(f's_add_u32 s42, s42, s{S_W_}'); e('s_lshl_b32 s42, s42, 6'); e(f's_add_u32 s42, s42, {WS_DIAG + 0x10000}')
        e(f'v_lshlrev_b32 v{T}, 2, v{VL}')
        e('s_mov_b64 exec, 0xffff')
        e(f'buffer_store_dword v{VDIAG}, v{T}, s[{R_WS2}:{R_WS2+3}], s42 offen')
        e('s_mov_b64 exec, -1')
    g.label('K2_END')
    e('s_endpgm')
    return g

HEADER = open('cdna_kernels/%s.s.ref' % NAME).read().split('; Override launch geometry')[0]

def kd(name, vgpr, accum, sgpr=102):
    return f'''.p2align 6
.amdhsa_kernel {name}
  .amdhsa_next_free_vgpr {vgpr}
  .amdhsa_next_free_sgpr {sgpr}
  .amdhsa_accum_offset {accum}
  .amdhsa_group_segment_fixed_size 0
  .amdhsa_kernarg_size 136
  .amdhsa_user_sgpr_count 2
  .amdhsa_user_sgpr_kernarg_segment_ptr 1
  .amdhsa_system_sgpr_workgroup_id_x 1
.end_amdhsa_kernel
'''

def build(o):
    k1 = gen_k1(o); k2 = gen_k2(o)
    s = HEADER
    s += f'; @launch kernel=k1_kernel grid=(256,1,1) block=(256,1,1) lds={LDS1}\n'
    s += f'; @launch kernel=k2_kernel grid=(256,1,1) block=(256,1,1) lds=81920\n'
    s += '.amdgcn_target "amdgcn-amd-amdhsa--gfx950"\n.text\n'
    s += '.globl k1_kernel\n.p2align 8\n.type k1_kernel,@function\nk1_kernel:\n' + k1.text()
    s += '.globl k2_kernel\n.p2align 8\n.type k2_kernel,@function\nk2_kernel:\n' + k2.text()
    s += 'CODE_END:\n.fill 64, 4, 0xBF800000\n'
    s += '.section .rodata,"a"\n' + kd('k1_kernel', 512, 256) + kd('k2_kernel', 256, 256)
    return s

if __name__ == '__main__':
    o = Opt()
    for a in sys.argv[2:]:
        k, v = a.split('=')
        setattr(o, k, eval(v))
    open(sys.argv[1], 'w').write(build(o))
```

```python
import sys
from asmlib import G, vr, ar, sr

NAME = 'gated_mix__ssm_conv_s5__glu_gated_bilinear__prompt'
WS_A2   = 0x0
WS_W2   = 0xB00000
WS_G    = 0xE70000
WS_EP   = 0xE80000
WS_DIAG = 0xF00000
WS_SIZE = 0x1000000
L_X = 0; L_B = 49152; L_W = 79872; L_S = 129024
XS = 16384; BS = 10240; WSZ = 16384
L_TE = L_S
L_TQ = L_S + 7680
L_TH = L_S + 9728
TH_PITCH = 72
TH_W = 80 * TH_PITCH
LDS1 = 163840
LOG2E = 0x3fb8aa3b
INV2PI = 0x3e22f983

class Opt:
    hdiag = False
    diag = False
    mimic = True
    st_flags = ''
    code_bytes = 40960

def srd(g, d, ptr, nbytes):
    g.e(f's_mov_b32 s{d}, s{ptr}')
    g.e(f's_and_b32 s{d+1}, s{ptr+1}, 0xffff')
    g.e(f's_mov_b32 s{d+2}, {nbytes}')
    g.e(f's_mov_b32 s{d+3}, 0x20000')

P_X, P_LRE, P_LIM, P_BRE, P_BIM, P_CRE, P_CIM, P_LDT = 64, 66, 68, 70, 72, 74, 76, 78
P_DSK, P_BX, P_WG, P_WU, P_WD, P_GW, P_OUT, P_DBG, P_WS = 80, 82, 84, 86, 88, 90, 92, 94, 96
S_W, S_J, S_C = 4, 5, 6
R_X, R_BRE, R_BIM, R_WG, R_WU, R_WS, R_T, R_DBG = 8, 12, 16, 20, 24, 28, 32, 36

def stamp(g, o, idx, vdiag):
    if o.hdiag:
        g.wl0()
        g.e('s_memrealtime s[40:41]')
        g.e('s_waitcnt lgkmcnt(0)')
        g.e(f'v_writelane_b32 v{vdiag}, s40, {idx}')
        return
    if not o.diag: return
    g.wl0()
    g.e('s_memtime s[40:41]')
    g.e('s_waitcnt lgkmcnt(0)')
    g.e(f'v_writelane_b32 v{vdiag}, s40, {idx}')

def cmul_sq(g, r, i, ro, io, t):
    g.e(f'v_mul_f32 v{t}, v{r}, v{r}')
    g.e(f'v_add_f32 v{io}, v{r}, v{r}')
    g.e(f'v_fma_f32 v{ro}, -v{i}, v{i}, v{t}')
    g.e(f'v_mul_f32 v{io}, v{io}, v{i}')

def cmul(g, ar_, ai, br, bi, ro, io):
    g.e(f'v_mul_f32 v{ro}, v{ar_}, v{br}')
    g.e(f'v_mul_f32 v{io}, v{ar_}, v{bi}')
    g.e(f'v_fma_f32 v{ro}, -v{ai}, v{bi}, v{ro}')
    g.e(f'v_fmac_f32 v{io}, v{ai}, v{br}')

def cfma(g, lr, li, hr, hi, ur, ui, ro, io):
    g.e(f'v_fma_f32 v{ro}, v{lr}, v{hr}, v{ur}')
    g.e(f'v_fma_f32 v{io}, v{lr}, v{hi}, v{ui}')
    g.e(f'v_fma_f32 v{ro}, -v{li}, v{hi}, v{ro}')
    g.e(f'v_fmac_f32 v{io}, v{li}, v{hr}')

def gen_k1(o):
    g = G()
    e = g.e
    VL = 1
    VXO = 2
    VBO = 6
    VWO = 10
    VW2O = 12
    VXA = 13
    VBR = 17
    VXX = 21
    VWR = 25
    VP2 = 27
    VDIAG = 29
    VNON = 30
    LR, LI, L16R, L16I, PWR, PWI, CFR, CFI = range(32, 40)
    XLR, XLI, XL16R, XL16I, XPWR, XPWI, XCFR, XCFI = range(40, 48)
    D128R, D128I, D512R, D512I = range(48, 52)
    PR, PI, XPR, XPI = range(52, 56)
    VT = 56
    aR, aI, aX = 112, 128, 144
    aG = [160, 176, 224]; aU = [192, 208, 240]
    AX = 0
    AF = [160, 188]
    APF = 216
    e('s_cmp_ge_u32 s2, 256')
    e('s_cbranch_scc1 K1_END')
    e('s_load_dwordx16 s[64:79], s[0:1], 0')
    e('s_load_dwordx16 s[80:95], s[0:1], 64')
    e('s_load_dwordx2 s[96:97], s[0:1], 128')
    if o.hdiag:
        e('s_memrealtime s[60:61]')
    e('s_getpc_b64 s[40:41]')
    g.label('K1_PC')
    e(f'v_and_b32 v{VL}, 63, v0')
    e('v_lshrrev_b32 v56, 6, v0')
    e('s_lshr_b32 s3, s2, 3')
    e('s_lshl_b32 s3, s3, 11')
    e('v_lshlrev_b32 v57, 3, v0')
    e('v_add_u32 v57, s3, v57')
    e(f'v_min_u32 v57, CODE_END-K1_PC-8, v57')
    g.vm(f'global_load_dwordx2 {ar(APF,2)}, v57, s[40:41]', 'pf')
    e(f'v_readfirstlane_b32 s{S_W}, v56')
    if o.diag or o.hdiag:
        e(f'v_mov_b32 v{VDIAG}, 0')
    e('s_and_b32 s3, s2, 7')
    e('s_lshr_b32 s7, s2, 3')
    e(f's_and_b32 s{S_J}, s3, 1'); e(f's_lshl_b32 s{S_J}, s{S_J}, 3')
    e('s_and_b32 s42, s7, 7'); e(f's_add_u32 s{S_J}, s{S_J}, s42')
    e(f's_lshr_b32 s{S_C}, s3, 1'); e(f's_lshl_b32 s{S_C}, s{S_C}, 2')
    e('s_lshr_b32 s42, s7, 3'); e(f's_add_u32 s{S_C}, s{S_C}, s42')
    T = 56
    e(f'v_lshrrev_b32 v{T}, 3, v{VL}')
    e(f'v_and_b32 v{T+1}, 7, v{VL}')
    e(f'v_lshrrev_b32 v{T+2}, 4, v{VL}')
    e(f'v_lshrrev_b32 v{T+3}, 5, v{VL}')
    e(f'v_and_b32 v{T+4}, 3, v{T}')
    e(f'v_lshl_add_u32 v{T+5}, v{T+3}, 4, v{T+4}')
    e(f's_lshl_b32 s42, s{S_J}, 7'); e(f's_lshl_b32 s43, s{S_W}, 5'); e('s_add_u32 s42, s42, s43')
    e(f'v_add_u32 v{T+5}, s42, v{T+5}')
    e('s_movk_i32 s43, 1280')
    e(f'v_mul_lo_u32 v{T+5}, v{T+5}, s43')
    e(f'v_xor_b32 v{T+6}, v{T+1}, v{T+2}')
    e(f'v_xor_b32 v{T+7}, 4, v{T+6}')
    for q in range(4):
        e(f'v_lshl_add_u32 v{VXO+q}, v{T+6+(q&1)}, 4, v{T+5}')
        if q: e(f'v_add_u32 v{VXO+q}, {q*4096}, v{VXO+q}')
    e(f's_mul_i32 s42, s{S_W}, 10')
    e(f'v_add_u32 v{T+8}, s42, v{T}')
    e(f's_mul_i32 s44, s{S_C}, 40')
    for b in range(2):
        if b: e(f'v_add_u32 v{T+8}, 8, v{T+8}')
        e(f'v_bfe_u32 v{T+9}, v{T+8}, 1, 3')
        e(f'v_xor_b32 v{T+9}, v{T+9}, v{T+1}')
        e(f'v_add_u32 v{T+10}, s44, v{T+8}')
        e(f'v_mul_lo_u32 v{T+10}, v{T+10}, s43')
        if b: e(f'v_subrev_u32 v{T+10}, 1024, v{T+10}')
        e(f'v_lshl_add_u32 v{VBO+b}, v{T+9}, 4, v{T+10}')
        e(f'v_xor_b32 v{T+9}, 4, v{T+9}')
        e(f'v_lshl_add_u32 v{VBO+2+b}, v{T+9}, 4, v{T+10}')
    e(f's_lshr_b32 s45, s{S_C}, 1'); e('s_mul_i32 s45, s45, 384')
    e(f's_and_b32 s46, s{S_C}, 1')
    e('s_lshl_b32 s47, s46, 8'); e('s_add_u32 s47, s47, s45')
    e('s_lshl_b32 s48, s46, 6'); e('s_add_u32 s48, s48, s45'); e('s_add_u32 s48, s48, 128')
    e(f's_lshl_b32 s42, s{S_W}, 4')
    e(f'v_add_u32 v{T+8}, s42, v{T}')
    e('s_movk_i32 s49, 3072')
    e(f'v_mul_lo_u32 v{T+8}, v{T+8}, s49')
    e(f'v_and_b32 v{T+9}, 1, v{T+2}')
    e(f'v_lshlrev_b32 v{T+9}, 2, v{T+9}')
    e(f'v_xor_b32 v{T+9}, v{T+9}, v{T+1}')
    e(f'v_lshl_add_u32 v{T+8}, v{T+9}, 4, v{T+8}')
    e(f'v_add_u32 v{VWO}, s47, v{T+8}')
    e(f'v_add_u32 v{VWO+1}, {8*3072-1024}, v{VWO}')
    e(f'v_lshrrev_b32 v{T+8}, 2, v{VL}')
    e(f'v_add_u32 v{T+8}, s42, v{T+8}')
    e(f'v_mul_lo_u32 v{T+8}, v{T+8}, s49')
    e(f'v_and_b32 v{T+9}, 3, v{VL}')
    e(f'v_lshl_add_u32 v{T+8}, v{T+9}, 4, v{T+8}')
    e(f'v_add_u32 v{VW2O}, s48, v{T+8}')
    e('s_waitcnt lgkmcnt(0)')
    stamp(g, o, 0, VDIAG)
    if o.hdiag: e(f'v_writelane_b32 v{VDIAG}, s60, 0')
    srd(g, R_X, P_X, 2048*1280)
    srd(g, R_BRE, P_BRE, 640*1280)
    srd(g, R_BIM, P_BIM, 640*1280)
    srd(g, R_WG, P_WG, 640*3072)
    srd(g, R_WU, P_WU, 640*3072)
    GX, GW = 112, 124
    srd(g, R_T, P_GW, 1280)
    e(f'v_and_b32 v{T+8}, 31, v{VL}')
    e(f's_lshl_b32 s42, s{S_J}, 7'); e(f's_lshl_b32 s50, s{S_C}, 3'); e('s_add_u32 s42, s42, s50')
    e(f's_lshl_b32 s50, s{S_W}, 1'); e('s_add_u32 s42, s42, s50')
    e(f'v_add_u32 v{T+9}, s42, v{T+3}')
    e(f'v_mov_b32 v{T+20}, v{T+9}')
    e(f'v_mul_lo_u32 v{T+9}, v{T+9}, s43')
    e(f'v_lshl_add_u32 v{T+9}, v{T+8}, 4, v{T+9}')
    e(f'v_lshlrev_b32 v{T+10}, 4, v{T+8}')
    e(f'v_cmp_gt_u32 vcc, 16, v{T+8}')
    e(f'v_mov_b32 v{T+11}, 0x7fff0000')
    e(f'v_cndmask_b32 v{T+11}, v{T+11}, v{T+9}, vcc')
    g.vm(f'buffer_load_dwordx4 {vr(GX,4)}, v{T+9}, s[{R_X}:{R_X+3}], 0 offen', 'gate')
    g.vm(f'buffer_load_dwordx4 {vr(GX+4,4)}, v{T+9}, s[{R_X}:{R_X+3}], 0 offen offset:512', 'gate')
    g.vm(f'buffer_load_dwordx4 {vr(GX+8,4)}, v{T+11}, s[{R_X}:{R_X+3}], 0 offen offset:1024', 'gate')
    g.vm(f'buffer_load_dwordx4 {vr(GW,4)}, v{T+10}, s[{R_T}:{R_T+3}], 0 offen', 'gate')
    g.vm(f'buffer_load_dwordx4 {vr(GW+4,4)}, v{T+10}, s[{R_T}:{R_T+3}], 0 offen offset:512', 'gate')
    g.vm(f'buffer_load_dwordx4 {vr(GW+8,4)}, v{T+10}, s[{R_T}:{R_T+3}], 0 offen offset:1024', 'gate')
    e(f'v_add_u32 v{T+12}, 32, v{T+1}')
    e(f'v_cmp_gt_u32 vcc, 32, v{VL}')
    e(f'v_cndmask_b32 v{T+12}, v{T+12}, v{VL}, vcc')
    e(f'v_add_u32 v{T+13}, s44, v{T+12}')
    e(f'v_lshlrev_b32 v{T+13}, 1, v{T+13}')
    PL = 140
    for k, p in enumerate((P_LRE, P_LIM, P_LDT)):
        srd(g, R_T, p, 1280)
        g.vm(f'buffer_load_ushort v{PL+k}, v{T+13}, s[{R_T}:{R_T+3}], 0 offen', 'par')
    srd(g, R_WS, P_WS, WS_SIZE)
    srd(g, R_DBG, P_DBG, 256)

    def dma_stage(s):
        slot = s % 3
        P = []
        tag = f'st{s}'
        if s < 10:
            def px():
                e(f's_lshl_b32 s42, s{S_W}, 12'); e(f's_add_u32 m0, s42, {L_X + slot*XS}')
                e(f's_movk_i32 s43, {s*128}')
            P.append(px)
            for q in range(4):
                P.append(lambda q=q: g.vm(f'buffer_load_dwordx4 v{VXO+q}, s[{R_X}:{R_X+3}], s43 offen offset:{q*1024} lds', tag))
            def pb(m):
                e(f's_mul_i32 s42, s{S_W}, 1280'); e(f's_add_u32 m0, s42, {L_B + slot*BS + m*5120}'); e('s_nop 0')
            P.append(lambda: pb(0))
            P.append(lambda: g.vm(f'buffer_load_dwordx4 v{VBO}, s[{R_BRE}:{R_BRE+3}], s43 offen lds', tag))
            def pbb(m):
                e('s_mov_b64 exec, 0xffff')
                r = R_BRE if m == 0 else R_BIM
                g.vm(f'buffer_load_dwordx4 v{VBO+2*m+1}, s[{r}:{r+3}], s43 offen offset:1024 lds', tag)
                e('s_mov_b64 exec, -1')
            P.append(lambda: pbb(0))
            P.append(lambda: pb(1))
            P.append(lambda: g.vm(f'buffer_load_dwordx4 v{VBO+2}, s[{R_BIM}:{R_BIM+3}], s43 offen lds', tag))
            P.append(lambda: pbb(1))
            def pw(m):
                e(f's_lshl_b32 s42, s{S_W}, 11'); e(f's_add_u32 m0, s42, {L_W + slot*WSZ + m*8192}')
                e(f's_mov_b32 s45, {s*64*3072}')
            for m in range(2):
                r = R_WG if m == 0 else R_WU
                P.append(lambda m=m: pw(m))
                for q in range(2):
                    P.append(lambda q=q, r=r: g.vm(f'buffer_load_dwordx4 v{VWO+q}, s[{r}:{r+3}], s45 offen offset:{q*1024} lds', tag))
        else:
            for sub in range(5):
                ss = (s - 10) * 5 + sub
                base = p2_base(ss)
                for m in range(2):
                    r = R_WG if m == 0 else R_WU
                    def pp(base=base, m=m, ss=ss, r=r):
                        e(f's_lshl_b32 s42, s{S_W}, 10'); e(f's_add_u32 m0, s42, {base + m*4096}')
                        e(f's_mov_b32 s45, {ss*64*3072}')
                        g.vm(f'buffer_load_dwordx4 v{VW2O}, s[{r}:{r+3}], s45 offen lds', tag)
                    P.append(pp)
        return P
    def p2_base(ss):
        slot = (10 + ss // 5) % 3
        sub = ss % 5
        if sub < 2: return L_X + slot*XS + sub*8192
        if sub == 2: return L_B + slot*BS
        return L_W + slot*WSZ + (sub-3)*8192
    for s in range(3):
        for p in dma_stage(s): p()

    e(f'v_and_b32 v{T+8}, 31, v{VL}')
    e(f'v_bfe_u32 v{T+9}, v{VL}, 1, 3')
    e(f'v_xor_b32 v{T+9}, v{T+9}, v{T+3}')
    e(f'v_lshlrev_b32 v{T+10}, 7, v{T+8}')
    e(f's_lshl_b32 s42, s{S_W}, 12')
    for kk in range(4):
        e(f'v_xor_b32 v{T+11}, {2*kk}, v{T+9}')
        e(f'v_lshl_add_u32 v{T+11}, v{T+11}, 4, v{T+10}')
        e(f'v_add_u32 v{VXA+kk}, s42, v{T+11}')
        e(f'v_add_u32 v{VBR+kk}, {L_B}, v{T+11}')
    e(f'v_bfe_u32 v{T+11}, v{VL}, 3, 1')
    e(f'v_lshrrev_b32 v{T+12}, 1, v{T+1}')
    e(f'v_lshl_add_u32 v{T+12}, v{T+11}, 2, v{T+12}')
    e(f'v_xor_b32 v{T+12}, v{T+12}, v{T+3}')
    e(f'v_mul_u32_u24 v{T+13}, 5120, v{T+11}')
    e(f'v_lshl_add_u32 v{T+13}, v{T+1}, 7, v{T+13}')
    e(f'v_add_u32 v{T+13}, {L_B + 32*128}, v{T+13}')
    for kk in range(4):
        e(f'v_xor_b32 v{T+14}, {2*kk}, v{T+12}')
        e(f'v_lshl_add_u32 v{VXX+kk}, v{T+14}, 4, v{T+13}')
    e(f'v_bfe_u32 v{T+11}, v{VL}, 2, 2')
    e(f'v_lshl_add_u32 v{T+12}, v{T+3}, 3, v{T+11}')
    e(f'v_and_b32 v{T+13}, 1, v{T+2}')
    e(f'v_bfe_u32 v{T+14}, v{VL}, 1, 1')
    e(f'v_lshl_add_u32 v{T+14}, v{T+13}, 1, v{T+14}')
    e(f'v_bfe_u32 v{T+15}, v{VL}, 3, 1')
    e(f'v_lshl_add_u32 v{T+14}, v{T+15}, 2, v{T+14}')
    e(f'v_and_b32 v{T+15}, 1, v{VL}')
    e(f'v_lshlrev_b32 v{T+15}, 3, v{T+15}')
    e(f'v_lshl_add_u32 v{T+15}, v{T+12}, 7, v{T+15}')
    e(f'v_add_u32 v{T+15}, {L_W}, v{T+15}')
    e(f'v_lshl_add_u32 v{VWR}, v{T+14}, 4, v{T+15}')
    e(f'v_xor_b32 v{T+14}, 4, v{T+14}')
    e(f'v_lshl_add_u32 v{VWR+1}, v{T+14}, 4, v{T+15}')
    e(f'v_and_b32 v{T+14}, 3, v{VL}')
    e(f'v_lshlrev_b32 v{T+14}, 3, v{T+14}')
    e(f'v_lshl_add_u32 v{T+14}, v{T+13}, 5, v{T+14}')
    e(f'v_lshl_add_u32 v{VP2}, v{T+12}, 6, v{T+14}')
    e(f'v_add_u32 v{VP2+1}, 49152, v{VP2}')

    e(f'v_lshlrev_b32 v{T+11}, 4, v0')
    for k in range(4): e(f'v_mov_b32 v{T+12+k}, 0')
    g.lds(f'ds_write_b128 v{T+11}, {vr(T+12,4)} offset:{L_TE % 65536}' if False else f'v_add_u32 v{T+11}, {L_TE}, v{T+11}', None)
    g.lq.pop()
    g.lds(f'ds_write_b128 v{T+11}, {vr(T+12,4)}', 'zero')

    e(f'v_add_u32 v0, 98304, v{VP2}')
    g.wv('gate')
    PL0 = 150
    e('s_mov_b32 s42, 0x3f803f80')
    for d in range(12):
        e(f'v_and_b32 v{T+12}, 0xffff, v{GW+d}')
        e(f'v_and_b32 v{T+13}, 0xffff0000, v{GW+d}')
        e(f'v_dot2_f32_bf16 v{PL0+2*d}, v{GX+d}, v{T+12}, 0')
        e(f'v_dot2_f32_bf16 v{PL0+2*d+1}, v{GX+d}, v{T+13}, 0')
    e('s_nop 2')
    for d in range(12):
        e(f'v_cvt_pk_bf16_f32 v{PL0+d}, v{PL0+2*d}, v{PL0+2*d+1}')
    e(f'v_mov_b32 v{T+12}, 0')
    for d in range(12):
        e(f'v_dot2_f32_bf16 v{T+12}, v{PL0+d}, s42, v{T+12}')
    e('s_nop 2')
    for sh in (1, 2, 4, 8):
        e(f'v_add_f32_dpp v{T+12}, v{T+12}, v{T+12} row_ror:{sh} row_mask:0xf bank_mask:0xf')
        e('s_nop 1')
    g.lds(f'ds_swizzle_b32 v{T+13}, v{T+12} offset:0x401f', 'sw')
    g.wl('sw')
    e(f'v_add_f32 v{T+12}, v{T+12}, v{T+13}')
    e(f'v_cvt_pk_bf16_f32 v{T+12}, v{T+12}, v{T+12}')
    e(f'v_lshlrev_b32 v{T+12}, 16, v{T+12}')
    e(f'v_mul_f32 v{T+12}, 0xbfb8aa3b, v{T+12}')
    e(f'v_exp_f32 v{T+12}, v{T+12}')
    e('s_nop 0')
    e(f'v_add_f32 v{T+12}, 1.0, v{T+12}')
    e(f'v_rcp_f32 v{T+12}, v{T+12}')
    e('s_nop 0')
    e(f'v_cvt_pk_bf16_f32 v{T+12}, v{T+12}, v{T+12}')
    e(f'v_lshlrev_b32 v{T+12}, 16, v{T+12}')
    e(f'v_lshlrev_b32 v{T+13}, 2, v{T+20}')
    e(f'v_add_u32 v{T+13}, {WS_G}, v{T+13}')
    e(f'v_and_b32 v{T+14}, 31, v{VL}')
    e(f'v_cmp_eq_u32 vcc, 0, v{T+14}')
    e('s_and_saveexec_b64 s[40:41], vcc')
    g.vm(f'buffer_store_dword v{T+12}, v{T+13}, s[{R_WS}:{R_WS+3}], 0 offen {o.st_flags}', 'gst')
    e('s_mov_b64 exec, s[40:41]')

    lab = g.newlab('NN')
    e(f's_or_b32 s42, s2, s{S_W}')
    e('s_cmp_lg_u32 s42, 0')
    e(f's_cbranch_scc1 {lab}')
    g.wl0()
    e('s_memrealtime s[40:41]')
    e('s_waitcnt lgkmcnt(0)')
    e('s_or_b32 s40, s40, 1')
    e(f'v_mov_b32 v{T+12}, s40')
    e(f'v_mov_b32 v{T+13}, 0')
    e('s_mov_b64 exec, 1')
    e(f'buffer_store_dword v{T+12}, v{T+13}, s[{R_DBG}:{R_DBG+3}], 0 offen sc0 sc1')
    e('s_mov_b64 exec, -1')
    e('s_waitcnt vmcnt(0)')
    g.label(lab)

    g.wv('par')
    A_, B_, DT = T+8, T+9, T+10
    e(f'v_lshlrev_b32 v{PL}, 16, v{PL}')
    e(f'v_lshlrev_b32 v{PL+1}, 16, v{PL+1}')
    e(f'v_lshlrev_b32 v{PL+2}, 16, v{PL+2}')
    e(f'v_mul_f32 v{DT}, {LOG2E}, v{PL+2}')
    e(f'v_exp_f32 v{DT}, v{DT}')
    e('s_nop 0')
    e(f'v_cvt_pk_bf16_f32 v{DT}, v{DT}, v{DT}')
    e(f'v_lshlrev_b32 v{DT}, 16, v{DT}')
    e(f'v_mul_f32 v{A_}, v{DT}, v{PL}')
    e(f'v_mul_f32 v{B_}, v{DT}, v{PL+1}')
    e(f'v_mul_f32 v{A_}, {LOG2E}, v{A_}')
    e(f'v_mul_f32 v{B_}, {INV2PI}, v{B_}')
    e(f'v_exp_f32 v{A_}, v{A_}')
    e(f'v_fract_f32 v{B_}, v{B_}')
    e('s_nop 0')
    Q = 150
    e(f'v_cos_f32 v{Q}, v{B_}')
    e(f'v_sin_f32 v{Q+1}, v{B_}')
    e('s_nop 0')
    e(f'v_mul_f32 v{Q}, v{Q}, v{A_}')
    e(f'v_mul_f32 v{Q+1}, v{Q+1}, v{A_}')
    e(f'v_add_f32 v{Q+2}, -1.0, v{Q}')
    e(f'v_mul_f32 v{Q+3}, v{PL}, v{PL}')
    e(f'v_fmac_f32 v{Q+3}, v{PL+1}, v{PL+1}')
    e(f'v_rcp_f32 v{Q+3}, v{Q+3}')
    e(f'v_mul_f32 v{Q+4}, v{Q+2}, v{PL}')
    e(f'v_fmac_f32 v{Q+4}, v{Q+1}, v{PL+1}')
    e(f'v_mul_f32 v{Q+5}, v{Q+1}, v{PL}')
    e(f'v_fma_f32 v{Q+5}, -v{Q+2}, v{PL+1}, v{Q+5}')
    e(f'v_mul_f32 v{Q+4}, v{Q+4}, v{Q+3}')
    e(f'v_mul_f32 v{Q+5}, v{Q+5}, v{Q+3}')
    pr, pi_ = Q, Q+1
    pw = {}
    for k, n in enumerate((2, 4, 8, 16, 32, 64, 128, 256, 512)):
        ro, io = Q+10+2*k, Q+11+2*k
        cmul_sq(g, pr, pi_, ro, io, Q+6)
        pw[n] = (ro, io); pr, pi_ = ro, io
    e(f'v_mov_b32 v{D128R}, v{pw[128][0]}'); e(f'v_mov_b32 v{D128I}, v{pw[128][1]}')
    e(f'v_mov_b32 v{D512R}, v{pw[512][0]}'); e(f'v_mov_b32 v{D512I}, v{pw[512][1]}')
    Z = Q + 30
    e(f's_and_b32 s42, s{S_W}, 1'); e('s_cmp_lg_u32 s42, 0'); e('s_cselect_b64 s[40:41], -1, 0')
    e(f'v_mov_b32 v{Z}, 1.0'); e(f'v_mov_b32 v{Z+1}, 0')
    e(f'v_cndmask_b32 v{Z}, v{Z}, v{pw[32][0]}, s[40:41]'); e(f'v_cndmask_b32 v{Z+1}, v{Z+1}, v{pw[32][1]}, s[40:41]')
    e(f's_and_b32 s42, s{S_W}, 2'); e('s_cmp_lg_u32 s42, 0'); e('s_cselect_b64 s[40:41], -1, 0')
    e(f'v_mov_b32 v{Z+2}, 1.0'); e(f'v_mov_b32 v{Z+3}, 0')
    e(f'v_cndmask_b32 v{Z+2}, v{Z+2}, v{pw[64][0]}, s[40:41]'); e(f'v_cndmask_b32 v{Z+3}, v{Z+3}, v{pw[64][1]}, s[40:41]')
    cmul(g, Z, Z+1, Z+2, Z+3, Z+4, Z+5)
    cmul(g, Z+4, Z+5, pw[16][0], pw[16][1], Z+6, Z+7)
    def redis(srcA, srcB, dRI, dX):
        e(f'v_mov_b32 v{dRI}, v{srcA}'); e(f'v_mov_b32 v{dX}, v{srcB}')
        e('s_nop 1')
        e(f'v_permlane32_swap_b32 v{dRI}, v{dX}')
    redis(Q, Q, LR, XLR); redis(Q+1, Q+1, LI, XLI)
    redis(pw[16][0], pw[16][0], L16R, XL16R); redis(pw[16][1], pw[16][1], L16I, XL16I)
    redis(Z+4, Z+6, PWR, XPWR); redis(Z+5, Z+7, PWI, XPWI)
    redis(Q+4, Q+4, CFR, XCFR); redis(Q+5, Q+5, CFI, XCFI)

    tiles = ['R', 'I', 'X', 'G0', 'G1', 'U0', 'U1']
    accs = {'R': aR, 'I': aI, 'X': aX, 'G0': aG[0], 'G1': aG[1], 'U0': aU[0], 'U1': aU[1]}
    def reads(K):
        s, kk = divmod(K, 4); slot = s % 3; fs = AF[K % 2]
        R = []
        R.append((f'x{K}', f'ds_read_b128 {ar(AX+4*K,4)}, v{VXA+kk} offset:{slot*XS}'))
        R.append((f'R{K}', f'ds_read_b128 {ar(fs,4)}, v{VBR+kk} offset:{slot*BS}'))
        R.append((f'I{K}', f'ds_read_b128 {ar(fs+4,4)}, v{VBR+(kk^2)} offset:{slot*BS+5120}'))
        R.append((f'X{K}', f'ds_read_b128 {ar(fs+8,4)}, v{VXX+kk} offset:{slot*BS}'))
        for m in range(2):
            for ft in range(2):
                t = ('G', 'U')[m] + str(ft)
                fr = fs + 12 + 4*(2*m+ft)
                for rd in range(2):
                    R.append((f'{t}{K}', f'ds_read_b64_tr_b16 {ar(fr+2*rd,2)}, v{VWR+ft} offset:{slot*WSZ + m*8192 + kk*2048 + rd*512}'))
        return R
    def mfma(t, K):
        fs = AF[K % 2]; x = ar(AX+4*K, 4); d = vr(accs[t], 16); cc = d if K else '0'
        idx = tiles.index(t); f = ar(fs + 4*idx, 4)
        if idx < 3: e(f'v_mfma_f32_32x32x16_bf16 {d}, {x}, {f}, {cc}')
        else:       e(f'v_mfma_f32_32x32x16_bf16 {d}, {f}, {x}, {cc}')
    g.wl0()
    n = g.wv_n('st0')
    e(f's_waitcnt vmcnt({n})')
    e('s_barrier')
    stamp(g, o, 1, VDIAG)
    for tg, tx in reads(0): g.lds(tx, tg)
    pend_dma = []
    for K in range(40):
        s, kk = divmod(K, 4)
        nxt = reads(K+1) if K < 39 else []
        gaps = [[] for _ in range(7)]
        if kk < 3:
            for i_, rd in enumerate(nxt): gaps[i_ // 2].append(rd)
        else:
            for i_, rd in enumerate(nxt): gaps[3 + i_ // 3].append(rd)
        for ti, t in enumerate(tiles):
            need = [f'{t}{K}'] + ([f'x{K}'] if ti == 0 else [])
            g.wl(need)
            mfma(t, K)
            if kk == 3 and ti == 2:
                nv = g.wv_n(f'st{s+1}')
                g.lq = []
                e(f's_waitcnt vmcnt({nv}) lgkmcnt(0)' if nv is not None else 's_waitcnt lgkmcnt(0)')
                e('s_barrier')
                if s + 3 <= 11: pend_dma = dma_stage(s + 3)
                if s == 5:
                    g.vm(f'buffer_load_dword v{VNON}, off, s[{R_DBG}:{R_DBG+3}], 0 sc0 sc1', 'non')
            for tg, tx in gaps[ti]: g.lds(tx, tg)
            if pend_dma and not (kk == 3 and ti < 3):
                k_ = 1 if kk != 3 else 0
                if kk < 3 and ti in (0, 2, 4, 5, 6): k_ = 2 if ti == 6 else 1
                for _ in range(k_):
                    if pend_dma: pend_dma.pop(0)()
        if kk == 2:
            while pend_dma: pend_dma.pop(0)()
    assert not pend_dma
    e('s_nop 7'); e('s_nop 7')
    stamp(g, o, 2, VDIAG)

    T = VT
    er, ei, tr_, ti_ = T, T+1, T+2, T+3
    e(f'v_mov_b32 v{er}, v{aR}'); e(f'v_mov_b32 v{ei}, v{aI}')
    XB = T+4; xo, xt = T+5, T+6
    e(f'v_bfe_u32 v{T+7}, v{VL}, 3, 1')
    e(f'v_cmp_eq_u32 vcc, 1, v{T+7}')
    e(f'v_sub_f32 v{XB}, 0, v{XLI}')
    e(f'v_mov_b32 v{xo}, v{aX}')
    e(f'v_cndmask_b32 v{XB}, v{XB}, v{XLI}, vcc')
    cur = (er, ei); alt = (tr_, ti_); xc, xa = xo, xt
    for r in range(1, 16):
        e(f'v_fma_f32 v{xa}, v{XLR}, v{xc}, v{aX+r}')
        cfma(g, LR, LI, cur[0], cur[1], aR+r, aI+r, alt[0], alt[1])
        e(f'v_fmac_f32_dpp v{xa}, v{xc}, v{XB} row_ror:8 row_mask:0xf bank_mask:0xf')
        cur, alt = alt, cur; xc, xa = xa, xc
    e(f'v_lshrrev_b32 v{T+8}, 5, v{VL}')
    e(f's_lshl_b32 s42, s{S_W}, 1'); e('s_add_u32 s42, s42, 7')
    e(f'v_add_u32 v{T+8}, s42, v{T+8}')
    e(f'v_lshlrev_b32 v{T+8}, 9, v{T+8}')
    e(f'v_add_u32 v{T+8}, {L_TE}, v{T+8}')
    e(f'v_and_b32 v{T+9}, 31, v{VL}')
    e(f'v_lshl_add_u32 v{T+10}, v{T+9}, 3, v{T+8}')
    g.lds(f'ds_write_b64 v{T+10}, {vr(cur[0],2)}', 'ew')
    e(f'v_and_b32 v{T+11}, 7, v{VL}')
    e(f'v_lshl_add_u32 v{T+11}, v{T+11}, 3, v{T+8}')
    e(f'v_add_u32 v{T+11}, 256, v{T+11}')
    e(f'v_lshl_add_u32 v{T+12}, v{T+7}, 2, v{T+11}')
    e(f'v_cmp_gt_u32 vcc, 16, v{T+9}')
    e('s_and_saveexec_b64 s[40:41], vcc')
    g.lds(f'ds_write_b32 v{T+12}, v{xc}', 'ew')
    e('s_mov_b64 exec, s[40:41]')
    g.wl0()
    e('s_barrier')
    RD = T+16
    for m in range(8):
        g.lds(f'ds_read_b64 {vr(RD+2*m,2)}, v{T+10} offset:0' .replace('offset:0', '') if m == 0 else f'ds_read_b64 {vr(RD+2*m,2)}, v{T+13} offset:{(7-m)*512}', f'er{m}') if m == 0 else None
        if m == 0:
            e(f'v_subrev_u32 v{T+13}, {7*512}, v{T+10}')
            e(f'v_subrev_u32 v{T+14}, {7*512}, v{T+11}')
        else:
            g.lds(f'ds_read_b64 {vr(RD+2*m,2)}, v{T+13} offset:{(7-m)*512}', f'er{m}')
    RX = T+32
    g.lds(f'ds_read_b64 {vr(RX,2)}, v{T+11}', 'ex0')
    for m in range(1, 8):
        g.lds(f'ds_read_b64 {vr(RX+2*m,2)}, v{T+14} offset:{(7-m)*512}', f'ex{m}')
        if len(g.lq) >= 14: g.wl('er1')
    g.wl0()
    def horner(RDb, lr, li, pr_, pi2):
        cur = (RDb+14, RDb+15); alt = (T+48, T+49); alt2 = (T+50, T+51)
        for m in range(6, 0, -1):
            dst = (pr_, pi2) if m == 1 else (alt if cur != alt else alt2)
            cfma(g, lr, li, cur[0], cur[1], RDb+2*m, RDb+2*m+1, dst[0], dst[1])
            cur = dst
    horner(RD, L16R, L16I, PR, PI)
    horner(RX, XL16R, XL16I, XPR, XPI)
    g.wv('non')
    lab = g.newlab('NP'); lab2 = g.newlab('NPD')
    g.label(lab)
    e(f'v_readfirstlane_b32 s50, v{VNON}')
    e('s_nop 3')
    e('s_cmp_lg_u32 s50, 0')
    e(f's_cbranch_scc1 {lab2}')
    e('s_sleep 2')
    e(f'buffer_load_dword v{VNON}, off, s[{R_DBG}:{R_DBG+3}], 0 sc0 sc1')
    e('s_waitcnt vmcnt(0)')
    e(f's_branch {lab}')
    g.label(lab2)
    lab = g.newlab('PUB')
    e(f's_cmp_lg_u32 s{S_W}, 3')
    e(f's_cbranch_scc1 {lab}')
    cfma(g, L16R, L16I, PR, PI, RD, RD+1, T+48, T+50)
    cfma(g, XL16R, XL16I, XPR, XPI, RX, RX+1, T+52, T+54)
    e(f'v_mov_b32 v{T+49}, s50'); e(f'v_mov_b32 v{T+51}, s50')
    e(f'v_mov_b32 v{T+53}, s50'); e(f'v_mov_b32 v{T+55}, s50')
    e(f's_lshl_b32 s42, s{S_C}, 4'); e(f's_add_u32 s42, s42, s{S_J}'); e('s_mul_i32 s42, s42, 640'); e(f's_add_u32 s42, s42, {WS_EP}')
    e(f'v_lshlrev_b32 v{T+12}, 4, v{T+9}')
    e('s_mov_b32 exec_lo, 0'); e('s_mov_b32 exec_hi, -1')
    e(f'buffer_store_dwordx4 {vr(T+48,4)}, v{T+12}, s[{R_WS}:{R_WS+3}], s42 offen sc0 sc1')
    e('s_mov_b32 exec_hi, 0xff')
    e(f'buffer_store_dwordx4 {vr(T+52,4)}, v{T+12}, s[{R_WS}:{R_WS+3}], s42 offen offset:512 sc0 sc1')
    e('s_mov_b64 exec, -1')
    e('s_waitcnt vmcnt(0)')
    g.label(lab)
    g.vq = ['st11'] * 10 if True else g.vq
    stamp(g, o, 3, VDIAG)

    def glu_epi(q):
        Gr, Ur = aG[q], aU[q]
        H = T + 16
        if o.mimic:
            for p in range(8):
                e(f'v_cvt_pk_bf16_f32 v{T}, v{Gr+2*p}, v{Gr+2*p+1}')
                e(f'v_cvt_pk_bf16_f32 v{T+1}, v{Ur+2*p}, v{Ur+2*p+1}')
                e(f'v_lshlrev_b32 v{T+2}, 16, v{T}'); e(f'v_and_b32 v{T+3}, 0xffff0000, v{T}')
                e(f'v_lshlrev_b32 v{T+4}, 16, v{T+1}'); e(f'v_and_b32 v{T+5}, 0xffff0000, v{T+1}')
                e(f'v_mul_f32 v{T+2}, v{T+2}, v{T+4}'); e(f'v_mul_f32 v{T+3}, v{T+3}, v{T+5}')
                e(f'v_cvt_pk_bf16_f32 v{H+p}, v{T+2}, v{T+3}')
        else:
            for p in range(8):
                e(f'v_mul_f32 v{T+2}, v{Gr+2*p}, v{Ur+2*p}'); e(f'v_mul_f32 v{T+3}, v{Gr+2*p+1}, v{Ur+2*p+1}')
                e(f'v_cvt_pk_bf16_f32 v{H+p}, v{T+2}, v{T+3}')
        e(f's_lshr_b32 s42, s{S_C}, 1'); e('s_mul_i32 s42, s42, 6')
        e(f's_and_b32 s43, s{S_C}, 1'); e('s_cmp_lg_u32 s43, 0')
        e(f's_cselect_b32 s43, {(4,5,3)[q]}, {q}')
        e('s_add_u32 s42, s42, s43')
        e(f's_lshl_b32 s43, s{S_J}, 3'); e(f's_lshl_b32 s44, s{S_W}, 1'); e('s_add_u32 s43, s43, s44'); e('s_mul_i32 s43, s43, 88')
        e('s_add_u32 s42, s42, s43'); e('s_lshl_b32 s42, s42, 10')
        g.vm(f'buffer_store_dwordx4 {vr(H,4)}, v{VHO}, s[{R_WS}:{R_WS+3}], s42 offen {o.st_flags}', 'hst')
        g.vm(f'buffer_store_dwordx4 {vr(H+4,4)}, v{VHO}, s[{R_WS}:{R_WS+3}], s42 offen offset:512 {o.st_flags}', 'hst')
        e('s_nop 1')
    VHO = 31
    e(f'v_bfe_u32 v{T}, v{VL}, 4, 1'); e(f'v_mul_u32_u24 v{T}, {88*1024}, v{T}')
    e(f'v_lshrrev_b32 v{T+1}, 5, v{VL}'); e(f'v_lshl_add_u32 v{T}, v{T+1}, 8, v{T}')
    e(f'v_and_b32 v{T+1}, 15, v{VL}'); e(f'v_lshl_add_u32 v{VHO}, v{T+1}, 4, v{T}')
    glu_epi(0); glu_epi(1)
    stamp(g, o, 4, VDIAG)

    def reads2(K):
        ss, kk = divmod(K, 4); base = p2_base(ss); fs = AF[K % 2]
        b = base // 49152
        off = base - b*49152
        breg = (VP2, VP2+1, 0)[b]
        R = []
        for m in range(2):
            for rd in range(2):
                o_ = off + m*4096 + kk*1024 + rd*256
                assert o_ < 65536
                R.append((f'p{m}_{K}', f'ds_read_b64_tr_b16 {ar(fs+4*m+2*rd,2)}, v{breg} offset:{o_}'))
        return R
    for tg, tx in reads2(0): g.lds(tx, tg)
    for K in range(40):
        fs = AF[K % 2]; x = ar(AX+4*K, 4)
        if K == 19:
            pass
        nxt = reads2(K+1) if K < 39 else []
        for m in range(2):
            g.wl(f'p{m}_{K}')
            d = vr((aG[2], aU[2])[m], 16); cc = d if K else '0'
            e(f'v_mfma_f32_32x32x16_bf16 {d}, {ar(fs+4*m,4)}, {x}, {cc}')
            if K == 19 and m == 0:
                nv = g.wv_n('st11')
                e(f's_waitcnt vmcnt({nv})' if nv is not None else 's_nop 0')
                e('s_barrier')
            for tg, tx in nxt[2*m:2*m+2]: g.lds(tx, tg)
    e('s_nop 7'); e('s_nop 7')
    stamp(g, o, 5, VDIAG)
    glu_epi(2)

    e(f's_lshl_b32 s42, s2, 2'); e(f's_add_u32 s42, s42, s{S_W}')
    labS = g.newlab('PKS'); labE = g.newlab('PKE')
    e('s_cmp_ge_u32 s42, 880'); e(f's_cbranch_scc1 {labE}')
    e('s_cmp_ge_u32 s42, 480'); e(f's_cbranch_scc1 {labS}')
    e('s_mul_i32 s43, s42, 6554'); e('s_lshr_b32 s43, s43, 16')
    e('s_mul_i32 s44, s43, 10'); e('s_sub_u32 s44, s42, s44')
    srd(g, R_T, P_WD, 1536*1280)
    e(f'v_lshrrev_b32 v{T}, 3, v{VL}'); e('s_movk_i32 s45, 1280'); e(f'v_mul_lo_u32 v{T}, v{T}, s45')
    e(f'v_and_b32 v{T+1}, 7, v{VL}'); e(f'v_lshl_add_u32 v{T}, v{T+1}, 4, v{T}')
    e('s_mul_i32 s46, s43, 40960'); e('s_lshl_b32 s47, s44, 7'); e('s_add_u32 s46, s46, s47')
    e(f's_lshl_b32 s47, s{S_W}, 12'); e(f's_add_u32 m0, s47, {L_X}'); e('s_nop 0')
    for q in range(4):
        if q: e(f'v_add_u32 v{T}, {8*1280-1024}, v{T}')
        e(f'buffer_load_dwordx4 v{T}, s[{R_T}:{R_T+3}], s46 offen offset:{q*1024} lds')
    e(f'v_lshrrev_b32 v{T+2}, 5, v{VL}'); e(f'v_lshlrev_b32 v{T+2}, 4, v{T+2}')
    e(f'v_bfe_u32 v{T+3}, v{VL}, 4, 1'); e(f'v_lshl_add_u32 v{T+2}, v{T+3}, 2, v{T+2}')
    e(f'v_bfe_u32 v{T+3}, v{VL}, 2, 2'); e(f'v_add_u32 v{T+2}, v{T+2}, v{T+3}')
    e(f'v_lshlrev_b32 v{T+2}, 7, v{T+2}')
    e(f'v_and_b32 v{T+3}, 3, v{VL}'); e(f'v_lshl_add_u32 v{T+2}, v{T+3}, 3, v{T+2}')
    e(f'v_add_u32 v{T+2}, s47, v{T+2}')
    e('s_waitcnt vmcnt(0)')
    for tp in range(4):
        e(f'ds_read_b64_tr_b16 {vr(T+8+4*tp,2)}, v{T+2} offset:{L_X + tp*32}')
        e(f'ds_read_b64_tr_b16 {vr(T+10+4*tp,2)}, v{T+2} offset:{L_X + tp*32 + 8*128}')
    e(f'v_lshlrev_b32 v{T+4}, 4, v{VL}')
    e('s_waitcnt lgkmcnt(0)')
    for tp in range(4):
        e(f's_lshl_b32 s46, s44, 2'); e(f's_add_u32 s46, s46, {tp}')
        e('s_mul_i32 s47, s46, 52429'); e('s_lshr_b32 s47, s47, 18')
        e('s_mul_i32 s48, s47, 5'); e('s_sub_u32 s48, s46, s48')
        e('s_mul_i32 s47, s47, 88'); e('s_add_u32 s47, s47, s43'); e('s_mul_i32 s47, s47, 5'); e('s_add_u32 s47, s47, s48')
        e('s_lshl_b32 s47, s47, 10'); e(f's_add_u32 s47, s47, {WS_W2}')
        e(f'buffer_store_dwordx4 {vr(T+8+4*tp,4)}, v{T+4}, s[{R_WS}:{R_WS+3}], s47 offen {o.st_flags}')
    e(f's_branch {labE}')
    g.label(labS)
    e('s_sub_u32 s42, s42, 480')
    e('s_cmp_ge_u32 s42, 200'); e('s_cselect_b32 s43, 1, 0')
    e('s_mul_i32 s44, s43, 200'); e('s_sub_u32 s42, s42, s44')
    e('s_mul_i32 s44, s42, 52429'); e('s_lshr_b32 s44, s44, 18')
    e('s_mul_i32 s45, s44, 5'); e('s_sub_u32 s45, s42, s45')
    e('s_cmp_lg_u32 s43, 0')
    e(f's_cselect_b32 s{R_T}, s{P_CIM}, s{P_CRE}'); e(f's_cselect_b32 s{R_T+1}, s{P_CIM+1}, s{P_CRE+1}')
    e(f's_and_b32 s{R_T+1}, s{R_T+1}, 0xffff'); e(f's_mov_b32 s{R_T+2}, {640*1280}'); e(f's_mov_b32 s{R_T+3}, 0x20000')
    e(f'v_lshrrev_b32 v{T}, 4, v{VL}')
    e(f'v_and_b32 v{T+1}, 15, v{VL}')
    e('s_movk_i32 s46, 1280')
    e('s_mul_i32 s47, s44, 20480'); e('s_lshl_b32 s48, s45, 8'); e('s_add_u32 s47, s47, s48')
    e(f's_lshl_b32 s48, s{S_W}, 12'); e(f's_add_u32 m0, s48, {L_X}')
    for q in range(4):
        e(f'v_add_u32 v{T+2}, {4*q}, v{T}')
        e(f'v_xor_b32 v{T+3}, v{T+2}, v{T+1}')
        e(f'v_mul_lo_u32 v{T+2}, v{T+2}, s46')
        e(f'v_lshl_add_u32 v{T+2}, v{T+3}, 4, v{T+2}')
        if q: e(f'v_subrev_u32 v{T+2}, {q*1024}, v{T+2}')
        e(f'buffer_load_dwordx4 v{T+2}, s[{R_T}:{R_T+3}], s47 offen offset:{q*1024} lds')
    e(f'v_lshrrev_b32 v{T}, 4, v{VL}')
    e(f'v_lshlrev_b32 v{T+2}, 8, v{T+1}'); e(f'v_add_u32 v{T+2}, s48, v{T+2}')
    e('s_waitcnt vmcnt(0)')
    for tp in range(4):
        e(f'v_add_u32 v{T+3}, {4*tp}, v{T}'); e(f'v_xor_b32 v{T+3}, v{T+3}, v{T+1}')
        e(f'v_lshl_add_u32 v{T+3}, v{T+3}, 4, v{T+2}')
        e(f'ds_read_b128 {vr(T+8+4*tp,4)}, v{T+3} offset:{L_X}')
    e(f'v_lshlrev_b32 v{T+4}, 4, v{VL}')
    e('s_waitcnt lgkmcnt(0)')
    e('s_mul_i32 s47, s44, 52429'); e('s_lshr_b32 s47, s47, 18'); e('s_mul_i32 s48, s47, 5'); e('s_sub_u32 s48, s44, s48')
    for tp in range(4):
        e(f's_lshl_b32 s46, s45, 3'); e(f's_add_u32 s46, s46, {48 + 2*tp}'); e('s_add_u32 s46, s46, s43')
        e('s_mul_i32 s49, s47, 88'); e('s_add_u32 s49, s49, s46'); e('s_mul_i32 s49, s49, 5'); e('s_add_u32 s49, s49, s48')
        e('s_lshl_b32 s49, s49, 10'); e(f's_add_u32 s49, s49, {WS_W2}')
        e(f'buffer_store_dwordx4 {vr(T+8+4*tp,4)}, v{T+4}, s[{R_WS}:{R_WS+3}], s49 offen {o.st_flags}')
    g.label(labE)
    g.vq = []; g.lq = []
    stamp(g, o, 6, VDIAG)

    e(f'v_and_b32 v{T}, 7, v{VL}'); e(f'v_add_u32 v{T}, 32, v{T}')
    e(f'v_cmp_gt_u32 vcc, 32, v{VL}')
    e('s_nop 1')
    e(f'v_cndmask_b32 v{T}, v{T}, v{VL}, vcc')
    e(f'v_lshlrev_b32 v{T}, 4, v{T}')
    EL = T + 8
    for mp in range(4):
        e(f's_lshl_b32 s42, s{S_W}, 2'); e(f's_add_u32 s42, s42, {1+mp}')
        e(f's_cmp_ge_u32 s{S_J}, s42')
        e(f's_cselect_b32 s{56+mp}, s50, 0')
        e(f's_cselect_b32 s43, 0, 0x7ff00000')
        e(f's_sub_u32 s42, s{S_J}, s42'); e('s_and_b32 s42, s42, 15')
        e(f's_lshl_b32 s44, s{S_C}, 4'); e('s_add_u32 s42, s42, s44'); e('s_mul_i32 s42, s42, 640'); e(f's_add_u32 s42, s42, {WS_EP}')
        e('s_add_u32 s42, s42, s43')
        e(f'v_add_u32 v{T+1+mp}, s42, v{T}')
    lab = g.newlab('LB'); lab2 = g.newlab('LBD')
    g.label(lab)
    for mp in range(4):
        e(f'buffer_load_dwordx4 {vr(EL+4*mp,4)}, v{T+1+mp}, s[{R_WS}:{R_WS+3}], 0 offen sc0 sc1')
    e('s_waitcnt vmcnt(0)')
    e('s_mov_b64 s[42:43], 0')
    for mp in range(4):
        e(f'v_cmp_ne_u32 vcc, s{56+mp}, v{EL+4*mp+1}'); e('s_or_b64 s[42:43], s[42:43], vcc')
        e(f'v_cmp_ne_u32 vcc, s{56+mp}, v{EL+4*mp+3}'); e('s_or_b64 s[42:43], s[42:43], vcc')
    e('s_cmp_eq_u64 s[42:43], 0')
    e(f's_cbranch_scc1 {lab2}')
    e('s_sleep 1')
    e(f's_branch {lab}')
    g.label(lab2)
    cfma(g, D128R, D128I, EL+12, EL+14, EL+8, EL+10, T+24, T+25)
    cfma(g, D128R, D128I, T+24, T+25, EL+4, EL+6, T+26, T+27)
    cfma(g, D128R, D128I, T+26, T+27, EL, EL+2, T+24, T+25)
    e(f'v_lshlrev_b32 v{T+5}, 3, v{VL}')
    e(f's_lshl_b32 s42, s{S_W}, 9'); e(f's_add_u32 s42, s42, {L_TQ}')
    e(f'v_add_u32 v{T+6}, s42, v{T+5}')
    g.lds(f'ds_write_b64 v{T+6}, {vr(T+24,2)}', 'q')
    g.wl0()
    e('s_barrier')
    e(f'v_add_u32 v{T+5}, {L_TQ}, v{T+5}')
    for k in range(4):
        g.lds(f'ds_read_b64 {vr(T+28+2*k,2)}, v{T+5} offset:{k*512}', 'qr')
    g.wl0()
    cfma(g, D512R, D512I, T+34, T+35, T+32, T+33, T+24, T+25)
    cfma(g, D512R, D512I, T+24, T+25, T+30, T+31, T+26, T+27)
    cfma(g, D512R, D512I, T+26, T+27, T+28, T+29, T+24, T+25)
    CR, CI, XCR, XCI = T+36, T+37, T+38, T+39
    redis(T+24, T+24, CR, XCR); redis(T+25, T+25, CI, XCI)
    cfma(g, PWR, PWI, CR, CI, PR, PI, T+40, T+41)
    cfma(g, XPWR, XPWI, XCR, XCI, XPR, XPI, T+42, T+43)
    stamp(g, o, 7, VDIAG)
    XB = T+4
    e(f'v_bfe_u32 v{T+7}, v{VL}, 3, 1')
    e(f'v_cmp_eq_u32 vcc, 1, v{T+7}')
    e(f'v_sub_f32 v{XB}, 0, v{XLI}')
    e(f'v_sub_f32 v{T+8}, 0, v{LI}')
    e(f'v_cndmask_b32 v{XB}, v{XB}, v{XLI}, vcc')
    e(f'v_cndmask_b32 v{T+44}, v{T+42}, v{T+43}, vcc')
    NLI = T+8
    hr, hi, xp = T+40, T+41, T+44
    for r in range(16):
        e(f'v_fmac_f32 v{aX+r}, v{XLR}, v{xp}')
        e(f'v_fmac_f32 v{aR+r}, v{LR}, v{hr}')
        e(f'v_fmac_f32 v{aI+r}, v{LR}, v{hi}')
        e(f'v_fmac_f32 v{aR+r}, v{NLI}, v{hi}')
        e(f'v_fmac_f32 v{aI+r}, v{LI}, v{hr}')
        e(f'v_fmac_f32_dpp v{aX+r}, v{xp}, v{XB} row_ror:8 row_mask:0xf bank_mask:0xf')
        hr, hi, xp = aR+r, aI+r, aX+r
    XA, XBb = T+9, T+10
    e(f'v_sub_f32 v{XA}, 0, v{XCFR}')
    e(f'v_cndmask_b32 v{XA}, v{XCFR}, v{XA}, vcc')
    e(f'v_sub_f32 v{XBb}, 0, v{XCFI}')
    PK = T + 12
    for p in range(8):
        for h_ in range(2):
            r = 2*p + h_
            e(f'v_mul_f32 v{T+40+h_}, v{CFR}, v{aR+r}')
            e(f'v_mul_f32 v{T+42+h_}, v{CFR}, v{aI+r}')
            e(f'v_mul_f32 v{T+44+h_}, v{XA}, v{aX+r}')
            e(f'v_fma_f32 v{T+40+h_}, -v{CFI}, v{aI+r}, v{T+40+h_}')
            e(f'v_fmac_f32 v{T+42+h_}, v{CFI}, v{aR+r}')
            e(f'v_fmac_f32_dpp v{T+44+h_}, v{aX+r}, v{XBb} row_ror:8 row_mask:0xf bank_mask:0xf')
        e(f'v_cvt_pk_bf16_f32 v{PK+p}, v{T+40}, v{T+41}')
        e(f'v_cvt_pk_bf16_f32 v{PK+8+p}, -v{T+42}, -v{T+43}')
        e(f'v_cvt_pk_bf16_f32 v{PK+16+p}, v{T+44}, v{T+45}')
    e(f's_mul_i32 s42, s{S_W}, {TH_W}'); e(f's_add_u32 s42, s42, {L_TH}')
    e(f'v_and_b32 v{T}, 31, v{VL}'); e(f'v_mul_u32_u24 v{T+1}, {TH_PITCH}, v{T}')
    e(f'v_lshrrev_b32 v{T+2}, 5, v{VL}'); e(f'v_lshl_add_u32 v{T+1}, v{T+2}, 5, v{T+1}')
    e(f'v_add_u32 v{T+1}, s42, v{T+1}')
    for cmp_ in range(2):
        for k in range(4):
            g.lds(f'ds_write_b64 v{T+1}, {vr(PK+8*cmp_+2*k,2)} offset:{cmp_*32*TH_PITCH + k*8}', 'tw')
    e(f'v_cmp_gt_u32 vcc, 16, v{T}')
    e('s_and_saveexec_b64 s[40:41], vcc')
    for k in range(4):
        g.lds(f'ds_write_b64 v{T+1}, {vr(PK+16+2*k,2)} offset:{64*TH_PITCH + k*8}', 'tw')
    e('s_mov_b64 exec, s[40:41]')
    e(f'v_bfe_u32 v{T+2}, v{VL}, 2, 2')
    e(f'v_lshrrev_b32 v{T+3}, 5, v{VL}')
    e(f'v_lshl_add_u32 v{T+4}, v{T+3}, 5, v{T+2}')
    e(f'v_lshl_add_u32 v{T+5}, v{T+3}, 3, v{T+2}')
    e(f'v_and_b32 v{T+6}, 1, v{VL}'); e(f'v_lshlrev_b32 v{T+6}, 5, v{T+6}')
    e(f'v_bfe_u32 v{T+7}, v{VL}, 4, 1'); e(f'v_lshl_add_u32 v{T+6}, v{T+7}, 4, v{T+6}')
    e(f'v_bfe_u32 v{T+7}, v{VL}, 1, 1'); e(f'v_lshl_add_u32 v{T+6}, v{T+7}, 3, v{T+6}')
    e(f'v_add_u32 v{T+6}, s42, v{T+6}')
    e(f'v_mad_u32_u24 v{T+4}, v{T+4}, {TH_PITCH if TH_PITCH <= 64 else "s43"}, v{T+6}' if TH_PITCH <= 64 else f's_movk_i32 s43, {TH_PITCH}')
    if TH_PITCH > 64:
        e(f'v_mad_u32_u24 v{T+4}, v{T+4}, s43, v{T+6}')
    e(f'v_mad_u32_u24 v{T+5}, v{T+5}, s43, v{T+6}')
    g.wl0()
    HO = T + 40
    for u in range(5):
        for rd in range(2):
            if u < 4: g.lds(f'ds_read_b64_tr_b16 {vr(HO+4*u+2*rd,2)}, v{T+4} offset:{(8*u + 4*rd)*TH_PITCH}', 'tr')
            else:     g.lds(f'ds_read_b64_tr_b16 {vr(HO+4*u+2*rd,2)}, v{T+5} offset:{(64 + 4*rd)*TH_PITCH}', 'tr')
    e(f'v_bfe_u32 v{T}, v{VL}, 4, 1'); e(f'v_mul_u32_u24 v{T}, {88*1024}, v{T}')
    e(f'v_lshl_add_u32 v{T}, v{T+3}, 10, v{T}')
    e(f'v_and_b32 v{T+1}, 15, v{VL}'); e(f'v_lshl_add_u32 v{T}, v{T+1}, 4, v{T}')
    e(f's_lshl_b32 s43, s{S_J}, 3'); e(f's_lshl_b32 s44, s{S_W}, 1'); e('s_add_u32 s43, s43, s44'); e('s_mul_i32 s43, s43, 88')
    e(f's_mul_i32 s44, s{S_C}, 5')
    g.wl0()
    for u in range(5):
        e(f's_add_u32 s45, s44, {u}'); e('s_lshr_b32 s46, s45, 2'); e('s_lshl_b32 s46, s46, 1'); e('s_add_u32 s46, s46, s43'); e('s_add_u32 s46, s46, 48')
        e('s_lshl_b32 s46, s46, 10'); e('s_and_b32 s45, s45, 3'); e('s_lshl_b32 s45, s45, 8'); e('s_add_u32 s46, s46, s45')
        g.vm(f'buffer_store_dwordx4 {vr(HO+4*u,4)}, v{T}, s[{R_WS}:{R_WS+3}], s46 offen {o.st_flags}', 'hst')
    if o.diag or o.hdiag:
        g.wv0()
        stamp(g, o, 8, VDIAG)
        e(f's_lshl_b32 s42, s2, 2'); e(f's_add_u32 s42, s42, s{S_W}'); e('s_lshl_b32 s42, s42, 6'); e(f's_add_u32 s42, s42, {WS_DIAG}')
        e(f'v_lshlrev_b32 v{T}, 2, v{VL}')
        e('s_mov_b64 exec, 0xffff')
        e(f'buffer_store_dword v{VDIAG}, v{T}, s[{R_WS}:{R_WS+3}], s42 offen')
        e('s_mov_b64 exec, -1')
    g.label('K1_END')
    e('s_endpgm')
    return g

def gen_k2(o):
    g = G(); e = g.e
    VL = 1; VAO = 2; VWO = 3; VRD = 4; VDIAG = 5; T = 8
    AFR = 64
    BFR = 128
    aB_, aA_ = 168, 188
    XV = 208
    GV = 228; DV = 232
    S_W_, S_TB, S_DB = 4, 5, 6
    R_WS2, R_X2, R_O, R_T2 = 8, 12, 16, 20
    NS = 22
    e('s_cmp_ge_u32 s2, 256')
    e('s_cbranch_scc1 K2_END')
    e('s_load_dwordx2 s[64:65], s[0:1], 0')
    e('s_load_dwordx2 s[66:67], s[0:1], 64')
    e('s_load_dwordx2 s[68:69], s[0:1], 112')
    e('s_load_dwordx2 s[70:71], s[0:1], 128')
    e(f'v_and_b32 v{VL}, 63, v0')
    e(f'v_lshrrev_b32 v{T}, 6, v0')
    if o.diag or o.hdiag: e(f'v_mov_b32 v{VDIAG}, 0')
    if o.hdiag: e('s_load_dwordx2 s[72:73], s[0:1], 120')
    e('s_and_b32 s3, s2, 7'); e('s_lshr_b32 s7, s2, 3')
    e(f'v_readfirstlane_b32 s{S_W_}, v{T}')
    e(f's_and_b32 s{S_TB}, s3, 3'); e(f's_lshl_b32 s{S_TB}, s{S_TB}, 3'); e('s_and_b32 s42, s7, 7'); e(f's_add_u32 s{S_TB}, s{S_TB}, s42')
    e(f's_lshr_b32 s{S_DB}, s3, 2'); e(f's_lshl_b32 s{S_DB}, s{S_DB}, 2'); e('s_lshr_b32 s42, s7, 3'); e(f's_add_u32 s{S_DB}, s{S_DB}, s42')
    e(f'v_lshlrev_b32 v{VAO}, 4, v{VL}')
    e(f'v_add_u32 v{VRD}, 0, v{VAO}')
    e(f's_lshl_b32 s44, s{S_TB}, 2'); e(f's_add_u32 s44, s44, s{S_W_}'); e(f's_mul_i32 s44, s44, {88*1024}')
    e(f's_mul_i32 s45, s{S_DB}, 88'); e(f's_add_u32 s45, s45, s{S_W_}'); e('s_mul_i32 s45, s45, 5120'); e(f's_add_u32 s45, s45, {WS_W2}')
    e(f's_mul_i32 s46, s{S_W_}, 5120')
    e('s_waitcnt lgkmcnt(0)')
    stamp_k2 = lambda idx: stamp(g, o, idx, VDIAG)
    stamp_k2(0)
    srd(g, R_WS2, 70, WS_SIZE)
    SLOT = 20480
    def issue(S):
        P = []
        tag = f's{S}'
        def w0():
            e(f's_add_u32 m0, s46, {(S % 4)*SLOT}')
            e(f's_add_u32 s47, s45, {S*4*5120}')
        P.append(w0)
        for t in range(4):
            P.append(lambda t=t: g.vm(f'buffer_load_dwordx4 v{VAO}, s[{R_WS2}:{R_WS2+3}], s47 offen offset:{t*1024} lds', tag))
        def w4():
            e(f's_add_u32 m0, s46, {(S % 4)*SLOT + 4096}')
            e(f's_add_u32 s47, s47, 4096')
            g.vm(f'buffer_load_dwordx4 v{VAO}, s[{R_WS2}:{R_WS2+3}], s47 offen lds', tag)
        P.append(w4)
        def a0(): e(f's_add_u32 s48, s44, {S*4096}')
        P.append(a0)
        for k in range(4):
            P.append(lambda k=k: g.vm(f'buffer_load_dwordx4 {vr(AFR + 16*(S % 4) + 4*k, 4)}, v{VAO}, s[{R_WS2}:{R_WS2+3}], s48 offen offset:{k*1024}', tag))
        return P
    for S in range(4):
        for p in issue(S): p()
    srd(g, R_X2, 64, 2048*1280); srd(g, R_T2, 66, 1280); srd(g, R_O, 68, 2048*2560)
    e(f's_lshl_b32 s42, s{S_TB}, 6'); e(f's_lshr_b32 s43, s{S_W_}, 1'); e('s_lshl_b32 s43, s43, 5'); e('s_add_u32 s42, s42, s43')
    e(f's_and_b32 s43, s{S_W_}, 1'); e('s_lshl_b32 s43, s43, 3'); e('s_add_u32 s42, s42, s43')
    e(f'v_bfe_u32 v{T}, v{VL}, 4, 1'); e(f'v_lshlrev_b32 v{T}, 4, v{T}')
    e(f'v_lshrrev_b32 v{T+1}, 5, v{VL}'); e(f'v_lshl_add_u32 v{T}, v{T+1}, 2, v{T}')
    e(f'v_add_u32 v{T}, s42, v{T}')
    VTOK = 6;
    e(f'v_mov_b32 v{VTOK}, v{T}')
    e(f'v_and_b32 v{T+1}, 15, v{VL}')
    e(f's_mul_i32 s43, s{S_DB}, 80')
    e(f'v_add_u32 v{T+1}, s43, v{T+1}')
    VD = 7
    e(f'v_mov_b32 v{VD}, v{T+1}')
    e(f'v_lshlrev_b32 v{T+2}, 2, v{T}'); e(f'v_add_u32 v{T+2}, {WS_G}, v{T+2}')
    g.vm(f'buffer_load_dwordx4 {vr(GV,4)}, v{T+2}, s[{R_WS2}:{R_WS2+3}], 0 offen', 'ep')
    e('s_movk_i32 s43, 1280')
    e(f'v_mul_lo_u32 v{T+3}, v{T}, s43'); e(f'v_lshl_add_u32 v{T+3}, v{T+1}, 1, v{T+3}')
    for r in range(4):
        for t in range(5):
            g.vm(f'buffer_load_ushort v{XV+5*r+t}, v{T+3}, s[{R_X2}:{R_X2+3}], 0 offen offset:{r*1280 + t*32}', 'ep')
    e(f'v_lshlrev_b32 v{T+4}, 1, v{T+1}')
    for t in range(5):
        g.vm(f'buffer_load_ushort v{DV+t}, v{T+4}, s[{R_T2}:{R_T2+3}], 0 offen offset:{t*32}', 'ep')
    def breads(S, k):
        fs = BFR + 20*((4*S + k) % 2)
        return [(f'b{S}_{k}_{t}', f'ds_read_b128 {vr(fs+4*t,4)}, v{VRD} offset:{(S % 4)*SLOT + k*5120 + t*1024}') for t in range(5)]
    VRD2 = 2 + 30
    e(f'v_add_u32 v{VRD2}, {2*SLOT}, v{VRD}')
    def breads(S, k):
        fs = BFR + 20*((4*S + k) % 2)
        sl = S % 4
        base = VRD if sl < 2 else VRD2
        o0 = (sl % 2)*SLOT
        return [(f'b{S}_{k}_{t}', f'ds_read_b128 {vr(fs+4*t,4)}, v{base} offset:{o0 + k*5120 + t*1024}') for t in range(5)]
    n = g.wv_n('s0')
    e(f's_waitcnt vmcnt({n})')
    e('s_barrier')
    stamp_k2(1)
    for tg, tx in breads(0, 0): g.lds(tx, tg)
    pend = []
    for S in range(NS):
        for k in range(4):
            ks = 4*S + k
            acc = aB_ if ks < 48 else aA_
            first = ks in (0, 48)
            last_k = (k == 3)
            nxt = []
            if not last_k: nxt = breads(S, k+1)
            fs = BFR + 20*(ks % 2)
            for t in range(5):
                g.wl(f'b{S}_{k}_{t}')
                d = vr(acc+4*t, 4); cc = '0' if first else d
                e(f'v_mfma_f32_16x16x32_bf16 {d}, {vr(AFR + 16*(S % 4) + 4*k, 4)}, {vr(fs+4*t,4)}, {cc}')
                if last_k and t == 1 and S + 1 < NS:
                    nv = g.wv_n(f's{S+1}')
                    g.lq = []
                    e(f's_waitcnt vmcnt({nv}) lgkmcnt(0)' if nv is not None else 's_waitcnt lgkmcnt(0)')
                    e('s_barrier')
                    nxt = breads(S+1, 0)
                    assert not pend
                    if S + 4 < NS: pend = issue(S + 4)
                if last_k:
                    if t >= 2 and nxt:
                        for _ in range(2 if t < 4 else 1):
                            if nxt:
                                tg, tx = nxt.pop(0); g.lds(tx, tg)
                else:
                    tg, tx = nxt[t]; g.lds(tx, tg)
                if pend and not (last_k and t < 2):
                    pend.pop(0)()
            if last_k:
                assert not nxt
            if k == 2:
                while pend: pend.pop(0)()
    assert not pend
    e('s_nop 7'); e('s_nop 7')
    stamp_k2(2)
    g.wall()
    OG = T + 8
    for r in range(4):
        e(f'v_sub_f32 v{OG+r}, 1.0, v{GV+r}')
        e(f'v_cvt_pk_bf16_f32 v{OG+r}, v{OG+r}, v{OG+r}')
        e(f'v_lshlrev_b32 v{OG+r}, 16, v{OG+r}')
    for t in range(5): e(f'v_lshlrev_b32 v{DV+t}, 16, v{DV+t}')
    e('s_movk_i32 s43, 2560')
    e(f'v_mul_lo_u32 v{T}, v{VTOK}, s43'); e(f'v_lshl_add_u32 v{T}, v{VD}, 2, v{T}')
    e(f'v_add_u32 v{T+1}, {2*2560}, v{T}')
    for t in range(5):
        for r in range(4):
            xv = XV + 5*r + t; b = aB_ + 4*t + r; a = aA_ + 4*t + r
            e(f'v_lshlrev_b32 v{xv}, 16, v{xv}')
            e(f'v_mul_f32 v{xv}, v{xv}, v{DV+t}')
            e(f'v_cvt_pk_bf16_f32 v{b}, v{b}, v{xv}')
            e(f'v_and_b32 v{xv}, 0xffff0000, v{b}')
            e(f'v_lshlrev_b32 v{b}, 16, v{b}')
            e(f'v_fmac_f32 v{xv}, 2.0, v{a}')
            e(f'v_mul_f32 v{b}, v{OG+r}, v{b}')
            e(f'v_cvt_pk_bf16_f32 v{b}, v{b}, v{b}')
            e(f'v_lshlrev_b32 v{b}, 16, v{b}')
            e(f'v_fmac_f32 v{b}, v{GV+r}, v{xv}')
            base = T if r < 2 else T+1
            g.vm(f'buffer_store_dword v{b}, v{base}, s[{R_O}:{R_O+3}], 0 offen offset:{(r % 2)*2560 + t*64}', 'o')
    if o.hdiag:
        g.wv0()
        stamp_k2(3)
        lab = g.newlab('HD')
        e(f's_or_b32 s42, s2, s{S_W_}'); e('s_cmp_lg_u32 s42, 0'); e(f's_cbranch_scc1 {lab}')
        srd(g, R_T2, 72, 256)
        e(f'v_lshlrev_b32 v{T}, 2, v{VL}')
        e(f's_mov_b32 s42, {WS_DIAG}')
        e(f'buffer_load_dword v{T+1}, v{T}, s[{R_WS2}:{R_WS2+3}], s42 offen sc0 sc1')
        e('s_waitcnt vmcnt(0)')
        e('s_mov_b64 exec, 0x1ff')
        e(f'buffer_store_dword v{T+1}, v{T}, s[{R_T2}:{R_T2+3}], 0 offen')
        e('s_mov_b64 exec, 0xf')
        e(f'buffer_store_dword v{VDIAG}, v{T}, s[{R_T2}:{R_T2+3}], 0 offen offset:36')
        e('s_mov_b64 exec, -1')
        g.label(lab)
    if o.diag:
        g.wv0()
        stamp_k2(3)
        e(f's_lshl_b32 s42, s2, 2'); e(f's_add_u32 s42, s42, s{S_W_}'); e('s_lshl_b32 s42, s42, 6'); e(f's_add_u32 s42, s42, {WS_DIAG + 0x10000}')
        e(f'v_lshlrev_b32 v{T}, 2, v{VL}')
        e('s_mov_b64 exec, 0xffff')
        e(f'buffer_store_dword v{VDIAG}, v{T}, s[{R_WS2}:{R_WS2+3}], s42 offen')
        e('s_mov_b64 exec, -1')
    g.label('K2_END')
    e('s_endpgm')
    return g

HEADER = open('cdna_kernels/%s.s.ref' % NAME).read().split('; Override launch geometry')[0]

def kd(name, vgpr, accum, sgpr=102):
    return f'''.p2align 6
.amdhsa_kernel {name}
  .amdhsa_next_free_vgpr {vgpr}
  .amdhsa_next_free_sgpr {sgpr}
  .amdhsa_accum_offset {accum}
  .amdhsa_group_segment_fixed_size 0
  .amdhsa_kernarg_size 136
  .amdhsa_user_sgpr_count 2
  .amdhsa_user_sgpr_kernarg_segment_ptr 1
  .amdhsa_system_sgpr_workgroup_id_x 1
.end_amdhsa_kernel
'''

def build(o):
    k1 = gen_k1(o); k2 = gen_k2(o)
    s = HEADER
    s += f'; @launch kernel=k1_kernel grid=(256,1,1) block=(256,1,1) lds={LDS1}\n'
    s += f'; @launch kernel=k2_kernel grid=(256,1,1) block=(256,1,1) lds=81920\n'
    s += '.amdgcn_target "amdgcn-amd-amdhsa--gfx950"\n.text\n'
    s += '.globl k1_kernel\n.p2align 8\n.type k1_kernel,@function\nk1_kernel:\n' + k1.text()
    s += '.globl k2_kernel\n.p2align 8\n.type k2_kernel,@function\nk2_kernel:\n' + k2.text()
    s += 'CODE_END:\n.fill 64, 4, 0xBF800000\n'
    s += '.section .rodata,"a"\n' + kd('k1_kernel', 512, 256) + kd('k2_kernel', 256, 256)
    return s

if __name__ == '__main__':
    o = Opt()
    for a in sys.argv[2:]:
        k, v = a.split('=')
        setattr(o, k, eval(v))
    open(sys.argv[1], 'w').write(build(o))
```

```python
import sys
from asmlib import G, vr, ar, sr

NAME = 'gated_mix__ssm_conv_s5__glu_gated_bilinear__prompt'
WS_A2   = 0x0
WS_W2   = 0xB00000
WS_G    = 0xE70000
WS_EP   = 0xE80000
WS_DIAG = 0xF00000
WS_SIZE = 0x1000000
L_X = 0; L_B = 49152; L_W = 79872; L_S = 129024
XS = 16384; BS = 10240; WSZ = 16384
L_TE = L_S
L_TQ = L_S + 7680
L_TH = L_S + 9728
TH_PITCH = 72
TH_W = 80 * TH_PITCH
LDS1 = 163840
LOG2E = 0x3fb8aa3b
INV2PI = 0x3e22f983

class Opt:
    hdiag = False
    diag = False
    mimic = True
    st_flags = ''
    code_bytes = 40960

def srd(g, d, ptr, nbytes):
    g.e(f's_mov_b32 s{d}, s{ptr}')
    g.e(f's_and_b32 s{d+1}, s{ptr+1}, 0xffff')
    g.e(f's_mov_b32 s{d+2}, {nbytes}')
    g.e(f's_mov_b32 s{d+3}, 0x20000')

P_X, P_LRE, P_LIM, P_BRE, P_BIM, P_CRE, P_CIM, P_LDT = 64, 66, 68, 70, 72, 74, 76, 78
P_DSK, P_BX, P_WG, P_WU, P_WD, P_GW, P_OUT, P_DBG, P_WS = 80, 82, 84, 86, 88, 90, 92, 94, 96
S_W, S_J, S_C = 4, 5, 6
R_X, R_BRE, R_BIM, R_WG, R_WU, R_WS, R_T, R_DBG = 8, 12, 16, 20, 24, 28, 32, 36

def stamp(g, o, idx, vdiag):
    if o.hdiag:
        g.wl0()
        g.e('s_memrealtime s[40:41]')
        g.e('s_memtime s[62:63]')
        g.e('s_waitcnt lgkmcnt(0)')
        g.e(f'v_writelane_b32 v{vdiag}, s40, {idx}')
        g.e(f'v_writelane_b32 v{vdiag}, s62, {idx+16}')
        return
    if not o.diag: return
    g.wl0()
    g.e('s_memtime s[40:41]')
    g.e('s_waitcnt lgkmcnt(0)')
    g.e(f'v_writelane_b32 v{vdiag}, s40, {idx}')

def cmul_sq(g, r, i, ro, io, t):
    g.e(f'v_mul_f32 v{t}, v{r}, v{r}')
    g.e(f'v_add_f32 v{io}, v{r}, v{r}')
    g.e(f'v_fma_f32 v{ro}, -v{i}, v{i}, v{t}')
    g.e(f'v_mul_f32 v{io}, v{io}, v{i}')

def cmul(g, ar_, ai, br, bi, ro, io):
    g.e(f'v_mul_f32 v{ro}, v{ar_}, v{br}')
    g.e(f'v_mul_f32 v{io}, v{ar_}, v{bi}')
    g.e(f'v_fma_f32 v{ro}, -v{ai}, v{bi}, v{ro}')
    g.e(f'v_fmac_f32 v{io}, v{ai}, v{br}')

def cfma(g, lr, li, hr, hi, ur, ui, ro, io):
    g.e(f'v_fma_f32 v{ro}, v{lr}, v{hr}, v{ur}')
    g.e(f'v_fma_f32 v{io}, v{lr}, v{hi}, v{ui}')
    g.e(f'v_fma_f32 v{ro}, -v{li}, v{hi}, v{ro}')
    g.e(f'v_fmac_f32 v{io}, v{li}, v{hr}')

def gen_k1(o):
    g = G()
    e = g.e
    VL = 1
    VXO = 2
    VBO = 6
    VWO = 10
    VW2O = 12
    VXA = 13
    VBR = 17
    VXX = 21
    VWR = 25
    VP2 = 27
    VDIAG = 29
    VNON = 30
    LR, LI, L16R, L16I, PWR, PWI, CFR, CFI = range(32, 40)
    XLR, XLI, XL16R, XL16I, XPWR, XPWI, XCFR, XCFI = range(40, 48)
    D128R, D128I, D512R, D512I = range(48, 52)
    PR, PI, XPR, XPI = range(52, 56)
    VT = 56
    aR, aI, aX = 112, 128, 144
    aG = [160, 176, 224]; aU = [192, 208, 240]
    AX = 0
    AF = [160, 188]
    APF = 216
    e('s_cmp_ge_u32 s2, 256')
    e('s_cbranch_scc1 K1_END')
    e('s_load_dwordx16 s[64:79], s[0:1], 0')
    e('s_load_dwordx16 s[80:95], s[0:1], 64')
    e('s_load_dwordx2 s[96:97], s[0:1], 128')
    if o.hdiag:
        e('s_memrealtime s[60:61]')
    e('s_getpc_b64 s[40:41]')
    g.label('K1_PC')
    e(f'v_and_b32 v{VL}, 63, v0')
    e('v_lshrrev_b32 v56, 6, v0')
    e('s_lshr_b32 s3, s2, 3')
    e('s_lshl_b32 s3, s3, 11')
    e('v_lshlrev_b32 v57, 3, v0')
    e('v_add_u32 v57, s3, v57')
    e(f'v_min_u32 v57, CODE_END-K1_PC-8, v57')
    g.vm(f'global_load_dwordx2 {ar(APF,2)}, v57, s[40:41]', 'pf')
    e(f'v_readfirstlane_b32 s{S_W}, v56')
    if o.diag or o.hdiag:
        e(f'v_mov_b32 v{VDIAG}, 0')
    e('s_and_b32 s3, s2, 7')
    e('s_lshr_b32 s7, s2, 3')
    e(f's_and_b32 s{S_J}, s3, 1'); e(f's_lshl_b32 s{S_J}, s{S_J}, 3')
    e('s_and_b32 s42, s7, 7'); e(f's_add_u32 s{S_J}, s{S_J}, s42')
    e(f's_lshr_b32 s{S_C}, s3, 1'); e(f's_lshl_b32 s{S_C}, s{S_C}, 2')
    e('s_lshr_b32 s42, s7, 3'); e(f's_add_u32 s{S_C}, s{S_C}, s42')
    T = 56
    e(f'v_lshrrev_b32 v{T}, 3, v{VL}')
    e(f'v_and_b32 v{T+1}, 7, v{VL}')
    e(f'v_lshrrev_b32 v{T+2}, 4, v{VL}')
    e(f'v_lshrrev_b32 v{T+3}, 5, v{VL}')
    e(f'v_and_b32 v{T+4}, 3, v{T}')
    e(f'v_lshl_add_u32 v{T+5}, v{T+3}, 4, v{T+4}')
    e(f's_lshl_b32 s42, s{S_J}, 7'); e(f's_lshl_b32 s43, s{S_W}, 5'); e('s_add_u32 s42, s42, s43')
    e(f'v_add_u32 v{T+5}, s42, v{T+5}')
    e('s_movk_i32 s43, 1280')
    e(f'v_mul_lo_u32 v{T+5}, v{T+5}, s43')
    e(f'v_xor_b32 v{T+6}, v{T+1}, v{T+2}')
    e(f'v_xor_b32 v{T+7}, 4, v{T+6}')
    for q in range(4):
        e(f'v_lshl_add_u32 v{VXO+q}, v{T+6+(q&1)}, 4, v{T+5}')
        if q: e(f'v_add_u32 v{VXO+q}, {q*4096}, v{VXO+q}')
    e(f's_mul_i32 s42, s{S_W}, 10')
    e(f'v_add_u32 v{T+8}, s42, v{T}')
    e(f's_mul_i32 s44, s{S_C}, 40')
    for b in range(2):
        if b: e(f'v_add_u32 v{T+8}, 8, v{T+8}')
        e(f'v_bfe_u32 v{T+9}, v{T+8}, 1, 3')
        e(f'v_xor_b32 v{T+9}, v{T+9}, v{T+1}')
        e(f'v_add_u32 v{T+10}, s44, v{T+8}')
        e(f'v_mul_lo_u32 v{T+10}, v{T+10}, s43')
        if b: e(f'v_subrev_u32 v{T+10}, 1024, v{T+10}')
        e(f'v_lshl_add_u32 v{VBO+b}, v{T+9}, 4, v{T+10}')
        e(f'v_xor_b32 v{T+9}, 4, v{T+9}')
        e(f'v_lshl_add_u32 v{VBO+2+b}, v{T+9}, 4, v{T+10}')
    e(f's_lshr_b32 s45, s{S_C}, 1'); e('s_mul_i32 s45, s45, 384')
    e(f's_and_b32 s46, s{S_C}, 1')
    e('s_lshl_b32 s47, s46, 8'); e('s_add_u32 s47, s47, s45')
    e('s_lshl_b32 s48, s46, 6'); e('s_add_u32 s48, s48, s45'); e('s_add_u32 s48, s48, 128')
    e(f's_lshl_b32 s42, s{S_W}, 4')
    e(f'v_add_u32 v{T+8}, s42, v{T}')
    e('s_movk_i32 s49, 3072')
    e(f'v_mul_lo_u32 v{T+8}, v{T+8}, s49')
    e(f'v_and_b32 v{T+9}, 1, v{T+2}')
    e(f'v_lshlrev_b32 v{T+9}, 2, v{T+9}')
    e(f'v_xor_b32 v{T+9}, v{T+9}, v{T+1}')
    e(f'v_lshl_add_u32 v{T+8}, v{T+9}, 4, v{T+8}')
    e(f'v_add_u32 v{VWO}, s47, v{T+8}')
    e(f'v_add_u32 v{VWO+1}, {8*3072-1024}, v{VWO}')
    e(f'v_lshrrev_b32 v{T+8}, 2, v{VL}')
    e(f'v_add_u32 v{T+8}, s42, v{T+8}')
    e(f'v_mul_lo_u32 v{T+8}, v{T+8}, s49')
    e(f'v_and_b32 v{T+9}, 3, v{VL}')
    e(f'v_lshl_add_u32 v{T+8}, v{T+9}, 4, v{T+8}')
    e(f'v_add_u32 v{VW2O}, s48, v{T+8}')
    e('s_waitcnt lgkmcnt(0)')
    stamp(g, o, 0, VDIAG)
    if o.hdiag: e(f'v_writelane_b32 v{VDIAG}, s60, 0')
    srd(g, R_X, P_X, 2048*1280)
    srd(g, R_BRE, P_BRE, 640*1280)
    srd(g, R_BIM, P_BIM, 640*1280)
    srd(g, R_WG, P_WG, 640*3072)
    srd(g, R_WU, P_WU, 640*3072)
    GX, GW = 112, 124
    srd(g, R_T, P_GW, 1280)
    e(f'v_and_b32 v{T+8}, 31, v{VL}')
    e(f's_lshl_b32 s42, s{S_J}, 7'); e(f's_lshl_b32 s50, s{S_C}, 3'); e('s_add_u32 s42, s42, s50')
    e(f's_lshl_b32 s50, s{S_W}, 1'); e('s_add_u32 s42, s42, s50')
    e(f'v_add_u32 v{T+9}, s42, v{T+3}')
    e(f'v_mov_b32 v{T+20}, v{T+9}')
    e(f'v_mul_lo_u32 v{T+9}, v{T+9}, s43')
    e(f'v_lshl_add_u32 v{T+9}, v{T+8}, 4, v{T+9}')
    e(f'v_lshlrev_b32 v{T+10}, 4, v{T+8}')
    e(f'v_cmp_gt_u32 vcc, 16, v{T+8}')
    e(f'v_mov_b32 v{T+11}, 0x7fff0000')
    e(f'v_cndmask_b32 v{T+11}, v{T+11}, v{T+9}, vcc')
    g.vm(f'buffer_load_dwordx4 {vr(GX,4)}, v{T+9}, s[{R_X}:{R_X+3}], 0 offen', 'gate')
    g.vm(f'buffer_load_dwordx4 {vr(GX+4,4)}, v{T+9}, s[{R_X}:{R_X+3}], 0 offen offset:512', 'gate')
    g.vm(f'buffer_load_dwordx4 {vr(GX+8,4)}, v{T+11}, s[{R_X}:{R_X+3}], 0 offen offset:1024', 'gate')
    g.vm(f'buffer_load_dwordx4 {vr(GW,4)}, v{T+10}, s[{R_T}:{R_T+3}], 0 offen', 'gate')
    g.vm(f'buffer_load_dwordx4 {vr(GW+4,4)}, v{T+10}, s[{R_T}:{R_T+3}], 0 offen offset:512', 'gate')
    g.vm(f'buffer_load_dwordx4 {vr(GW+8,4)}, v{T+10}, s[{R_T}:{R_T+3}], 0 offen offset:1024', 'gate')
    e(f'v_add_u32 v{T+12}, 32, v{T+1}')
    e(f'v_cmp_gt_u32 vcc, 32, v{VL}')
    e(f'v_cndmask_b32 v{T+12}, v{T+12}, v{VL}, vcc')
    e(f'v_add_u32 v{T+13}, s44, v{T+12}')
    e(f'v_lshlrev_b32 v{T+13}, 1, v{T+13}')
    PL = 140
    for k, p in enumerate((P_LRE, P_LIM, P_LDT)):
        srd(g, R_T, p, 1280)
        g.vm(f'buffer_load_ushort v{PL+k}, v{T+13}, s[{R_T}:{R_T+3}], 0 offen', 'par')
    srd(g, R_WS, P_WS, WS_SIZE)
    srd(g, R_DBG, P_DBG, 256)

    def dma_stage(s):
        slot = s % 3
        P = []
        tag = f'st{s}'
        if s < 10:
            def px():
                e(f's_lshl_b32 s42, s{S_W}, 12'); e(f's_add_u32 m0, s42, {L_X + slot*XS}')
                e(f's_movk_i32 s43, {s*128}')
            P.append(px)
            for q in range(4):
                P.append(lambda q=q: g.vm(f'buffer_load_dwordx4 v{VXO+q}, s[{R_X}:{R_X+3}], s43 offen offset:{q*1024} lds', tag))
            def pb(m):
                e(f's_mul_i32 s42, s{S_W}, 1280'); e(f's_add_u32 m0, s42, {L_B + slot*BS + m*5120}'); e('s_nop 0')
            P.append(lambda: pb(0))
            P.append(lambda: g.vm(f'buffer_load_dwordx4 v{VBO}, s[{R_BRE}:{R_BRE+3}], s43 offen lds', tag))
            def pbb(m):
                e('s_mov_b64 exec, 0xffff')
                r = R_BRE if m == 0 else R_BIM
                g.vm(f'buffer_load_dwordx4 v{VBO+2*m+1}, s[{r}:{r+3}], s43 offen offset:1024 lds', tag)
                e('s_mov_b64 exec, -1')
            P.append(lambda: pbb(0))
            P.append(lambda: pb(1))
            P.append(lambda: g.vm(f'buffer_load_dwordx4 v{VBO+2}, s[{R_BIM}:{R_BIM+3}], s43 offen lds', tag))
            P.append(lambda: pbb(1))
            def pw(m):
                e(f's_lshl_b32 s42, s{S_W}, 11'); e(f's_add_u32 m0, s42, {L_W + slot*WSZ + m*8192}')
                e(f's_mov_b32 s45, {s*64*3072}')
            for m in range(2):
                r = R_WG if m == 0 else R_WU
                P.append(lambda m=m: pw(m))
                for q in range(2):
                    P.append(lambda q=q, r=r: g.vm(f'buffer_load_dwordx4 v{VWO+q}, s[{r}:{r+3}], s45 offen offset:{q*1024} lds', tag))
        else:
            for sub in range(5):
                ss = (s - 10) * 5 + sub
                base = p2_base(ss)
                for m in range(2):
                    r = R_WG if m == 0 else R_WU
                    def pp(base=base, m=m, ss=ss, r=r):
                        e(f's_lshl_b32 s42, s{S_W}, 10'); e(f's_add_u32 m0, s42, {base + m*4096}')
                        e(f's_mov_b32 s45, {ss*64*3072}')
                        g.vm(f'buffer_load_dwordx4 v{VW2O}, s[{r}:{r+3}], s45 offen lds', tag)
                    P.append(pp)
        return P
    def p2_base(ss):
        slot = (10 + ss // 5) % 3
        sub = ss % 5
        if sub < 2: return L_X + slot*XS + sub*8192
        if sub == 2: return L_B + slot*BS
        return L_W + slot*WSZ + (sub-3)*8192
    for s in range(3):
        for p in dma_stage(s): p()

    e(f'v_and_b32 v{T+8}, 31, v{VL}')
    e(f'v_bfe_u32 v{T+9}, v{VL}, 1, 3')
    e(f'v_xor_b32 v{T+9}, v{T+9}, v{T+3}')
    e(f'v_lshlrev_b32 v{T+10}, 7, v{T+8}')
    e(f's_lshl_b32 s42, s{S_W}, 12')
    for kk in range(4):
        e(f'v_xor_b32 v{T+11}, {2*kk}, v{T+9}')
        e(f'v_lshl_add_u32 v{T+11}, v{T+11}, 4, v{T+10}')
        e(f'v_add_u32 v{VXA+kk}, s42, v{T+11}')
        e(f'v_add_u32 v{VBR+kk}, {L_B}, v{T+11}')
    e(f'v_bfe_u32 v{T+11}, v{VL}, 3, 1')
    e(f'v_lshrrev_b32 v{T+12}, 1, v{T+1}')
    e(f'v_lshl_add_u32 v{T+12}, v{T+11}, 2, v{T+12}')
    e(f'v_xor_b32 v{T+12}, v{T+12}, v{T+3}')
    e(f'v_mul_u32_u24 v{T+13}, 5120, v{T+11}')
    e(f'v_lshl_add_u32 v{T+13}, v{T+1}, 7, v{T+13}')
    e(f'v_add_u32 v{T+13}, {L_B + 32*128}, v{T+13}')
    for kk in range(4):
        e(f'v_xor_b32 v{T+14}, {2*kk}, v{T+12}')
        e(f'v_lshl_add_u32 v{VXX+kk}, v{T+14}, 4, v{T+13}')
    e(f'v_bfe_u32 v{T+11}, v{VL}, 2, 2')
    e(f'v_lshl_add_u32 v{T+12}, v{T+3}, 3, v{T+11}')
    e(f'v_and_b32 v{T+13}, 1, v{T+2}')
    e(f'v_bfe_u32 v{T+14}, v{VL}, 1, 1')
    e(f'v_lshl_add_u32 v{T+14}, v{T+13}, 1, v{T+14}')
    e(f'v_bfe_u32 v{T+15}, v{VL}, 3, 1')
    e(f'v_lshl_add_u32 v{T+14}, v{T+15}, 2, v{T+14}')
    e(f'v_and_b32 v{T+15}, 1, v{VL}')
    e(f'v_lshlrev_b32 v{T+15}, 3, v{T+15}')
    e(f'v_lshl_add_u32 v{T+15}, v{T+12}, 7, v{T+15}')
    e(f'v_add_u32 v{T+15}, {L_W}, v{T+15}')
    e(f'v_lshl_add_u32 v{VWR}, v{T+14}, 4, v{T+15}')
    e(f'v_xor_b32 v{T+14}, 4, v{T+14}')
    e(f'v_lshl_add_u32 v{VWR+1}, v{T+14}, 4, v{T+15}')
    e(f'v_and_b32 v{T+14}, 3, v{VL}')
    e(f'v_lshlrev_b32 v{T+14}, 3, v{T+14}')
    e(f'v_lshl_add_u32 v{T+14}, v{T+13}, 5, v{T+14}')
    e(f'v_lshl_add_u32 v{VP2}, v{T+12}, 6, v{T+14}')
    e(f'v_add_u32 v{VP2+1}, 49152, v{VP2}')

    e(f'v_lshlrev_b32 v{T+11}, 4, v0')
    for k in range(4): e(f'v_mov_b32 v{T+12+k}, 0')
    g.lds(f'ds_write_b128 v{T+11}, {vr(T+12,4)} offset:{L_TE % 65536}' if False else f'v_add_u32 v{T+11}, {L_TE}, v{T+11}', None)
    g.lq.pop()
    g.lds(f'ds_write_b128 v{T+11}, {vr(T+12,4)}', 'zero')

    e(f'v_add_u32 v0, 98304, v{VP2}')
    g.wv('gate')
    PL0 = 150
    e('s_mov_b32 s42, 0x3f803f80')
    for d in range(12):
        e(f'v_and_b32 v{T+12}, 0xffff, v{GW+d}')
        e(f'v_and_b32 v{T+13}, 0xffff0000, v{GW+d}')
        e(f'v_dot2_f32_bf16 v{PL0+2*d}, v{GX+d}, v{T+12}, 0')
        e(f'v_dot2_f32_bf16 v{PL0+2*d+1}, v{GX+d}, v{T+13}, 0')
    e('s_nop 2')
    for d in range(12):
        e(f'v_cvt_pk_bf16_f32 v{PL0+d}, v{PL0+2*d}, v{PL0+2*d+1}')
    e(f'v_mov_b32 v{T+12}, 0')
    for d in range(12):
        e(f'v_dot2_f32_bf16 v{T+12}, v{PL0+d}, s42, v{T+12}')
    e('s_nop 2')
    for sh in (1, 2, 4, 8):
        e(f'v_add_f32_dpp v{T+12}, v{T+12}, v{T+12} row_ror:{sh} row_mask:0xf bank_mask:0xf')
        e('s_nop 1')
    g.lds(f'ds_swizzle_b32 v{T+13}, v{T+12} offset:0x401f', 'sw')
    g.wl('sw')
    e(f'v_add_f32 v{T+12}, v{T+12}, v{T+13}')
    e(f'v_cvt_pk_bf16_f32 v{T+12}, v{T+12}, v{T+12}')
    e(f'v_lshlrev_b32 v{T+12}, 16, v{T+12}')
    e(f'v_mul_f32 v{T+12}, 0xbfb8aa3b, v{T+12}')
    e(f'v_exp_f32 v{T+12}, v{T+12}')
    e('s_nop 0')
    e(f'v_add_f32 v{T+12}, 1.0, v{T+12}')
    e(f'v_rcp_f32 v{T+12}, v{T+12}')
    e('s_nop 0')
    e(f'v_cvt_pk_bf16_f32 v{T+12}, v{T+12}, v{T+12}')
    e(f'v_lshlrev_b32 v{T+12}, 16, v{T+12}')
    e(f'v_lshlrev_b32 v{T+13}, 2, v{T+20}')
    e(f'v_add_u32 v{T+13}, {WS_G}, v{T+13}')
    e(f'v_and_b32 v{T+14}, 31, v{VL}')
    e(f'v_cmp_eq_u32 vcc, 0, v{T+14}')
    e('s_and_saveexec_b64 s[40:41], vcc')
    g.vm(f'buffer_store_dword v{T+12}, v{T+13}, s[{R_WS}:{R_WS+3}], 0 offen {o.st_flags}', 'gst')
    e('s_mov_b64 exec, s[40:41]')

    lab = g.newlab('NN')
    e(f's_or_b32 s42, s2, s{S_W}')
    e('s_cmp_lg_u32 s42, 0')
    e(f's_cbranch_scc1 {lab}')
    g.wl0()
    e('s_memrealtime s[40:41]')
    e('s_waitcnt lgkmcnt(0)')
    e('s_or_b32 s40, s40, 1')
    e(f'v_mov_b32 v{T+12}, s40')
    e(f'v_mov_b32 v{T+13}, 0')
    e('s_mov_b64 exec, 1')
    e(f'buffer_store_dword v{T+12}, v{T+13}, s[{R_DBG}:{R_DBG+3}], 0 offen sc0 sc1')
    e('s_mov_b64 exec, -1')
    e('s_waitcnt vmcnt(0)')
    g.label(lab)

    g.wv('par')
    A_, B_, DT = T+8, T+9, T+10
    e(f'v_lshlrev_b32 v{PL}, 16, v{PL}')
    e(f'v_lshlrev_b32 v{PL+1}, 16, v{PL+1}')
    e(f'v_lshlrev_b32 v{PL+2}, 16, v{PL+2}')
    e(f'v_mul_f32 v{DT}, {LOG2E}, v{PL+2}')
    e(f'v_exp_f32 v{DT}, v{DT}')
    e('s_nop 0')
    e(f'v_cvt_pk_bf16_f32 v{DT}, v{DT}, v{DT}')
    e(f'v_lshlrev_b32 v{DT}, 16, v{DT}')
    e(f'v_mul_f32 v{A_}, v{DT}, v{PL}')
    e(f'v_mul_f32 v{B_}, v{DT}, v{PL+1}')
    e(f'v_mul_f32 v{A_}, {LOG2E}, v{A_}')
    e(f'v_mul_f32 v{B_}, {INV2PI}, v{B_}')
    e(f'v_exp_f32 v{A_}, v{A_}')
    e(f'v_fract_f32 v{B_}, v{B_}')
    e('s_nop 0')
    Q = 150
    e(f'v_cos_f32 v{Q}, v{B_}')
    e(f'v_sin_f32 v{Q+1}, v{B_}')
    e('s_nop 0')
    e(f'v_mul_f32 v{Q}, v{Q}, v{A_}')
    e(f'v_mul_f32 v{Q+1}, v{Q+1}, v{A_}')
    e(f'v_add_f32 v{Q+2}, -1.0, v{Q}')
    e(f'v_mul_f32 v{Q+3}, v{PL}, v{PL}')
    e(f'v_fmac_f32 v{Q+3}, v{PL+1}, v{PL+1}')
    e(f'v_rcp_f32 v{Q+3}, v{Q+3}')
    e(f'v_mul_f32 v{Q+4}, v{Q+2}, v{PL}')
    e(f'v_fmac_f32 v{Q+4}, v{Q+1}, v{PL+1}')
    e(f'v_mul_f32 v{Q+5}, v{Q+1}, v{PL}')
    e(f'v_fma_f32 v{Q+5}, -v{Q+2}, v{PL+1}, v{Q+5}')
    e(f'v_mul_f32 v{Q+4}, v{Q+4}, v{Q+3}')
    e(f'v_mul_f32 v{Q+5}, v{Q+5}, v{Q+3}')
    pr, pi_ = Q, Q+1
    pw = {}
    for k, n in enumerate((2, 4, 8, 16, 32, 64, 128, 256, 512)):
        ro, io = Q+10+2*k, Q+11+2*k
        cmul_sq(g, pr, pi_, ro, io, Q+6)
        pw[n] = (ro, io); pr, pi_ = ro, io
    e(f'v_mov_b32 v{D128R}, v{pw[128][0]}'); e(f'v_mov_b32 v{D128I}, v{pw[128][1]}')
    e(f'v_mov_b32 v{D512R}, v{pw[512][0]}'); e(f'v_mov_b32 v{D512I}, v{pw[512][1]}')
    Z = Q + 30
    e(f's_and_b32 s42, s{S_W}, 1'); e('s_cmp_lg_u32 s42, 0'); e('s_cselect_b64 s[40:41], -1, 0')
    e(f'v_mov_b32 v{Z}, 1.0'); e(f'v_mov_b32 v{Z+1}, 0')
    e(f'v_cndmask_b32 v{Z}, v{Z}, v{pw[32][0]}, s[40:41]'); e(f'v_cndmask_b32 v{Z+1}, v{Z+1}, v{pw[32][1]}, s[40:41]')
    e(f's_and_b32 s42, s{S_W}, 2'); e('s_cmp_lg_u32 s42, 0'); e('s_cselect_b64 s[40:41], -1, 0')
    e(f'v_mov_b32 v{Z+2}, 1.0'); e(f'v_mov_b32 v{Z+3}, 0')
    e(f'v_cndmask_b32 v{Z+2}, v{Z+2}, v{pw[64][0]}, s[40:41]'); e(f'v_cndmask_b32 v{Z+3}, v{Z+3}, v{pw[64][1]}, s[40:41]')
    cmul(g, Z, Z+1, Z+2, Z+3, Z+4, Z+5)
    cmul(g, Z+4, Z+5, pw[16][0], pw[16][1], Z+6, Z+7)
    def redis(srcA, srcB, dRI, dX):
        e(f'v_mov_b32 v{dRI}, v{srcA}'); e(f'v_mov_b32 v{dX}, v{srcB}')
        e('s_nop 1')
        e(f'v_permlane32_swap_b32 v{dRI}, v{dX}')
    redis(Q, Q, LR, XLR); redis(Q+1, Q+1, LI, XLI)
    redis(pw[16][0], pw[16][0], L16R, XL16R); redis(pw[16][1], pw[16][1], L16I, XL16I)
    redis(Z+4, Z+6, PWR, XPWR); redis(Z+5, Z+7, PWI, XPWI)
    redis(Q+4, Q+4, CFR, XCFR); redis(Q+5, Q+5, CFI, XCFI)

    tiles = ['R', 'I', 'X', 'G0', 'G1', 'U0', 'U1']
    accs = {'R': aR, 'I': aI, 'X': aX, 'G0': aG[0], 'G1': aG[1], 'U0': aU[0], 'U1': aU[1]}
    def reads(K):
        s, kk = divmod(K, 4); slot = s % 3; fs = AF[K % 2]
        R = []
        R.append((f'x{K}', f'ds_read_b128 {ar(AX+4*K,4)}, v{VXA+kk} offset:{slot*XS}'))
        R.append((f'R{K}', f'ds_read_b128 {ar(fs,4)}, v{VBR+kk} offset:{slot*BS}'))
        R.append((f'I{K}', f'ds_read_b128 {ar(fs+4,4)}, v{VBR+(kk^2)} offset:{slot*BS+5120}'))
        R.append((f'X{K}', f'ds_read_b128 {ar(fs+8,4)}, v{VXX+kk} offset:{slot*BS}'))
        for m in range(2):
            for ft in range(2):
                t = ('G', 'U')[m] + str(ft)
                fr = fs + 12 + 4*(2*m+ft)
                for rd in range(2):
                    R.append((f'{t}{K}', f'ds_read_b64_tr_b16 {ar(fr+2*rd,2)}, v{VWR+ft} offset:{slot*WSZ + m*8192 + kk*2048 + rd*512}'))
        return R
    def mfma(t, K):
        fs = AF[K % 2]; x = ar(AX+4*K, 4); d = vr(accs[t], 16); cc = d if K else '0'
        idx = tiles.index(t); f = ar(fs + 4*idx, 4)
        if idx < 3: e(f'v_mfma_f32_32x32x16_bf16 {d}, {x}, {f}, {cc}')
        else:       e(f'v_mfma_f32_32x32x16_bf16 {d}, {f}, {x}, {cc}')
    g.wl0()
    n = g.wv_n('st0')
    e(f's_waitcnt vmcnt({n})')
    e('s_barrier')
    stamp(g, o, 1, VDIAG)
    for tg, tx in reads(0): g.lds(tx, tg)
    pend_dma = []
    for K in range(40):
        s, kk = divmod(K, 4)
        nxt = reads(K+1) if K < 39 else []
        gaps = [[] for _ in range(7)]
        if kk < 3:
            for i_, rd in enumerate(nxt): gaps[i_ // 2].append(rd)
        else:
            for i_, rd in enumerate(nxt): gaps[3 + i_ // 3].append(rd)
        for ti, t in enumerate(tiles):
            need = [f'{t}{K}'] + ([f'x{K}'] if ti == 0 else [])
            g.wl(need)
            mfma(t, K)
            if kk == 3 and ti == 2:
                nv = g.wv_n(f'st{s+1}')
                g.lq = []
                e(f's_waitcnt vmcnt({nv}) lgkmcnt(0)' if nv is not None else 's_waitcnt lgkmcnt(0)')
                e('s_barrier')
                if s + 3 <= 11: pend_dma = dma_stage(s + 3)
                if s == 5:
                    g.vm(f'buffer_load_dword v{VNON}, off, s[{R_DBG}:{R_DBG+3}], 0 sc0 sc1', 'non')
            for tg, tx in gaps[ti]: g.lds(tx, tg)
            if pend_dma and not (kk == 3 and ti < 3):
                k_ = 1 if kk != 3 else 0
                if kk < 3 and ti in (0, 2, 4, 5, 6): k_ = 2 if ti == 6 else 1
                for _ in range(k_):
                    if pend_dma: pend_dma.pop(0)()
        if kk == 2:
            while pend_dma: pend_dma.pop(0)()
    assert not pend_dma
    e('s_nop 7'); e('s_nop 7')
    stamp(g, o, 2, VDIAG)

    T = VT
    er, ei, tr_, ti_ = T, T+1, T+2, T+3
    e(f'v_mov_b32 v{er}, v{aR}'); e(f'v_mov_b32 v{ei}, v{aI}')
    XB = T+4; xo, xt = T+5, T+6
    e(f'v_bfe_u32 v{T+7}, v{VL}, 3, 1')
    e(f'v_cmp_eq_u32 vcc, 1, v{T+7}')
    e(f'v_sub_f32 v{XB}, 0, v{XLI}')
    e(f'v_mov_b32 v{xo}, v{aX}')
    e(f'v_cndmask_b32 v{XB}, v{XB}, v{XLI}, vcc')
    cur = (er, ei); alt = (tr_, ti_); xc, xa = xo, xt
    for r in range(1, 16):
        e(f'v_fma_f32 v{xa}, v{XLR}, v{xc}, v{aX+r}')
        cfma(g, LR, LI, cur[0], cur[1], aR+r, aI+r, alt[0], alt[1])
        e(f'v_fmac_f32_dpp v{xa}, v{xc}, v{XB} row_ror:8 row_mask:0xf bank_mask:0xf')
        cur, alt = alt, cur; xc, xa = xa, xc
    e(f'v_lshrrev_b32 v{T+8}, 5, v{VL}')
    e(f's_lshl_b32 s42, s{S_W}, 1'); e('s_add_u32 s42, s42, 7')
    e(f'v_add_u32 v{T+8}, s42, v{T+8}')
    e(f'v_lshlrev_b32 v{T+8}, 9, v{T+8}')
    e(f'v_add_u32 v{T+8}, {L_TE}, v{T+8}')
    e(f'v_and_b32 v{T+9}, 31, v{VL}')
    e(f'v_lshl_add_u32 v{T+10}, v{T+9}, 3, v{T+8}')
    g.lds(f'ds_write_b64 v{T+10}, {vr(cur[0],2)}', 'ew')
    e(f'v_and_b32 v{T+11}, 7, v{VL}')
    e(f'v_lshl_add_u32 v{T+11}, v{T+11}, 3, v{T+8}')
    e(f'v_add_u32 v{T+11}, 256, v{T+11}')
    e(f'v_lshl_add_u32 v{T+12}, v{T+7}, 2, v{T+11}')
    e(f'v_cmp_gt_u32 vcc, 16, v{T+9}')
    e('s_and_saveexec_b64 s[40:41], vcc')
    g.lds(f'ds_write_b32 v{T+12}, v{xc}', 'ew')
    e('s_mov_b64 exec, s[40:41]')
    g.wl0()
    e('s_barrier')
    RD = T+16
    for m in range(8):
        g.lds(f'ds_read_b64 {vr(RD+2*m,2)}, v{T+10} offset:0' .replace('offset:0', '') if m == 0 else f'ds_read_b64 {vr(RD+2*m,2)}, v{T+13} offset:{(7-m)*512}', f'er{m}') if m == 0 else None
        if m == 0:
            e(f'v_subrev_u32 v{T+13}, {7*512}, v{T+10}')
            e(f'v_subrev_u32 v{T+14}, {7*512}, v{T+11}')
        else:
            g.lds(f'ds_read_b64 {vr(RD+2*m,2)}, v{T+13} offset:{(7-m)*512}', f'er{m}')
    RX = T+32
    g.lds(f'ds_read_b64 {vr(RX,2)}, v{T+11}', 'ex0')
    for m in range(1, 8):
        g.lds(f'ds_read_b64 {vr(RX+2*m,2)}, v{T+14} offset:{(7-m)*512}', f'ex{m}')
        if len(g.lq) >= 14: g.wl('er1')
    g.wl0()
    def horner(RDb, lr, li, pr_, pi2):
        cur = (RDb+14, RDb+15); alt = (T+48, T+49); alt2 = (T+50, T+51)
        for m in range(6, 0, -1):
            dst = (pr_, pi2) if m == 1 else (alt if cur != alt else alt2)
            cfma(g, lr, li, cur[0], cur[1], RDb+2*m, RDb+2*m+1, dst[0], dst[1])
            cur = dst
    horner(RD, L16R, L16I, PR, PI)
    horner(RX, XL16R, XL16I, XPR, XPI)
    g.wv('non')
    lab = g.newlab('NP'); lab2 = g.newlab('NPD')
    g.label(lab)
    e(f'v_readfirstlane_b32 s50, v{VNON}')
    e('s_nop 3')
    e('s_cmp_lg_u32 s50, 0')
    e(f's_cbranch_scc1 {lab2}')
    e('s_sleep 2')
    e(f'buffer_load_dword v{VNON}, off, s[{R_DBG}:{R_DBG+3}], 0 sc0 sc1')
    e('s_waitcnt vmcnt(0)')
    e(f's_branch {lab}')
    g.label(lab2)
    lab = g.newlab('PUB')
    e(f's_cmp_lg_u32 s{S_W}, 3')
    e(f's_cbranch_scc1 {lab}')
    cfma(g, L16R, L16I, PR, PI, RD, RD+1, T+48, T+50)
    cfma(g, XL16R, XL16I, XPR, XPI, RX, RX+1, T+52, T+54)
    e(f'v_mov_b32 v{T+49}, s50'); e(f'v_mov_b32 v{T+51}, s50')
    e(f'v_mov_b32 v{T+53}, s50'); e(f'v_mov_b32 v{T+55}, s50')
    e(f's_lshl_b32 s42, s{S_C}, 4'); e(f's_add_u32 s42, s42, s{S_J}'); e('s_mul_i32 s42, s42, 640'); e(f's_add_u32 s42, s42, {WS_EP}')
    e(f'v_lshlrev_b32 v{T+12}, 4, v{T+9}')
    e('s_mov_b32 exec_lo, 0'); e('s_mov_b32 exec_hi, -1')
    e(f'buffer_store_dwordx4 {vr(T+48,4)}, v{T+12}, s[{R_WS}:{R_WS+3}], s42 offen sc0 sc1')
    e('s_mov_b32 exec_hi, 0xff')
    e(f'buffer_store_dwordx4 {vr(T+52,4)}, v{T+12}, s[{R_WS}:{R_WS+3}], s42 offen offset:512 sc0 sc1')
    e('s_mov_b64 exec, -1')
    e('s_waitcnt vmcnt(0)')
    g.label(lab)
    g.vq = ['st11'] * 10 if True else g.vq
    stamp(g, o, 3, VDIAG)

    def glu_epi(q):
        Gr, Ur = aG[q], aU[q]
        H = T + 16
        if o.mimic:
            for p in range(8):
                e(f'v_cvt_pk_bf16_f32 v{T}, v{Gr+2*p}, v{Gr+2*p+1}')
                e(f'v_cvt_pk_bf16_f32 v{T+1}, v{Ur+2*p}, v{Ur+2*p+1}')
                e(f'v_lshlrev_b32 v{T+2}, 16, v{T}'); e(f'v_and_b32 v{T+3}, 0xffff0000, v{T}')
                e(f'v_lshlrev_b32 v{T+4}, 16, v{T+1}'); e(f'v_and_b32 v{T+5}, 0xffff0000, v{T+1}')
                e(f'v_mul_f32 v{T+2}, v{T+2}, v{T+4}'); e(f'v_mul_f32 v{T+3}, v{T+3}, v{T+5}')
                e(f'v_cvt_pk_bf16_f32 v{H+p}, v{T+2}, v{T+3}')
        else:
            for p in range(8):
                e(f'v_mul_f32 v{T+2}, v{Gr+2*p}, v{Ur+2*p}'); e(f'v_mul_f32 v{T+3}, v{Gr+2*p+1}, v{Ur+2*p+1}')
                e(f'v_cvt_pk_bf16_f32 v{H+p}, v{T+2}, v{T+3}')
        e(f's_lshr_b32 s42, s{S_C}, 1'); e('s_mul_i32 s42, s42, 6')
        e(f's_and_b32 s43, s{S_C}, 1'); e('s_cmp_lg_u32 s43, 0')
        e(f's_cselect_b32 s43, {(4,5,3)[q]}, {q}')
        e('s_add_u32 s42, s42, s43')
        e(f's_lshl_b32 s43, s{S_J}, 3'); e(f's_lshl_b32 s44, s{S_W}, 1'); e('s_add_u32 s43, s43, s44'); e('s_mul_i32 s43, s43, 88')
        e('s_add_u32 s42, s42, s43'); e('s_lshl_b32 s42, s42, 10')
        g.vm(f'buffer_store_dwordx4 {vr(H,4)}, v{VHO}, s[{R_WS}:{R_WS+3}], s42 offen {o.st_flags}', 'hst')
        g.vm(f'buffer_store_dwordx4 {vr(H+4,4)}, v{VHO}, s[{R_WS}:{R_WS+3}], s42 offen offset:512 {o.st_flags}', 'hst')
        e('s_nop 1')
    VHO = 31
    e(f'v_bfe_u32 v{T}, v{VL}, 4, 1'); e(f'v_mul_u32_u24 v{T}, {88*1024}, v{T}')
    e(f'v_lshrrev_b32 v{T+1}, 5, v{VL}'); e(f'v_lshl_add_u32 v{T}, v{T+1}, 8, v{T}')
    e(f'v_and_b32 v{T+1}, 15, v{VL}'); e(f'v_lshl_add_u32 v{VHO}, v{T+1}, 4, v{T}')
    glu_epi(0); glu_epi(1)
    stamp(g, o, 4, VDIAG)

    def reads2(K):
        ss, kk = divmod(K, 4); base = p2_base(ss); fs = AF[K % 2]
        b = base // 49152
        off = base - b*49152
        breg = (VP2, VP2+1, 0)[b]
        R = []
        for m in range(2):
            for rd in range(2):
                o_ = off + m*4096 + kk*1024 + rd*256
                assert o_ < 65536
                R.append((f'p{m}_{K}', f'ds_read_b64_tr_b16 {ar(fs+4*m+2*rd,2)}, v{breg} offset:{o_}'))
        return R
    for tg, tx in reads2(0): g.lds(tx, tg)
    for K in range(40):
        fs = AF[K % 2]; x = ar(AX+4*K, 4)
        if K == 19:
            pass
        nxt = reads2(K+1) if K < 39 else []
        for m in range(2):
            g.wl(f'p{m}_{K}')
            d = vr((aG[2], aU[2])[m], 16); cc = d if K else '0'
            e(f'v_mfma_f32_32x32x16_bf16 {d}, {ar(fs+4*m,4)}, {x}, {cc}')
            if K == 19 and m == 0:
                nv = g.wv_n('st11')
                e(f's_waitcnt vmcnt({nv})' if nv is not None else 's_nop 0')
                e('s_barrier')
            for tg, tx in nxt[2*m:2*m+2]: g.lds(tx, tg)
    e('s_nop 7'); e('s_nop 7')
    stamp(g, o, 5, VDIAG)
    glu_epi(2)

    e(f's_lshl_b32 s42, s2, 2'); e(f's_add_u32 s42, s42, s{S_W}')
    labS = g.newlab('PKS'); labE = g.newlab('PKE')
    e('s_cmp_ge_u32 s42, 880'); e(f's_cbranch_scc1 {labE}')
    e('s_cmp_ge_u32 s42, 480'); e(f's_cbranch_scc1 {labS}')
    e('s_mul_i32 s43, s42, 6554'); e('s_lshr_b32 s43, s43, 16')
    e('s_mul_i32 s44, s43, 10'); e('s_sub_u32 s44, s42, s44')
    srd(g, R_T, P_WD, 1536*1280)
    e(f'v_lshrrev_b32 v{T}, 3, v{VL}'); e('s_movk_i32 s45, 1280'); e(f'v_mul_lo_u32 v{T}, v{T}, s45')
    e(f'v_and_b32 v{T+1}, 7, v{VL}'); e(f'v_lshl_add_u32 v{T}, v{T+1}, 4, v{T}')
    e('s_mul_i32 s46, s43, 40960'); e('s_lshl_b32 s47, s44, 7'); e('s_add_u32 s46, s46, s47')
    e(f's_lshl_b32 s47, s{S_W}, 12'); e(f's_add_u32 m0, s47, {L_X}'); e('s_nop 0')
    for q in range(4):
        if q: e(f'v_add_u32 v{T}, {8*1280-1024}, v{T}')
        e(f'buffer_load_dwordx4 v{T}, s[{R_T}:{R_T+3}], s46 offen offset:{q*1024} lds')
    e(f'v_lshrrev_b32 v{T+2}, 5, v{VL}'); e(f'v_lshlrev_b32 v{T+2}, 4, v{T+2}')
    e(f'v_bfe_u32 v{T+3}, v{VL}, 4, 1'); e(f'v_lshl_add_u32 v{T+2}, v{T+3}, 2, v{T+2}')
    e(f'v_bfe_u32 v{T+3}, v{VL}, 2, 2'); e(f'v_add_u32 v{T+2}, v{T+2}, v{T+3}')
    e(f'v_lshlrev_b32 v{T+2}, 7, v{T+2}')
    e(f'v_and_b32 v{T+3}, 3, v{VL}'); e(f'v_lshl_add_u32 v{T+2}, v{T+3}, 3, v{T+2}')
    e(f'v_add_u32 v{T+2}, s47, v{T+2}')
    e('s_waitcnt vmcnt(0)')
    for tp in range(4):
        e(f'ds_read_b64_tr_b16 {vr(T+8+4*tp,2)}, v{T+2} offset:{L_X + tp*32}')
        e(f'ds_read_b64_tr_b16 {vr(T+10+4*tp,2)}, v{T+2} offset:{L_X + tp*32 + 8*128}')
    e(f'v_lshlrev_b32 v{T+4}, 4, v{VL}')
    e('s_waitcnt lgkmcnt(0)')
    for tp in range(4):
        e(f's_lshl_b32 s46, s44, 2'); e(f's_add_u32 s46, s46, {tp}')
        e('s_mul_i32 s47, s46, 52429'); e('s_lshr_b32 s47, s47, 18')
        e('s_mul_i32 s48, s47, 5'); e('s_sub_u32 s48, s46, s48')
        e('s_mul_i32 s47, s47, 88'); e('s_add_u32 s47, s47, s43'); e('s_mul_i32 s47, s47, 5'); e('s_add_u32 s47, s47, s48')
        e('s_lshl_b32 s47, s47, 10'); e(f's_add_u32 s47, s47, {WS_W2}')
        e(f'buffer_store_dwordx4 {vr(T+8+4*tp,4)}, v{T+4}, s[{R_WS}:{R_WS+3}], s47 offen {o.st_flags}')
    e(f's_branch {labE}')
    g.label(labS)
    e('s_sub_u32 s42, s42, 480')
    e('s_cmp_ge_u32 s42, 200'); e('s_cselect_b32 s43, 1, 0')
    e('s_mul_i32 s44, s43, 200'); e('s_sub_u32 s42, s42, s44')
    e('s_mul_i32 s44, s42, 52429'); e('s_lshr_b32 s44, s44, 18')
    e('s_mul_i32 s45, s44, 5'); e('s_sub_u32 s45, s42, s45')
    e('s_cmp_lg_u32 s43, 0')
    e(f's_cselect_b32 s{R_T}, s{P_CIM}, s{P_CRE}'); e(f's_cselect_b32 s{R_T+1}, s{P_CIM+1}, s{P_CRE+1}')
    e(f's_and_b32 s{R_T+1}, s{R_T+1}, 0xffff'); e(f's_mov_b32 s{R_T+2}, {640*1280}'); e(f's_mov_b32 s{R_T+3}, 0x20000')
    e(f'v_lshrrev_b32 v{T}, 4, v{VL}')
    e(f'v_and_b32 v{T+1}, 15, v{VL}')
    e('s_movk_i32 s46, 1280')
    e('s_mul_i32 s47, s44, 20480'); e('s_lshl_b32 s48, s45, 8'); e('s_add_u32 s47, s47, s48')
    e(f's_lshl_b32 s48, s{S_W}, 12'); e(f's_add_u32 m0, s48, {L_X}')
    for q in range(4):
        e(f'v_add_u32 v{T+2}, {4*q}, v{T}')
        e(f'v_xor_b32 v{T+3}, v{T+2}, v{T+1}')
        e(f'v_mul_lo_u32 v{T+2}, v{T+2}, s46')
        e(f'v_lshl_add_u32 v{T+2}, v{T+3}, 4, v{T+2}')
        if q: e(f'v_subrev_u32 v{T+2}, {q*1024}, v{T+2}')
        e(f'buffer_load_dwordx4 v{T+2}, s[{R_T}:{R_T+3}], s47 offen offset:{q*1024} lds')
    e(f'v_lshrrev_b32 v{T}, 4, v{VL}')
    e(f'v_lshlrev_b32 v{T+2}, 8, v{T+1}'); e(f'v_add_u32 v{T+2}, s48, v{T+2}')
    e('s_waitcnt vmcnt(0)')
    for tp in range(4):
        e(f'v_add_u32 v{T+3}, {4*tp}, v{T}'); e(f'v_xor_b32 v{T+3}, v{T+3}, v{T+1}')
        e(f'v_lshl_add_u32 v{T+3}, v{T+3}, 4, v{T+2}')
        e(f'ds_read_b128 {vr(T+8+4*tp,4)}, v{T+3} offset:{L_X}')
    e(f'v_lshlrev_b32 v{T+4}, 4, v{VL}')
    e('s_waitcnt lgkmcnt(0)')
    e('s_mul_i32 s47, s44, 52429'); e('s_lshr_b32 s47, s47, 18'); e('s_mul_i32 s48, s47, 5'); e('s_sub_u32 s48, s44, s48')
    for tp in range(4):
        e(f's_lshl_b32 s46, s45, 3'); e(f's_add_u32 s46, s46, {48 + 2*tp}'); e('s_add_u32 s46, s46, s43')
        e('s_mul_i32 s49, s47, 88'); e('s_add_u32 s49, s49, s46'); e('s_mul_i32 s49, s49, 5'); e('s_add_u32 s49, s49, s48')
        e('s_lshl_b32 s49, s49, 10'); e(f's_add_u32 s49, s49, {WS_W2}')
        e(f'buffer_store_dwordx4 {vr(T+8+4*tp,4)}, v{T+4}, s[{R_WS}:{R_WS+3}], s49 offen {o.st_flags}')
    g.label(labE)
    g.vq = []; g.lq = []
    stamp(g, o, 6, VDIAG)

    e(f'v_and_b32 v{T}, 7, v{VL}'); e(f'v_add_u32 v{T}, 32, v{T}')
    e(f'v_cmp_gt_u32 vcc, 32, v{VL}')
    e('s_nop 1')
    e(f'v_cndmask_b32 v{T}, v{T}, v{VL}, vcc')
    e(f'v_lshlrev_b32 v{T}, 4, v{T}')
    EL = T + 8
    for mp in range(4):
        e(f's_lshl_b32 s42, s{S_W}, 2'); e(f's_add_u32 s42, s42, {1+mp}')
        e(f's_cmp_ge_u32 s{S_J}, s42')
        e(f's_cselect_b32 s{56+mp}, s50, 0')
        e(f's_cselect_b32 s43, 0, 0x7ff00000')
        e(f's_sub_u32 s42, s{S_J}, s42'); e('s_and_b32 s42, s42, 15')
        e(f's_lshl_b32 s44, s{S_C}, 4'); e('s_add_u32 s42, s42, s44'); e('s_mul_i32 s42, s42, 640'); e(f's_add_u32 s42, s42, {WS_EP}')
        e('s_add_u32 s42, s42, s43')
        e(f'v_add_u32 v{T+1+mp}, s42, v{T}')
    lab = g.newlab('LB'); lab2 = g.newlab('LBD')
    g.label(lab)
    for mp in range(4):
        e(f'buffer_load_dwordx4 {vr(EL+4*mp,4)}, v{T+1+mp}, s[{R_WS}:{R_WS+3}], 0 offen sc0 sc1')
    e('s_waitcnt vmcnt(0)')
    e('s_mov_b64 s[42:43], 0')
    for mp in range(4):
        e(f'v_cmp_ne_u32 vcc, s{56+mp}, v{EL+4*mp+1}'); e('s_or_b64 s[42:43], s[42:43], vcc')
        e(f'v_cmp_ne_u32 vcc, s{56+mp}, v{EL+4*mp+3}'); e('s_or_b64 s[42:43], s[42:43], vcc')
    e('s_cmp_eq_u64 s[42:43], 0')
    e(f's_cbranch_scc1 {lab2}')
    e('s_sleep 1')
    e(f's_branch {lab}')
    g.label(lab2)
    cfma(g, D128R, D128I, EL+12, EL+14, EL+8, EL+10, T+24, T+25)
    cfma(g, D128R, D128I, T+24, T+25, EL+4, EL+6, T+26, T+27)
    cfma(g, D128R, D128I, T+26, T+27, EL, EL+2, T+24, T+25)
    e(f'v_lshlrev_b32 v{T+5}, 3, v{VL}')
    e(f's_lshl_b32 s42, s{S_W}, 9'); e(f's_add_u32 s42, s42, {L_TQ}')
    e(f'v_add_u32 v{T+6}, s42, v{T+5}')
    g.lds(f'ds_write_b64 v{T+6}, {vr(T+24,2)}', 'q')
    g.wl0()
    e('s_barrier')
    e(f'v_add_u32 v{T+5}, {L_TQ}, v{T+5}')
    for k in range(4):
        g.lds(f'ds_read_b64 {vr(T+28+2*k,2)}, v{T+5} offset:{k*512}', 'qr')
    g.wl0()
    cfma(g, D512R, D512I, T+34, T+35, T+32, T+33, T+24, T+25)
    cfma(g, D512R, D512I, T+24, T+25, T+30, T+31, T+26, T+27)
    cfma(g, D512R, D512I, T+26, T+27, T+28, T+29, T+24, T+25)
    CR, CI, XCR, XCI = T+36, T+37, T+38, T+39
    redis(T+24, T+24, CR, XCR); redis(T+25, T+25, CI, XCI)
    cfma(g, PWR, PWI, CR, CI, PR, PI, T+40, T+41)
    cfma(g, XPWR, XPWI, XCR, XCI, XPR, XPI, T+42, T+43)
    stamp(g, o, 7, VDIAG)
    XB = T+4
    e(f'v_bfe_u32 v{T+7}, v{VL}, 3, 1')
    e(f'v_cmp_eq_u32 vcc, 1, v{T+7}')
    e(f'v_sub_f32 v{XB}, 0, v{XLI}')
    e(f'v_sub_f32 v{T+8}, 0, v{LI}')
    e(f'v_cndmask_b32 v{XB}, v{XB}, v{XLI}, vcc')
    e(f'v_cndmask_b32 v{T+44}, v{T+42}, v{T+43}, vcc')
    NLI = T+8
    hr, hi, xp = T+40, T+41, T+44
    for r in range(16):
        e(f'v_fmac_f32 v{aX+r}, v{XLR}, v{xp}')
        e(f'v_fmac_f32 v{aR+r}, v{LR}, v{hr}')
        e(f'v_fmac_f32 v{aI+r}, v{LR}, v{hi}')
        e(f'v_fmac_f32 v{aR+r}, v{NLI}, v{hi}')
        e(f'v_fmac_f32 v{aI+r}, v{LI}, v{hr}')
        e(f'v_fmac_f32_dpp v{aX+r}, v{xp}, v{XB} row_ror:8 row_mask:0xf bank_mask:0xf')
        hr, hi, xp = aR+r, aI+r, aX+r
    XA, XBb = T+9, T+10
    e(f'v_sub_f32 v{XA}, 0, v{XCFR}')
    e(f'v_cndmask_b32 v{XA}, v{XCFR}, v{XA}, vcc')
    e(f'v_sub_f32 v{XBb}, 0, v{XCFI}')
    PK = T + 12
    for p in range(8):
        for h_ in range(2):
            r = 2*p + h_
            e(f'v_mul_f32 v{T+40+h_}, v{CFR}, v{aR+r}')
            e(f'v_mul_f32 v{T+42+h_}, v{CFR}, v{aI+r}')
            e(f'v_mul_f32 v{T+44+h_}, v{XA}, v{aX+r}')
            e(f'v_fma_f32 v{T+40+h_}, -v{CFI}, v{aI+r}, v{T+40+h_}')
            e(f'v_fmac_f32 v{T+42+h_}, v{CFI}, v{aR+r}')
            e(f'v_fmac_f32_dpp v{T+44+h_}, v{aX+r}, v{XBb} row_ror:8 row_mask:0xf bank_mask:0xf')
        e(f'v_cvt_pk_bf16_f32 v{PK+p}, v{T+40}, v{T+41}')
        e(f'v_cvt_pk_bf16_f32 v{PK+8+p}, -v{T+42}, -v{T+43}')
        e(f'v_cvt_pk_bf16_f32 v{PK+16+p}, v{T+44}, v{T+45}')
    e(f's_mul_i32 s42, s{S_W}, {TH_W}'); e(f's_add_u32 s42, s42, {L_TH}')
    e(f'v_and_b32 v{T}, 31, v{VL}'); e(f'v_mul_u32_u24 v{T+1}, {TH_PITCH}, v{T}')
    e(f'v_lshrrev_b32 v{T+2}, 5, v{VL}'); e(f'v_lshl_add_u32 v{T+1}, v{T+2}, 5, v{T+1}')
    e(f'v_add_u32 v{T+1}, s42, v{T+1}')
    for cmp_ in range(2):
        for k in range(4):
            g.lds(f'ds_write_b64 v{T+1}, {vr(PK+8*cmp_+2*k,2)} offset:{cmp_*32*TH_PITCH + k*8}', 'tw')
    e(f'v_cmp_gt_u32 vcc, 16, v{T}')
    e('s_and_saveexec_b64 s[40:41], vcc')
    for k in range(4):
        g.lds(f'ds_write_b64 v{T+1}, {vr(PK+16+2*k,2)} offset:{64*TH_PITCH + k*8}', 'tw')
    e('s_mov_b64 exec, s[40:41]')
    e(f'v_bfe_u32 v{T+2}, v{VL}, 2, 2')
    e(f'v_lshrrev_b32 v{T+3}, 5, v{VL}')
    e(f'v_lshl_add_u32 v{T+4}, v{T+3}, 5, v{T+2}')
    e(f'v_lshl_add_u32 v{T+5}, v{T+3}, 3, v{T+2}')
    e(f'v_and_b32 v{T+6}, 1, v{VL}'); e(f'v_lshlrev_b32 v{T+6}, 5, v{T+6}')
    e(f'v_bfe_u32 v{T+7}, v{VL}, 4, 1'); e(f'v_lshl_add_u32 v{T+6}, v{T+7}, 4, v{T+6}')
    e(f'v_bfe_u32 v{T+7}, v{VL}, 1, 1'); e(f'v_lshl_add_u32 v{T+6}, v{T+7}, 3, v{T+6}')
    e(f'v_add_u32 v{T+6}, s42, v{T+6}')
    e(f'v_mad_u32_u24 v{T+4}, v{T+4}, {TH_PITCH if TH_PITCH <= 64 else "s43"}, v{T+6}' if TH_PITCH <= 64 else f's_movk_i32 s43, {TH_PITCH}')
    if TH_PITCH > 64:
        e(f'v_mad_u32_u24 v{T+4}, v{T+4}, s43, v{T+6}')
    e(f'v_mad_u32_u24 v{T+5}, v{T+5}, s43, v{T+6}')
    g.wl0()
    HO = T + 40
    for u in range(5):
        for rd in range(2):
            if u < 4: g.lds(f'ds_read_b64_tr_b16 {vr(HO+4*u+2*rd,2)}, v{T+4} offset:{(8*u + 4*rd)*TH_PITCH}', 'tr')
            else:     g.lds(f'ds_read_b64_tr_b16 {vr(HO+4*u+2*rd,2)}, v{T+5} offset:{(64 + 4*rd)*TH_PITCH}', 'tr')
    e(f'v_bfe_u32 v{T}, v{VL}, 4, 1'); e(f'v_mul_u32_u24 v{T}, {88*1024}, v{T}')
    e(f'v_lshl_add_u32 v{T}, v{T+3}, 10, v{T}')
    e(f'v_and_b32 v{T+1}, 15, v{VL}'); e(f'v_lshl_add_u32 v{T}, v{T+1}, 4, v{T}')
    e(f's_lshl_b32 s43, s{S_J}, 3'); e(f's_lshl_b32 s44, s{S_W}, 1'); e('s_add_u32 s43, s43, s44'); e('s_mul_i32 s43, s43, 88')
    e(f's_mul_i32 s44, s{S_C}, 5')
    g.wl0()
    for u in range(5):
        e(f's_add_u32 s45, s44, {u}'); e('s_lshr_b32 s46, s45, 2'); e('s_lshl_b32 s46, s46, 1'); e('s_add_u32 s46, s46, s43'); e('s_add_u32 s46, s46, 48')
        e('s_lshl_b32 s46, s46, 10'); e('s_and_b32 s45, s45, 3'); e('s_lshl_b32 s45, s45, 8'); e('s_add_u32 s46, s46, s45')
        g.vm(f'buffer_store_dwordx4 {vr(HO+4*u,4)}, v{T}, s[{R_WS}:{R_WS+3}], s46 offen {o.st_flags}', 'hst')
    if o.diag or o.hdiag:
        g.wv0()
        stamp(g, o, 8, VDIAG)
        e(f's_lshl_b32 s42, s2, 2'); e(f's_add_u32 s42, s42, s{S_W}'); e('s_lshl_b32 s42, s42, 7' if o.hdiag else 's_lshl_b32 s42, s42, 6'); e(f's_add_u32 s42, s42, {WS_DIAG}')
        e(f'v_lshlrev_b32 v{T}, 2, v{VL}')
        e('s_mov_b64 exec, 0xffffffff' if o.hdiag else 's_mov_b64 exec, 0xffff')
        e(f'buffer_store_dword v{VDIAG}, v{T}, s[{R_WS}:{R_WS+3}], s42 offen')
        e('s_mov_b64 exec, -1')
    g.label('K1_END')
    e('s_endpgm')
    return g

def gen_k2(o):
    g = G(); e = g.e
    VL = 1; VAO = 2; VWO = 3; VRD = 4; VDIAG = 5; T = 8
    AFR = 64
    BFR = 128
    aB_, aA_ = 168, 188
    XV = 208
    GV = 228; DV = 232
    S_W_, S_TB, S_DB = 4, 5, 6
    R_WS2, R_X2, R_O, R_T2 = 8, 12, 16, 20
    NS = 22
    e('s_cmp_ge_u32 s2, 256')
    e('s_cbranch_scc1 K2_END')
    e('s_load_dwordx2 s[64:65], s[0:1], 0')
    e('s_load_dwordx2 s[66:67], s[0:1], 64')
    e('s_load_dwordx2 s[68:69], s[0:1], 112')
    e('s_load_dwordx2 s[70:71], s[0:1], 128')
    e(f'v_and_b32 v{VL}, 63, v0')
    e(f'v_lshrrev_b32 v{T}, 6, v0')
    if o.diag or o.hdiag: e(f'v_mov_b32 v{VDIAG}, 0')
    if o.hdiag: e('s_load_dwordx2 s[72:73], s[0:1], 120')
    e('s_and_b32 s3, s2, 7'); e('s_lshr_b32 s7, s2, 3')
    e(f'v_readfirstlane_b32 s{S_W_}, v{T}')
    e(f's_and_b32 s{S_TB}, s3, 3'); e(f's_lshl_b32 s{S_TB}, s{S_TB}, 3'); e('s_and_b32 s42, s7, 7'); e(f's_add_u32 s{S_TB}, s{S_TB}, s42')
    e(f's_lshr_b32 s{S_DB}, s3, 2'); e(f's_lshl_b32 s{S_DB}, s{S_DB}, 2'); e('s_lshr_b32 s42, s7, 3'); e(f's_add_u32 s{S_DB}, s{S_DB}, s42')
    e(f'v_lshlrev_b32 v{VAO}, 4, v{VL}')
    e(f'v_add_u32 v{VRD}, 0, v{VAO}')
    e(f's_lshl_b32 s44, s{S_TB}, 2'); e(f's_add_u32 s44, s44, s{S_W_}'); e(f's_mul_i32 s44, s44, {88*1024}')
    e(f's_mul_i32 s45, s{S_DB}, 88'); e(f's_add_u32 s45, s45, s{S_W_}'); e('s_mul_i32 s45, s45, 5120'); e(f's_add_u32 s45, s45, {WS_W2}')
    e(f's_mul_i32 s46, s{S_W_}, 5120')
    e('s_waitcnt lgkmcnt(0)')
    stamp_k2 = lambda idx: stamp(g, o, idx, VDIAG)
    stamp_k2(0)
    srd(g, R_WS2, 70, WS_SIZE)
    SLOT = 20480
    def issue(S):
        P = []
        tag = f's{S}'
        def w0():
            e(f's_add_u32 m0, s46, {(S % 4)*SLOT}')
            e(f's_add_u32 s47, s45, {S*4*5120}')
        P.append(w0)
        for t in range(4):
            P.append(lambda t=t: g.vm(f'buffer_load_dwordx4 v{VAO}, s[{R_WS2}:{R_WS2+3}], s47 offen offset:{t*1024} lds', tag))
        def w4():
            e(f's_add_u32 m0, s46, {(S % 4)*SLOT + 4096}')
            e(f's_add_u32 s47, s47, 4096')
            g.vm(f'buffer_load_dwordx4 v{VAO}, s[{R_WS2}:{R_WS2+3}], s47 offen lds', tag)
        P.append(w4)
        def a0(): e(f's_add_u32 s48, s44, {S*4096}')
        P.append(a0)
        for k in range(4):
            P.append(lambda k=k: g.vm(f'buffer_load_dwordx4 {vr(AFR + 16*(S % 4) + 4*k, 4)}, v{VAO}, s[{R_WS2}:{R_WS2+3}], s48 offen offset:{k*1024}', tag))
        return P
    for S in range(4):
        for p in issue(S): p()
    srd(g, R_X2, 64, 2048*1280); srd(g, R_T2, 66, 1280); srd(g, R_O, 68, 2048*2560)
    e(f's_lshl_b32 s42, s{S_TB}, 6'); e(f's_lshr_b32 s43, s{S_W_}, 1'); e('s_lshl_b32 s43, s43, 5'); e('s_add_u32 s42, s42, s43')
    e(f's_and_b32 s43, s{S_W_}, 1'); e('s_lshl_b32 s43, s43, 3'); e('s_add_u32 s42, s42, s43')
    e(f'v_bfe_u32 v{T}, v{VL}, 4, 1'); e(f'v_lshlrev_b32 v{T}, 4, v{T}')
    e(f'v_lshrrev_b32 v{T+1}, 5, v{VL}'); e(f'v_lshl_add_u32 v{T}, v{T+1}, 2, v{T}')
    e(f'v_add_u32 v{T}, s42, v{T}')
    VTOK = 6;
    e(f'v_mov_b32 v{VTOK}, v{T}')
    e(f'v_and_b32 v{T+1}, 15, v{VL}')
    e(f's_mul_i32 s43, s{S_DB}, 80')
    e(f'v_add_u32 v{T+1}, s43, v{T+1}')
    VD = 7
    e(f'v_mov_b32 v{VD}, v{T+1}')
    e(f'v_lshlrev_b32 v{T+2}, 2, v{T}'); e(f'v_add_u32 v{T+2}, {WS_G}, v{T+2}')
    g.vm(f'buffer_load_dwordx4 {vr(GV,4)}, v{T+2}, s[{R_WS2}:{R_WS2+3}], 0 offen', 'ep')
    e('s_movk_i32 s43, 1280')
    e(f'v_mul_lo_u32 v{T+3}, v{T}, s43'); e(f'v_lshl_add_u32 v{T+3}, v{T+1}, 1, v{T+3}')
    for r in range(4):
        for t in range(5):
            g.vm(f'buffer_load_ushort v{XV+5*r+t}, v{T+3}, s[{R_X2}:{R_X2+3}], 0 offen offset:{r*1280 + t*32}', 'ep')
    e(f'v_lshlrev_b32 v{T+4}, 1, v{T+1}')
    for t in range(5):
        g.vm(f'buffer_load_ushort v{DV+t}, v{T+4}, s[{R_T2}:{R_T2+3}], 0 offen offset:{t*32}', 'ep')
    def breads(S, k):
        fs = BFR + 20*((4*S + k) % 2)
        return [(f'b{S}_{k}_{t}', f'ds_read_b128 {vr(fs+4*t,4)}, v{VRD} offset:{(S % 4)*SLOT + k*5120 + t*1024}') for t in range(5)]
    VRD2 = 2 + 30
    e(f'v_add_u32 v{VRD2}, {2*SLOT}, v{VRD}')
    def breads(S, k):
        fs = BFR + 20*((4*S + k) % 2)
        sl = S % 4
        base = VRD if sl < 2 else VRD2
        o0 = (sl % 2)*SLOT
        return [(f'b{S}_{k}_{t}', f'ds_read_b128 {vr(fs+4*t,4)}, v{base} offset:{o0 + k*5120 + t*1024}') for t in range(5)]
    n = g.wv_n('s0')
    e(f's_waitcnt vmcnt({n})')
    e('s_barrier')
    stamp_k2(1)
    for tg, tx in breads(0, 0): g.lds(tx, tg)
    pend = []
    for S in range(NS):
        for k in range(4):
            ks = 4*S + k
            acc = aB_ if ks < 48 else aA_
            first = ks in (0, 48)
            last_k = (k == 3)
            nxt = []
            if not last_k: nxt = breads(S, k+1)
            fs = BFR + 20*(ks % 2)
            for t in range(5):
                g.wl(f'b{S}_{k}_{t}')
                d = vr(acc+4*t, 4); cc = '0' if first else d
                e(f'v_mfma_f32_16x16x32_bf16 {d}, {vr(AFR + 16*(S % 4) + 4*k, 4)}, {vr(fs+4*t,4)}, {cc}')
                if last_k and t == 1 and S + 1 < NS:
                    nv = g.wv_n(f's{S+1}')
                    g.lq = []
                    e(f's_waitcnt vmcnt({nv}) lgkmcnt(0)' if nv is not None else 's_waitcnt lgkmcnt(0)')
                    e('s_barrier')
                    nxt = breads(S+1, 0)
                    assert not pend
                    if S + 4 < NS: pend = issue(S + 4)
                if last_k:
                    if t >= 2 and nxt:
                        for _ in range(2 if t < 4 else 1):
                            if nxt:
                                tg, tx = nxt.pop(0); g.lds(tx, tg)
                else:
                    tg, tx = nxt[t]; g.lds(tx, tg)
                if pend and not (last_k and t < 2):
                    pend.pop(0)()
            if last_k:
                assert not nxt
            if k == 2:
                while pend: pend.pop(0)()
    assert not pend
    e('s_nop 7'); e('s_nop 7')
    stamp_k2(2)
    g.wall()
    OG = T + 8
    for r in range(4):
        e(f'v_sub_f32 v{OG+r}, 1.0, v{GV+r}')
        e(f'v_cvt_pk_bf16_f32 v{OG+r}, v{OG+r}, v{OG+r}')
        e(f'v_lshlrev_b32 v{OG+r}, 16, v{OG+r}')
    for t in range(5): e(f'v_lshlrev_b32 v{DV+t}, 16, v{DV+t}')
    e('s_movk_i32 s43, 2560')
    e(f'v_mul_lo_u32 v{T}, v{VTOK}, s43'); e(f'v_lshl_add_u32 v{T}, v{VD}, 2, v{T}')
    e(f'v_add_u32 v{T+1}, {2*2560}, v{T}')
    for t in range(5):
        for r in range(4):
            xv = XV + 5*r + t; b = aB_ + 4*t + r; a = aA_ + 4*t + r
            e(f'v_lshlrev_b32 v{xv}, 16, v{xv}')
            e(f'v_mul_f32 v{xv}, v{xv}, v{DV+t}')
            e(f'v_cvt_pk_bf16_f32 v{b}, v{b}, v{xv}')
            e(f'v_and_b32 v{xv}, 0xffff0000, v{b}')
            e(f'v_lshlrev_b32 v{b}, 16, v{b}')
            e(f'v_fmac_f32 v{xv}, 2.0, v{a}')
            e(f'v_mul_f32 v{b}, v{OG+r}, v{b}')
            e(f'v_cvt_pk_bf16_f32 v{b}, v{b}, v{b}')
            e(f'v_lshlrev_b32 v{b}, 16, v{b}')
            e(f'v_fmac_f32 v{b}, v{GV+r}, v{xv}')
            base = T if r < 2 else T+1
            g.vm(f'buffer_store_dword v{b}, v{base}, s[{R_O}:{R_O+3}], 0 offen offset:{(r % 2)*2560 + t*64}', 'o')
    if o.hdiag:
        g.wv0()
        stamp_k2(3)
        lab = g.newlab('HD')
        e(f's_or_b32 s42, s2, s{S_W_}'); e('s_cmp_lg_u32 s42, 0'); e(f's_cbranch_scc1 {lab}')
        srd(g, R_T2, 72, 256)
        e(f'v_lshlrev_b32 v{T}, 2, v{VL}')
        e(f's_mov_b32 s42, {WS_DIAG}')
        e(f'buffer_load_dword v{T+1}, v{T}, s[{R_WS2}:{R_WS2+3}], s42 offen sc0 sc1')
        e('s_waitcnt vmcnt(0)')
        for dst, (reg, ln) in enumerate([(T+1,0),(T+1,1),(T+1,2),(T+1,8),(T+1,17),(T+1,18),(T+1,24),(VDIAG,0),(VDIAG,1),(VDIAG,2),(VDIAG,3),(VDIAG,16),(VDIAG,17),(VDIAG,18),(VDIAG,19)]):
            e(f'v_readlane_b32 s42, v{reg}, {ln}')
            e('s_nop 3')
            e(f'v_writelane_b32 v{T+2}, s42, {dst}')
        e('s_mov_b64 exec, 0x7fff')
        e(f'buffer_store_dword v{T+2}, v{T}, s[{R_T2}:{R_T2+3}], 0 offen')
        e('s_mov_b64 exec, -1')
        g.label(lab)
    if o.diag:
        g.wv0()
        stamp_k2(3)
        e(f's_lshl_b32 s42, s2, 2'); e(f's_add_u32 s42, s42, s{S_W_}'); e('s_lshl_b32 s42, s42, 6'); e(f's_add_u32 s42, s42, {WS_DIAG + 0x10000}')
        e(f'v_lshlrev_b32 v{T}, 2, v{VL}')
        e('s_mov_b64 exec, 0xffff')
        e(f'buffer_store_dword v{VDIAG}, v{T}, s[{R_WS2}:{R_WS2+3}], s42 offen')
        e('s_mov_b64 exec, -1')
    g.label('K2_END')
    e('s_endpgm')
    return g

HEADER = open('cdna_kernels/%s.s.ref' % NAME).read().split('; Override launch geometry')[0]

def kd(name, vgpr, accum, sgpr=102):
    return f'''.p2align 6
.amdhsa_kernel {name}
  .amdhsa_next_free_vgpr {vgpr}
  .amdhsa_next_free_sgpr {sgpr}
  .amdhsa_accum_offset {accum}
  .amdhsa_group_segment_fixed_size 0
  .amdhsa_kernarg_size 136
  .amdhsa_user_sgpr_count 2
  .amdhsa_user_sgpr_kernarg_segment_ptr 1
  .amdhsa_system_sgpr_workgroup_id_x 1
.end_amdhsa_kernel
'''

def build(o):
    k1 = gen_k1(o); k2 = gen_k2(o)
    s = HEADER
    s += f'; @launch kernel=k1_kernel grid=(256,1,1) block=(256,1,1) lds={LDS1}\n'
    s += f'; @launch kernel=k2_kernel grid=(256,1,1) block=(256,1,1) lds=81920\n'
    s += '.amdgcn_target "amdgcn-amd-amdhsa--gfx950"\n.text\n'
    s += '.globl k1_kernel\n.p2align 8\n.type k1_kernel,@function\nk1_kernel:\n' + k1.text()
    s += '.globl k2_kernel\n.p2align 8\n.type k2_kernel,@function\nk2_kernel:\n' + k2.text()
    s += 'CODE_END:\n.fill 64, 4, 0xBF800000\n'
    s += '.section .rodata,"a"\n' + kd('k1_kernel', 512, 256) + kd('k2_kernel', 256, 256)
    return s

if __name__ == '__main__':
    o = Opt()
    for a in sys.argv[2:]:
        k, v = a.split('=')
        setattr(o, k, eval(v))
    open(sys.argv[1], 'w').write(build(o))
```

```python
from collections import deque
class G:
    def __init__(s):
        s.L = []
        s.lq = []
        s.vq = []
        s.nlab = 0
        s.n = 0
    def e(s, t):
        for ln in t.split('\n'):
            ln = ln.strip()
            if ln:
                s.L.append(ln)
                if not (ln.endswith(':') or ln.startswith('.') or ln.startswith(';')):
                    s.n += 2 if ln.startswith('v_mfma_f32_16x16') or ln.startswith('v_mfma_f32_32x32') else 1
    def c(s, t): s.L.append('; ' + t)
    def label(s, name): s.L.append(name + ':')
    def newlab(s, p='L'):
        s.nlab += 1
        return '%s_%d' % (p, s.nlab)
    def lds(s, t, tag=None):
        s.e(t); s.lq.append(tag)
        assert len(s.lq) <= 64
    def _idx(s, q, tags):
        if not isinstance(tags, (list, tuple, set)): tags = [tags]
        idx = -1
        for i, t in enumerate(q):
            if t in tags: idx = i
        return idx
    def wl(s, tags):
        idx = s._idx(s.lq, tags)
        if idx < 0: return False
        n = len(s.lq) - 1 - idx
        if n > 15: n = 15
        s.e('s_waitcnt lgkmcnt(%d)' % n)
        s.lq = s.lq[len(s.lq)-n:] if n else []
        return True
    def wl0(s):
        s.e('s_waitcnt lgkmcnt(0)'); s.lq = []
    def vm(s, t, tag=None):
        s.e(t); s.vq.append(tag)
    def wv(s, tags):
        n = s.wv_n(tags)
        if n is None: return False
        s.e('s_waitcnt vmcnt(%d)' % n)
        return True
    def wv_n(s, tags):
        idx = s._idx(s.vq, tags)
        if idx < 0: return None
        n = len(s.vq) - 1 - idx
        assert n <= 63, n
        s.vq = s.vq[idx+1:]
        return n
    def wv0(s):
        s.e('s_waitcnt vmcnt(0)'); s.vq = []
    def wall(s):
        s.e('s_waitcnt vmcnt(0) lgkmcnt(0)'); s.vq = []; s.lq = []
    def text(s):
        out = []
        L2 = []
        for ln in s.L:
            if ln.startswith('v_mfma') and L2 and L2[-1].startswith('v_pk_'):
                L2.append('s_nop 0')
            L2.append(ln)
        for ln in L2:
            if ln.endswith(':') or ln.startswith('.') or ln.startswith(';'): out.append(ln)
            else: out.append('    ' + ln)
        return '\n'.join(out) + '\n'

class Fill:
    def __init__(s, g):
        s.g = g; s.q = deque(); s.blocked = None; s.done = set()
    def add(s, gen, name=''): s.q.append([gen, name])
    def step(s):
        while s.q:
            gen, name = s.q[0]
            try:
                r = next(gen)
            except StopIteration:
                s.q.popleft(); continue
            if isinstance(r, str) and r not in s.done:
                s.blocked = r
            return True
        return False
    def run(s, budget):
        if s.blocked: return
        n0 = s.g.n
        while s.g.n - n0 < budget:
            if s.blocked or not s.step(): break
    def release(s, ev):
        s.done.add(ev)
        if s.blocked == ev: s.blocked = None
    def barrier(s):
        if s.blocked == 'nextbar': s.blocked = None
    def drain(s):
        while s.q:
            assert not s.blocked, s.blocked
            s.step()
    def empty(s): return not s.q

def vr(a, n=1):
    return 'v%d' % a if n == 1 else 'v[%d:%d]' % (a, a + n - 1)
def ar(a, n=1):
    return 'a%d' % a if n == 1 else 'a[%d:%d]' % (a, a + n - 1)
def sr(a, n=1):
    return 's%d' % a if n == 1 else 's[%d:%d]' % (a, a + n - 1)
```

```python
import sys
from asmlib import G, Fill, vr, ar, sr

NAME = 'gated_mix__ssm_conv_s5__glu_gated_bilinear__prompt'
KN = NAME + '_kernel'
WS_A2   = 0x0
WS_W2   = 0xB00000
WS_G    = 0xE70000
WS_EP   = 0xE80000
WS_FL   = 0xEC0000
WS_FP   = WS_FL + 0x2000
WS_DIAG = 0xF00000
WS_SIZE = 0x1000000
L_X = 0; L_B = 49152; L_W = 79872; L_S = 129024
XS = 16384; BS = 10240; WSZ = 16384
L_TE = L_S
L_TQ = L_S + 7680
L_TH = L_S + 9728
TH_PITCH = 72
TH_W = 80 * TH_PITCH
G2_SLOT = [0, 79872, 49152, 100352]
LDS = 163840
LOG2E = 0x3fb8aa3b
INV2PI = 0x3e22f983
SPIN_MAX = 40000

class Opt:
    hdiag = False
    stg = False
    mimic = False
    st = 'sc1'
    ld = 'sc1'
    p1_budget = 5
    p2_budget = 5
    g2_budget = 6
    nofill = False
    p2_ebar = 27
    fp_stage = 8

P_X, P_LRE, P_LIM, P_BRE, P_BIM, P_CRE, P_CIM, P_LDT = 64, 66, 68, 70, 72, 74, 76, 78
P_DSK, P_BX, P_WG, P_WU, P_WD, P_GW, P_OUT, P_DBG, P_WS = 80, 82, 84, 86, 88, 90, 92, 94, 96
S_W, S_J, S_C = 4, 5, 6
R_X, R_BRE, R_BIM, R_WG, R_WU, R_WS, R_T, R_DBG = 8, 12, 16, 20, 24, 28, 32, 36
S_K128, S_KW = 43, 45
S_W4K, S_W1280, S_W2K, S_W1K = 46, 47, 48, 49
S_NON = 50
S_TB, S_DB, S_A2, S_W2B, S_W5K = 3, 7, 44, 51, 98

def srd(g, d, ptr, nbytes):
    g.e(f's_mov_b32 s{d}, s{ptr}')
    g.e(f's_and_b32 s{d+1}, s{ptr+1}, 0xffff')
    g.e(f's_mov_b32 s{d+2}, {nbytes}')
    g.e(f's_mov_b32 s{d+3}, 0x20000')

def gen(o):
    g = G(); e = g.e
    F = Fill(g)
    VL = 1
    VXO = 2; VBO = 6; VWO = 10; VW2O = 12
    VXA = 13; VBR = 17; VXX = 21; VWR = 25; VP2 = 27
    VDIAG = 29; VNON = 30; VHO = 31
    LR, LI, L16R, L16I, PWR, PWI, CFR, CFI = range(32, 40)
    XLR, XLI, XL16R, XL16I, XPWR, XPWI, XCFR, XCFI = range(40, 48)
    D128R, D128I, D512R, D512I = range(48, 52)
    PR, PI, XPR, XPI = range(52, 56)
    T = 56
    aR, aI, aX = 112, 128, 144
    aG = [160, 176, 224]; aU = [192, 208, 240]
    AX = 0; AF = [160, 188]; APF = 216
    G2A = 0
    G2B = 64
    aB_, aA_ = 160, 180
    XV = 200; GV = 220; DV = 224
    VAO2 = 2; VRD = [3, 4, 5]; VTOK = 6; VD = 7; VFL = 8

    def stamp(idx):
        if not o.hdiag: return
        g.wl0()
        e('s_memrealtime s[40:41]')
        e('s_memtime s[62:63]')
        e('s_waitcnt lgkmcnt(0)')
        e(f'v_writelane_b32 v{VDIAG}, s40, {idx}')
        e(f'v_writelane_b32 v{VDIAG}, s62, {idx+16}')

    stgn = [0]
    def stg_pre():
        if o.stg: e('s_memtime s[62:63]')
    def stg_post():
        if o.stg:
            e(f'v_writelane_b32 v{VDIAG}, s62, {32 + stgn[0]}'); stgn[0] += 1
    def cmul_sq(r, i, ro, io, t):
        e(f'v_mul_f32 v{t}, v{r}, v{r}')
        e(f'v_add_f32 v{io}, v{r}, v{r}')
        e(f'v_fma_f32 v{ro}, -v{i}, v{i}, v{t}')
        e(f'v_mul_f32 v{io}, v{io}, v{i}')
    def cmul(ar_, ai, br, bi, ro, io):
        e(f'v_mul_f32 v{ro}, v{ar_}, v{br}')
        e(f'v_mul_f32 v{io}, v{ar_}, v{bi}')
        e(f'v_fma_f32 v{ro}, -v{ai}, v{bi}, v{ro}')
        e(f'v_fmac_f32 v{io}, v{ai}, v{br}')
    def cfma(lr, li, hr, hi, ur, ui, ro, io):
        e(f'v_fma_f32 v{ro}, v{lr}, v{hr}, v{ur}')
        e(f'v_fma_f32 v{io}, v{lr}, v{hi}, v{ui}')
        e(f'v_fma_f32 v{ro}, -v{li}, v{hi}, v{ro}')
        e(f'v_fmac_f32 v{io}, v{li}, v{hr}')
    def redis(srcA, srcB, dRI, dX):
        e(f'v_mov_b32 v{dRI}, v{srcA}'); e(f'v_mov_b32 v{dX}, v{srcB}')
        e('s_nop 1')
        e(f'v_permlane32_swap_b32 v{dRI}, v{dX}')
    def spin_flags(vaddr, vdst, ndw, tag):
        lab = g.newlab('SP'); lab2 = g.newlab('SPD')
        op = {1: 'buffer_load_dword', 4: 'buffer_load_dwordx4'}[ndw]
        g.wv(tag)
        e(f's_mov_b32 s60, {SPIN_MAX}')
        g.label(lab)
        e(f'v_cmp_ne_u32 s[100:101], s{S_NON}, v{vdst}')
        for k in range(1, ndw):
            e(f'v_cmp_ne_u32 vcc, s{S_NON}, v{vdst+k}')
            e(f's_or_b64 s[100:101], s[100:101], vcc')
        e('s_nop 0')
        e('s_cmp_eq_u64 s[100:101], 0')
        e(f's_cbranch_scc1 {lab2}')
        e('s_sub_u32 s60, s60, 1'); e('s_cmp_eq_u32 s60, 0')
        e(f's_cbranch_scc1 {lab2}')
        e('s_sleep 1')
        e(f'{op} {vr(vdst, ndw)}, v{vaddr}, s[{R_WS}:{R_WS+3}], 0 offen sc1')
        e('s_waitcnt vmcnt(0)')
        e(f's_branch {lab}')
        g.label(lab2)

    e('s_cmp_ge_u32 s2, 256')
    e('s_cbranch_scc1 K_END')
    e('s_load_dwordx16 s[64:79], s[0:1], 0')
    e('s_load_dwordx16 s[80:95], s[0:1], 64')
    e('s_load_dwordx2 s[96:97], s[0:1], 128')
    if o.hdiag: e('s_memrealtime s[60:61]')
    e('s_getpc_b64 s[40:41]')
    g.label('K_PC')
    e(f'v_and_b32 v{VL}, 63, v0')
    e('v_lshrrev_b32 v56, 6, v0')
    e('s_lshr_b32 s3, s2, 3')
    e('s_lshl_b32 s3, s3, 11')
    e('v_lshlrev_b32 v57, 3, v0')
    e('v_add_u32 v57, s3, v57')
    e('v_min_u32 v57, CODE_END-K_PC-8, v57')
    g.vm(f'global_load_dwordx2 {ar(APF,2)}, v57, s[40:41]', 'pf')
    e(f'v_readfirstlane_b32 s{S_W}, v56')
    if o.hdiag: e(f'v_mov_b32 v{VDIAG}, 0')
    e('s_and_b32 s3, s2, 7'); e('s_lshr_b32 s7, s2, 3')
    e(f's_and_b32 s{S_J}, s3, 1'); e(f's_lshl_b32 s{S_J}, s{S_J}, 3')
    e('s_and_b32 s42, s7, 7'); e(f's_add_u32 s{S_J}, s{S_J}, s42')
    e(f's_lshr_b32 s{S_C}, s3, 1'); e(f's_lshl_b32 s{S_C}, s{S_C}, 2')
    e('s_lshr_b32 s42, s7, 3'); e(f's_add_u32 s{S_C}, s{S_C}, s42')
    e('s_and_b32 s52, s3, 3'); e('s_lshl_b32 s52, s52, 3'); e('s_and_b32 s42, s7, 7'); e('s_add_u32 s52, s52, s42')
    e('s_lshr_b32 s53, s3, 2'); e('s_lshl_b32 s53, s53, 2'); e('s_lshr_b32 s42, s7, 3'); e('s_add_u32 s53, s53, s42')
    e(f's_mov_b32 s{S_TB}, s52'); e(f's_mov_b32 s{S_DB}, s53')
    e(f's_lshl_b32 s{S_W4K}, s{S_W}, 12'); e(f's_mul_i32 s{S_W1280}, s{S_W}, 1280')
    e(f's_lshl_b32 s{S_W2K}, s{S_W}, 11'); e(f's_lshl_b32 s{S_W1K}, s{S_W}, 10')
    e(f'v_lshrrev_b32 v{T}, 3, v{VL}')
    e(f'v_and_b32 v{T+1}, 7, v{VL}')
    e(f'v_lshrrev_b32 v{T+2}, 4, v{VL}')
    e(f'v_lshrrev_b32 v{T+3}, 5, v{VL}')
    e(f'v_and_b32 v{T+4}, 3, v{T}')
    e(f'v_lshl_add_u32 v{T+5}, v{T+3}, 4, v{T+4}')
    e(f's_lshl_b32 s42, s{S_J}, 7'); e(f's_lshl_b32 s43, s{S_W}, 5'); e('s_add_u32 s42, s42, s43')
    e(f'v_add_u32 v{T+5}, s42, v{T+5}')
    e('s_movk_i32 s55, 1280')
    e(f'v_mul_lo_u32 v{T+5}, v{T+5}, s55')
    e(f'v_xor_b32 v{T+6}, v{T+1}, v{T+2}')
    e(f'v_xor_b32 v{T+7}, 4, v{T+6}')
    for q in range(4):
        e(f'v_lshl_add_u32 v{VXO+q}, v{T+6+(q&1)}, 4, v{T+5}')
        if q: e(f'v_add_u32 v{VXO+q}, {q*4096}, v{VXO+q}')
    e(f's_mul_i32 s42, s{S_W}, 10')
    e(f'v_add_u32 v{T+8}, s42, v{T}')
    e(f's_mul_i32 s54, s{S_C}, 40')
    for b in range(2):
        if b: e(f'v_add_u32 v{T+8}, 8, v{T+8}')
        e(f'v_bfe_u32 v{T+9}, v{T+8}, 1, 3')
        e(f'v_xor_b32 v{T+9}, v{T+9}, v{T+1}')
        e(f'v_add_u32 v{T+10}, s54, v{T+8}')
        e(f'v_mul_lo_u32 v{T+10}, v{T+10}, s55')
        if b: e(f'v_subrev_u32 v{T+10}, 1024, v{T+10}')
        e(f'v_lshl_add_u32 v{VBO+b}, v{T+9}, 4, v{T+10}')
        e(f'v_xor_b32 v{T+9}, 4, v{T+9}')
        e(f'v_lshl_add_u32 v{VBO+2+b}, v{T+9}, 4, v{T+10}')
    e(f's_lshr_b32 s56, s{S_C}, 1'); e('s_mul_i32 s56, s56, 384')
    e(f's_and_b32 s57, s{S_C}, 1')
    e('s_lshl_b32 s58, s57, 8'); e('s_add_u32 s58, s58, s56')
    e('s_lshl_b32 s59, s57, 6'); e('s_add_u32 s59, s59, s56'); e('s_add_u32 s59, s59, 128')
    e(f's_lshl_b32 s42, s{S_W}, 4')
    e(f'v_add_u32 v{T+8}, s42, v{T}')
    e('s_movk_i32 s56, 3072')
    e(f'v_mul_lo_u32 v{T+8}, v{T+8}, s56')
    e(f'v_and_b32 v{T+9}, 1, v{T+2}')
    e(f'v_lshlrev_b32 v{T+9}, 2, v{T+9}')
    e(f'v_xor_b32 v{T+9}, v{T+9}, v{T+1}')
    e(f'v_lshl_add_u32 v{T+8}, v{T+9}, 4, v{T+8}')
    e(f'v_add_u32 v{VWO}, s58, v{T+8}')
    e(f'v_add_u32 v{VWO+1}, {8*3072-1024}, v{VWO}')
    e(f'v_lshrrev_b32 v{T+8}, 2, v{VL}')
    e(f'v_add_u32 v{T+8}, s42, v{T+8}')
    e(f'v_mul_lo_u32 v{T+8}, v{T+8}, s56')
    e(f'v_and_b32 v{T+9}, 3, v{VL}')
    e(f'v_lshl_add_u32 v{T+8}, v{T+9}, 4, v{T+8}')
    e(f'v_add_u32 v{VW2O}, s59, v{T+8}')
    e('s_waitcnt lgkmcnt(0)')
    stamp(0)
    if o.hdiag: e(f'v_writelane_b32 v{VDIAG}, s60, 0')
    srd(g, R_X, P_X, 2048*1280)
    srd(g, R_BRE, P_BRE, 640*1280)
    srd(g, R_BIM, P_BIM, 640*1280)
    srd(g, R_WG, P_WG, 640*3072)
    srd(g, R_WU, P_WU, 640*3072)

    def p2_base(ss):
        slot = (10 + ss // 5) % 3
        sub = ss % 5
        if sub < 2: return L_X + slot*XS + sub*8192
        if sub == 2: return L_B + slot*BS
        return L_W + slot*WSZ + (sub-3)*8192
    def dma_stage(s):
        slot = s % 3; P = []; tag = f'st{s}'
        if s < 10:
            def grp(m0base, sreg, first, loads):
                def f():
                    if first: e(first)
                    e(f's_add_u32 m0, s{sreg}, {m0base}')
                return f
            P.append(lambda: (e(f's_movk_i32 s{S_K128}, {s*128}'), e(f's_add_u32 m0, s{S_W4K}, {L_X + slot*XS}')))
            for q in range(4):
                P.append(lambda q=q: g.vm(f'buffer_load_dwordx4 v{VXO+q}, s[{R_X}:{R_X+3}], s{S_K128} offen offset:{q*1024} lds', tag))
            for m in range(2):
                r = R_BRE if m == 0 else R_BIM
                def pb(m=m, r=r):
                    e(f's_add_u32 m0, s{S_W1280}, {L_B + slot*BS + m*5120}')
                    e('s_nop 0')
                    g.vm(f'buffer_load_dwordx4 v{VBO+2*m}, s[{r}:{r+3}], s{S_K128} offen lds', tag)
                def pbb(m=m, r=r):
                    e('s_mov_b64 exec, 0xffff')
                    g.vm(f'buffer_load_dwordx4 v{VBO+2*m+1}, s[{r}:{r+3}], s{S_K128} offen offset:1024 lds', tag)
                    e('s_mov_b64 exec, -1')
                P.append(pb); P.append(pbb)
            for m in range(2):
                r = R_WG if m == 0 else R_WU
                def pw(m=m):
                    e(f's_add_u32 m0, s{S_W2K}, {L_W + slot*WSZ + m*8192}')
                    if m == 0: e(f's_mov_b32 s{S_KW}, {s*64*3072}')
                    else: e('s_nop 0')
                def pw0(m=m, r=r):
                    pw(m); g.vm(f'buffer_load_dwordx4 v{VWO}, s[{r}:{r+3}], s{S_KW} offen lds', tag)
                P.append(pw0)
                P.append(lambda r=r: g.vm(f'buffer_load_dwordx4 v{VWO+1}, s[{r}:{r+3}], s{S_KW} offen offset:1024 lds', tag))
        else:
            for sub in range(5):
                ss = (s - 10) * 5 + sub
                base = p2_base(ss)
                for m in range(2):
                    r = R_WG if m == 0 else R_WU
                    def pp(base=base, m=m, ss=ss, r=r):
                        e(f's_add_u32 m0, s{S_W1K}, {base + m*4096}')
                        if m == 0: e(f's_mov_b32 s{S_KW}, {ss*64*3072}')
                        else: e('s_nop 0')
                        g.vm(f'buffer_load_dwordx4 v{VW2O}, s[{r}:{r+3}], s{S_KW} offen lds', tag)
                    P.append(pp)
        return P
    for p in dma_stage(0): p()
    GX, GW = 224, 236
    srd(g, R_T, P_GW, 1280)
    e(f'v_and_b32 v{T+8}, 31, v{VL}')
    e(f's_lshl_b32 s42, s{S_J}, 7'); e(f's_lshl_b32 s52, s{S_C}, 3'); e('s_add_u32 s42, s42, s52')
    e(f's_lshl_b32 s52, s{S_W}, 1'); e('s_add_u32 s42, s42, s52')
    e(f'v_add_u32 v{T+9}, s42, v{T+3}')
    VGT = T + 55
    e(f'v_mov_b32 v{VGT}, v{T+9}')
    e(f'v_mul_lo_u32 v{T+9}, v{T+9}, s55')
    e(f'v_lshl_add_u32 v{T+9}, v{T+8}, 4, v{T+9}')
    e(f'v_lshlrev_b32 v{T+10}, 4, v{T+8}')
    e(f'v_cmp_gt_u32 vcc, 16, v{T+8}')
    e(f'v_mov_b32 v{T+11}, 0x7fff0000')
    e(f'v_cndmask_b32 v{T+11}, v{T+11}, v{T+9}, vcc')
    g.vm(f'buffer_load_dwordx4 {vr(GX,4)}, v{T+9}, s[{R_X}:{R_X+3}], 0 offen', 'gate')
    g.vm(f'buffer_load_dwordx4 {vr(GX+4,4)}, v{T+9}, s[{R_X}:{R_X+3}], 0 offen offset:512', 'gate')
    g.vm(f'buffer_load_dwordx4 {vr(GX+8,4)}, v{T+11}, s[{R_X}:{R_X+3}], 0 offen offset:1024', 'gate')
    g.vm(f'buffer_load_dwordx4 {vr(GW,4)}, v{T+10}, s[{R_T}:{R_T+3}], 0 offen', 'gate')
    g.vm(f'buffer_load_dwordx4 {vr(GW+4,4)}, v{T+10}, s[{R_T}:{R_T+3}], 0 offen offset:512', 'gate')
    g.vm(f'buffer_load_dwordx4 {vr(GW+8,4)}, v{T+10}, s[{R_T}:{R_T+3}], 0 offen offset:1024', 'gate')
    e(f'v_add_u32 v{T+12}, 32, v{T+1}')
    e(f'v_cmp_gt_u32 vcc, 32, v{VL}')
    e('s_nop 1')
    e(f'v_cndmask_b32 v{T+12}, v{T+12}, v{VL}, vcc')
    e(f'v_add_u32 v{T+13}, s54, v{T+12}')
    e(f'v_lshlrev_b32 v{T+13}, 1, v{T+13}')
    PL = T + 52
    for k, p in enumerate((P_LRE, P_LIM, P_LDT)):
        srd(g, R_T, p, 1280)
        g.vm(f'buffer_load_ushort v{PL+k}, v{T+13}, s[{R_T}:{R_T+3}], 0 offen', 'par')
    for p in dma_stage(1): p()
    srd(g, R_WS, P_WS, WS_SIZE)
    srd(g, R_DBG, P_DBG, 256)
    e('s_memrealtime s[40:41]'); e('s_waitcnt lgkmcnt(0)')
    e('s_or_b32 s40, s40, 1')
    e(f'v_accvgpr_write_b32 a255, s40')
    e(f's_or_b32 s42, s2, s{S_W}'); e('s_cmp_lg_u32 s42, 0'); e('s_cselect_b32 s42, 0x1000, 0')
    e('s_mov_b64 exec, 1')
    g.vm(f'buffer_store_dword a255, off, s[{R_DBG}:{R_DBG+3}], s42 sc0 sc1', 'nn')
    e('s_mov_b64 exec, -1')
    for p in dma_stage(2): p()
    S_PK = 99
    e(f's_lshl_b32 s52, s2, 2'); e(f's_add_u32 s52, s52, s{S_W}')
    labS = g.newlab('PKS'); labE = g.newlab('PKE'); labN = g.newlab('PKN')
    e(f's_add_u32 m0, s{S_W4K}, {L_TH}')
    e('s_cmp_ge_u32 s52, 880'); e(f's_cbranch_scc1 {labN}')
    e('s_cmp_ge_u32 s52, 480'); e(f's_cbranch_scc1 {labS}')
    e('s_mul_i32 s53, s52, 6554'); e('s_lshr_b32 s53, s53, 16')
    e('s_mul_i32 s54, s53, 10'); e('s_sub_u32 s54, s52, s54')
    e('s_lshr_b32 s55, s53, 1'); e('s_sub_u32 s56, s53, 32'); e('s_cmp_lt_u32 s53, 32'); e('s_cselect_b32 s55, s55, s56')
    e('s_and_b32 s56, s55, 1')
    e('s_lshl_b32 s57, s56, 2'); e('s_and_b32 s58, s53, 1'); e('s_add_u32 s57, s57, s58')
    e('s_add_u32 s58, s56, 2')
    e('s_cmp_lt_u32 s53, 32'); e('s_cselect_b32 s57, s57, s58')
    e('s_lshr_b32 s55, s55, 1'); e('s_mul_i32 s55, s55, 6'); e('s_add_u32 s55, s55, s57')
    srd(g, R_T, P_WD, 1536*1280)
    e(f'v_lshrrev_b32 v{T}, 3, v{VL}'); e('s_movk_i32 s56, 1280'); e(f'v_mul_lo_u32 v{T}, v{T}, s56')
    e(f'v_and_b32 v{T+1}, 7, v{VL}'); e(f'v_lshl_add_u32 v{T}, v{T+1}, 4, v{T}')
    e('s_mul_i32 s55, s55, 40960'); e('s_lshl_b32 s56, s54, 7'); e('s_add_u32 s55, s55, s56')
    for q in range(4):
        if q: e(f'v_add_u32 v{T}, {8*1280-1024}, v{T}')
        e(f'buffer_load_dwordx4 v{T}, s[{R_T}:{R_T+3}], s55 offen offset:{q*1024} lds')
    e(f's_mov_b32 s{S_PK}, 1'); e(f's_mov_b32 s{S_PK+1}, s53'); e(f's_mov_b32 s{S_PK+2}, s54')
    e(f's_branch {labE}')
    g.label(labS)
    e('s_sub_u32 s52, s52, 480')
    e('s_cmp_ge_u32 s52, 200'); e('s_cselect_b32 s53, 1, 0')
    e('s_mul_i32 s54, s53, 200'); e('s_sub_u32 s52, s52, s54')
    e('s_mul_i32 s54, s52, 52429'); e('s_lshr_b32 s54, s54, 18')
    e('s_mul_i32 s55, s54, 5'); e('s_sub_u32 s55, s52, s55')
    e('s_cmp_lg_u32 s53, 0')
    e(f's_cselect_b32 s{R_T}, s{P_CIM}, s{P_CRE}'); e(f's_cselect_b32 s{R_T+1}, s{P_CIM+1}, s{P_CRE+1}')
    e(f's_and_b32 s{R_T+1}, s{R_T+1}, 0xffff'); e(f's_mov_b32 s{R_T+2}, {640*1280}'); e(f's_mov_b32 s{R_T+3}, 0x20000')
    e(f'v_lshrrev_b32 v{T}, 4, v{VL}'); e(f'v_and_b32 v{T+1}, 15, v{VL}')
    e('s_movk_i32 s56, 1280')
    e('s_mul_i32 s57, s54, 20480'); e('s_lshl_b32 s58, s55, 8'); e('s_add_u32 s57, s57, s58')
    for q in range(4):
        e(f'v_add_u32 v{T+2}, {4*q}, v{T}')
        e(f'v_xor_b32 v{T+3}, v{T+2}, v{T+1}')
        e(f'v_mul_lo_u32 v{T+2}, v{T+2}, s56')
        e(f'v_lshl_add_u32 v{T+2}, v{T+3}, 4, v{T+2}')
        if q: e(f'v_subrev_u32 v{T+2}, {q*1024}, v{T+2}')
        e(f'buffer_load_dwordx4 v{T+2}, s[{R_T}:{R_T+3}], s57 offen offset:{q*1024} lds')
    e('s_lshl_b32 s55, s55, 3'); e('s_add_u32 s55, s55, 48'); e('s_add_u32 s55, s55, s53')
    e(f's_mov_b32 s{S_PK}, 2'); e(f's_mov_b32 s{S_PK+1}, s55'); e(f's_mov_b32 s{S_PK+2}, s54')
    e(f's_branch {labE}')
    g.label(labN)
    e(f'v_lshlrev_b32 v{T}, 4, v{VL}')
    for q in range(4):
        e(f'buffer_load_dwordx4 v{T}, s[{R_X}:{R_X+3}], 0 offen offset:{q*1024} lds')
    e(f's_mov_b32 s{S_PK}, 0'); e(f's_mov_b32 s{S_PK+1}, 0'); e(f's_mov_b32 s{S_PK+2}, 0')
    g.label(labE)
    g.vq += ['pk'] * 4

    e(f'v_lshrrev_b32 v{T+3}, 5, v{VL}'); e(f'v_and_b32 v{T+1}, 7, v{VL}'); e(f'v_lshrrev_b32 v{T+2}, 4, v{VL}')
    e(f'v_and_b32 v{T+8}, 31, v{VL}')
    e(f'v_bfe_u32 v{T+9}, v{VL}, 1, 3')
    e(f'v_xor_b32 v{T+9}, v{T+9}, v{T+3}')
    e(f'v_lshlrev_b32 v{T+10}, 7, v{T+8}')
    for kk in range(4):
        e(f'v_xor_b32 v{T+11}, {2*kk}, v{T+9}')
        e(f'v_lshl_add_u32 v{T+11}, v{T+11}, 4, v{T+10}')
        e(f'v_add_u32 v{VXA+kk}, s{S_W4K}, v{T+11}')
        e(f'v_add_u32 v{VBR+kk}, {L_B}, v{T+11}')
    e(f'v_bfe_u32 v{T+11}, v{VL}, 3, 1')
    e(f'v_lshrrev_b32 v{T+12}, 1, v{T+1}')
    e(f'v_lshl_add_u32 v{T+12}, v{T+11}, 2, v{T+12}')
    e(f'v_xor_b32 v{T+12}, v{T+12}, v{T+3}')
    e(f'v_mul_u32_u24 v{T+13}, 5120, v{T+11}')
    e(f'v_lshl_add_u32 v{T+13}, v{T+1}, 7, v{T+13}')
    e(f'v_add_u32 v{T+13}, {L_B + 32*128}, v{T+13}')
    for kk in range(4):
        e(f'v_xor_b32 v{T+14}, {2*kk}, v{T+12}')
        e(f'v_lshl_add_u32 v{VXX+kk}, v{T+14}, 4, v{T+13}')
    e(f'v_bfe_u32 v{T+11}, v{VL}, 2, 2')
    e(f'v_lshl_add_u32 v{T+12}, v{T+3}, 3, v{T+11}')
    e(f'v_and_b32 v{T+13}, 1, v{T+2}')
    e(f'v_bfe_u32 v{T+14}, v{VL}, 1, 1')
    e(f'v_lshl_add_u32 v{T+14}, v{T+13}, 1, v{T+14}')
    e(f'v_bfe_u32 v{T+15}, v{VL}, 3, 1')
    e(f'v_lshl_add_u32 v{T+14}, v{T+15}, 2, v{T+14}')
    e(f'v_and_b32 v{T+15}, 1, v{VL}')
    e(f'v_lshlrev_b32 v{T+15}, 3, v{T+15}')
    e(f'v_lshl_add_u32 v{T+15}, v{T+12}, 7, v{T+15}')
    e(f'v_add_u32 v{T+15}, {L_W}, v{T+15}')
    e(f'v_lshl_add_u32 v{VWR}, v{T+14}, 4, v{T+15}')
    e(f'v_xor_b32 v{T+14}, 4, v{T+14}')
    e(f'v_lshl_add_u32 v{VWR+1}, v{T+14}, 4, v{T+15}')
    e(f'v_and_b32 v{T+14}, 3, v{VL}')
    e(f'v_lshlrev_b32 v{T+14}, 3, v{T+14}')
    e(f'v_lshl_add_u32 v{T+14}, v{T+13}, 5, v{T+14}')
    e(f'v_lshl_add_u32 v{VP2}, v{T+12}, 6, v{T+14}')
    e(f'v_add_u32 v{VP2+1}, 49152, v{VP2}')
    e(f'v_lshlrev_b32 v{T+11}, 4, v0')
    for k in range(4): e(f'v_mov_b32 v{T+12+k}, 0')
    e(f'v_add_u32 v{T+11}, {L_TE}, v{T+11}')
    g.lds(f'ds_write_b128 v{T+11}, {vr(T+12,4)}', 'zero')
    e(f'v_add_u32 v0, 98304, v{VP2}')

    def job_gate():
        g.wv('gate'); yield
        e('s_mov_b32 s52, 0x3f803f80'); e(f'v_mov_b32 v{T+12}, 0'); yield
        for d in range(0, 12, 2):
            for u_ in range(2):
                e(f'v_and_b32 v{T+14}, 0xffff, v{GW+d+u_}'); e(f'v_and_b32 v{T+15}, 0xffff0000, v{GW+d+u_}'); yield
                e(f'v_dot2_f32_bf16 v{T+16+2*u_}, v{GX+d+u_}, v{T+14}, 0'); e(f'v_dot2_f32_bf16 v{T+17+2*u_}, v{GX+d+u_}, v{T+15}, 0'); yield
            e('s_nop 2'); yield
            e(f'v_cvt_pk_bf16_f32 v{T+20}, v{T+16}, v{T+17}'); e(f'v_cvt_pk_bf16_f32 v{T+21}, v{T+18}, v{T+19}'); yield
            e(f'v_dot2_f32_bf16 v{T+12}, v{T+20}, s52, v{T+12}'); e(f'v_dot2_f32_bf16 v{T+12}, v{T+21}, s52, v{T+12}'); yield
        e('s_nop 2'); yield
        for sh in (1, 2, 4, 8):
            e('s_nop 1'); e(f'v_add_f32_dpp v{T+12}, v{T+12}, v{T+12} row_ror:{sh} row_mask:0xf bank_mask:0xf'); yield
        g.lds(f'ds_swizzle_b32 v{T+13}, v{T+12} offset:0x401f', 'sw'); yield
        g.wl('sw'); e(f'v_add_f32 v{T+12}, v{T+12}, v{T+13}'); yield
        e(f'v_cvt_pk_bf16_f32 v{T+12}, v{T+12}, v{T+12}'); e(f'v_lshlrev_b32 v{T+12}, 16, v{T+12}'); yield
        e(f'v_mul_f32 v{T+12}, 0xbfb8aa3b, v{T+12}'); e(f'v_exp_f32 v{T+12}, v{T+12}'); yield
        e('s_nop 0'); e(f'v_add_f32 v{T+12}, 1.0, v{T+12}'); e(f'v_rcp_f32 v{T+12}, v{T+12}'); yield
        e('s_nop 0'); e(f'v_cvt_pk_bf16_f32 v{T+12}, v{T+12}, v{T+12}'); e(f'v_lshlrev_b32 v{T+12}, 16, v{T+12}'); yield
        e(f'v_lshlrev_b32 v{T+13}, 2, v{VGT}'); e(f'v_add_u32 v{T+13}, {WS_G}, v{T+13}'); yield
        e(f'v_and_b32 v{T+14}, 31, v{VL}'); e(f'v_cmp_eq_u32 vcc, 0, v{T+14}'); yield
        e('s_and_saveexec_b64 s[52:53], vcc')
        g.vm(f'buffer_store_dword v{T+12}, v{T+13}, s[{R_WS}:{R_WS+3}], 0 offen {o.st}', 'pst')
        e('s_mov_b64 exec, s[52:53]'); yield

    def job_lambda():
        g.wv('par'); yield
        A_, B_, DT = T+8, T+9, T+10
        Q = 224
        e(f'v_lshlrev_b32 v{PL}, 16, v{PL}'); e(f'v_lshlrev_b32 v{PL+1}, 16, v{PL+1}'); yield
        e(f'v_lshlrev_b32 v{PL+2}, 16, v{PL+2}'); e(f'v_mul_f32 v{DT}, {LOG2E}, v{PL+2}'); yield
        e(f'v_exp_f32 v{DT}, v{DT}'); e('s_nop 0'); yield
        e(f'v_cvt_pk_bf16_f32 v{DT}, v{DT}, v{DT}'); e(f'v_lshlrev_b32 v{DT}, 16, v{DT}'); yield
        e(f'v_mul_f32 v{A_}, v{DT}, v{PL}'); e(f'v_mul_f32 v{B_}, v{DT}, v{PL+1}'); yield
        e(f'v_mul_f32 v{A_}, {LOG2E}, v{A_}'); e(f'v_mul_f32 v{B_}, {INV2PI}, v{B_}'); yield
        e(f'v_exp_f32 v{A_}, v{A_}'); e(f'v_fract_f32 v{B_}, v{B_}'); yield
        e('s_nop 0'); e(f'v_cos_f32 v{Q}, v{B_}'); yield
        e(f'v_sin_f32 v{Q+1}, v{B_}'); e('s_nop 0'); yield
        e(f'v_mul_f32 v{Q}, v{Q}, v{A_}'); e(f'v_mul_f32 v{Q+1}, v{Q+1}, v{A_}'); yield
        e(f'v_add_f32 v{Q+2}, -1.0, v{Q}'); e(f'v_mul_f32 v{Q+3}, v{PL}, v{PL}'); yield
        e(f'v_fmac_f32 v{Q+3}, v{PL+1}, v{PL+1}'); e(f'v_rcp_f32 v{Q+3}, v{Q+3}'); yield
        e(f'v_mul_f32 v{Q+4}, v{Q+2}, v{PL}'); e(f'v_fmac_f32 v{Q+4}, v{Q+1}, v{PL+1}'); yield
        e(f'v_mul_f32 v{Q+5}, v{Q+1}, v{PL}'); e(f'v_fma_f32 v{Q+5}, -v{Q+2}, v{PL+1}, v{Q+5}'); yield
        e(f'v_mul_f32 v{CFR}, v{Q+4}, v{Q+3}'); e(f'v_mul_f32 v{CFI}, v{Q+5}, v{Q+3}'); yield
        cur = (Q, Q+1)
        slots = {2: (Q+6, Q+7), 4: (Q+8, Q+9), 8: (Q+6, Q+7), 16: (Q+10, Q+11), 32: (Q+12, Q+13), 64: (Q+14, Q+15),
                 128: (D128R, D128I), 256: (Q+6, Q+7), 512: (D512R, D512I)}
        for n_ in (2, 4, 8, 16, 32, 64, 128, 256, 512):
            ro, io = slots[n_]
            cmul_sq(cur[0], cur[1], ro, io, Q+16); cur = (ro, io); yield
        Z = Q + 18
        e(f's_and_b32 s52, s{S_W}, 1'); e('s_cmp_lg_u32 s52, 0'); e('s_cselect_b64 s[52:53], -1, 0'); yield
        e(f'v_mov_b32 v{Z}, 1.0'); e(f'v_mov_b32 v{Z+1}, 0'); yield
        e(f'v_cndmask_b32 v{Z}, v{Z}, v{Q+12}, s[52:53]'); e(f'v_cndmask_b32 v{Z+1}, v{Z+1}, v{Q+13}, s[52:53]'); yield
        e(f's_and_b32 s52, s{S_W}, 2'); e('s_cmp_lg_u32 s52, 0'); e('s_cselect_b64 s[52:53], -1, 0'); yield
        e(f'v_mov_b32 v{Z+2}, 1.0'); e(f'v_mov_b32 v{Z+3}, 0'); yield
        e(f'v_cndmask_b32 v{Z+2}, v{Z+2}, v{Q+14}, s[52:53]'); e(f'v_cndmask_b32 v{Z+3}, v{Z+3}, v{Q+15}, s[52:53]'); yield
        cmul(Z, Z+1, Z+2, Z+3, Z+4, Z+5); yield
        cmul(Z+4, Z+5, Q+10, Q+11, Z+6, Z+7); yield
        for a_, b_, d1, d2 in ((Q, Q, LR, XLR), (Q+1, Q+1, LI, XLI), (Q+10, Q+10, L16R, XL16R), (Q+11, Q+11, L16I, XL16I),
                               (Z+4, Z+6, PWR, XPWR), (Z+5, Z+7, PWI, XPWI)):
            redis(a_, b_, d1, d2); yield
        e(f'v_mov_b32 v{XCFR}, v{CFR}'); e(f'v_mov_b32 v{XCFI}, v{CFI}'); e('s_nop 1'); yield
        e(f'v_permlane32_swap_b32 v{CFR}, v{XCFR}'); e(f'v_permlane32_swap_b32 v{CFI}, v{XCFI}'); yield

    def job_pack():
        g.wv('pk'); yield
        labS = g.newlab('PJS'); labE = g.newlab('PJE')
        e(f's_cmp_eq_u32 s{S_PK}, 2'); e(f's_cbranch_scc1 {labS}')
        e(f'v_lshrrev_b32 v{T+2}, 5, v{VL}'); e(f'v_lshlrev_b32 v{T+2}, 4, v{T+2}')
        e(f'v_bfe_u32 v{T+3}, v{VL}, 4, 1'); e(f'v_lshl_add_u32 v{T+2}, v{T+3}, 2, v{T+2}')
        e(f'v_bfe_u32 v{T+3}, v{VL}, 2, 2'); e(f'v_add_u32 v{T+2}, v{T+2}, v{T+3}')
        e(f'v_lshlrev_b32 v{T+2}, 7, v{T+2}')
        e(f'v_and_b32 v{T+3}, 3, v{VL}'); e(f'v_lshl_add_u32 v{T+2}, v{T+3}, 3, v{T+2}')
        e(f'v_add_u32 v{T+2}, s{S_W4K}, v{T+2}'); e(f'v_add_u32 v{T+2}, {L_TH}, v{T+2}')
        for tp in range(4):
            e(f'ds_read_b64_tr_b16 {vr(T+8+4*tp,2)}, v{T+2} offset:{tp*32}')
            e(f'ds_read_b64_tr_b16 {vr(T+10+4*tp,2)}, v{T+2} offset:{tp*32 + 8*128}')
        e(f's_branch {labE}')
        g.label(labS)
        e(f'v_and_b32 v{T+1}, 15, v{VL}'); e(f'v_lshrrev_b32 v{T}, 4, v{VL}')
        e(f'v_lshlrev_b32 v{T+2}, 8, v{T+1}'); e(f'v_add_u32 v{T+2}, s{S_W4K}, v{T+2}'); e(f'v_add_u32 v{T+2}, {L_TH}, v{T+2}')
        for tp in range(4):
            e(f'v_add_u32 v{T+3}, {4*tp}, v{T}'); e(f'v_xor_b32 v{T+3}, v{T+3}, v{T+1}')
            e(f'v_lshl_add_u32 v{T+3}, v{T+3}, 4, v{T+2}')
            e(f'ds_read_b128 {vr(T+8+4*tp,4)}, v{T+3}')
            e(f'ds_read_b128 {vr(T+8+4*tp,4)}, v{T+3}') if False else None
        for tp in range(4):
            e(f'ds_read_b32 v{T+24+tp}, v{T+2}')
        g.label(labE)
        g.lq += ['pkr'] * 8
        yield
        g.wl('pkr'); e(f'v_lshlrev_b32 v{T+4}, 4, v{VL}'); yield
        for tp in range(4):
            e(f's_lshl_b32 s52, s{S_PK+2}, 2'); e(f's_add_u32 s52, s52, {tp}')
            e(f's_add_u32 s53, s{S_PK+1}, {2*tp}')
            e(f's_cmp_eq_u32 s{S_PK}, 2'); e(f's_cselect_b32 s52, s{S_PK+2}, s52'); e(f's_cselect_b32 s53, s53, s{S_PK+1}'); yield
            e('s_mul_i32 s54, s52, 52429'); e('s_lshr_b32 s54, s54, 18')
            e('s_mul_i32 s55, s54, 5'); e('s_sub_u32 s55, s52, s55'); yield
            e('s_mul_i32 s54, s54, 88'); e('s_add_u32 s54, s54, s53'); e('s_mul_i32 s54, s54, 5'); e('s_add_u32 s54, s54, s55'); yield
            e('s_lshl_b32 s54, s54, 10'); e(f's_add_u32 s54, s54, {WS_W2}')
            e(f's_cmp_eq_u32 s{S_PK}, 0'); e('s_cselect_b32 s54, 0x7ff00000, s54')
            g.vm(f'buffer_store_dwordx4 {vr(T+8+4*tp,4)}, v{T+4}, s[{R_WS}:{R_WS+3}], s54 offen {o.st}', 'pst'); yield

    def job_nonce_load():
        g.vm(f'buffer_load_dword v{VNON}, off, s[{R_DBG}:{R_DBG+3}], 0 sc0 sc1', 'non'); yield
    def job_nonce_check():
        g.wv('non')
        lab = g.newlab('NP'); lab2 = g.newlab('NPD')
        e(f's_mov_b32 s60, {SPIN_MAX}')
        g.label(lab)
        e(f'v_readfirstlane_b32 s{S_NON}, v{VNON}'); e('s_nop 3')
        e(f's_cmp_lg_u32 s{S_NON}, 0'); e(f's_cbranch_scc1 {lab2}')
        e('s_sub_u32 s60, s60, 1'); e('s_cmp_eq_u32 s60, 0'); e(f's_cbranch_scc1 {lab2}')
        e('s_sleep 2')
        e(f'buffer_load_dword v{VNON}, off, s[{R_DBG}:{R_DBG+3}], 0 sc0 sc1'); e('s_waitcnt vmcnt(0)')
        e(f's_branch {lab}')
        g.label(lab2)
        yield

    def flag_atom(fn):
        fn()
        e(f's_cmp_lg_u32 s{S_W}, 0'); e('s_cselect_b32 s60, 0x7ff00000, s60')
        e(f'v_accvgpr_write_b32 a255, s{S_NON}')
        e('s_mov_b64 exec, 1')
        g.vm(f'buffer_store_dword a255, off, s[{R_WS}:{R_WS+3}], s60 sc0 sc1', 'flag')
        e('s_mov_b64 exec, -1')
    def off_FP(): e('s_lshl_b32 s60, s2, 2'); e(f's_add_u32 s60, s60, {WS_FP}')
    def off_F(kind):
        def f():
            e(f's_lshl_b32 s60, s{S_J}, 7'); e(f's_lshl_b32 s61, s{S_C}, 2'); e('s_add_u32 s60, s60, s61'); e(f's_add_u32 s60, s60, {WS_FL + kind*2048}')
        return f

    tiles = ['R', 'I', 'X', 'G0', 'G1', 'U0', 'U1']
    accs = {'R': aR, 'I': aI, 'X': aX, 'G0': aG[0], 'G1': aG[1], 'U0': aU[0], 'U1': aU[1]}
    def reads(K):
        s, kk = divmod(K, 4); slot = s % 3; fs = AF[K % 2]
        R = []
        R.append((f'x{K}', f'ds_read_b128 {ar(AX+4*K,4)}, v{VXA+kk} offset:{slot*XS}'))
        R.append((f'R{K}', f'ds_read_b128 {ar(fs,4)}, v{VBR+kk} offset:{slot*BS}'))
        R.append((f'I{K}', f'ds_read_b128 {ar(fs+4,4)}, v{VBR+(kk^2)} offset:{slot*BS+5120}'))
        R.append((f'X{K}', f'ds_read_b128 {ar(fs+8,4)}, v{VXX+kk} offset:{slot*BS}'))
        for m in range(2):
            for ft in range(2):
                t = ('G', 'U')[m] + str(ft)
                fr = fs + 12 + 4*(2*m+ft)
                for rd in range(2):
                    R.append((f'{t}{K}', f'ds_read_b64_tr_b16 {ar(fr+2*rd,2)}, v{VWR+ft} offset:{slot*WSZ + m*8192 + kk*2048 + rd*512}'))
        return R
    def mfma1(t, K):
        fs = AF[K % 2]; x = ar(AX+4*K, 4); d = vr(accs[t], 16); cc = d if K else '0'
        idx = tiles.index(t); f = ar(fs + 4*idx, 4)
        if idx < 3: e(f'v_mfma_f32_32x32x16_bf16 {d}, {x}, {f}, {cc}')
        else:       e(f'v_mfma_f32_32x32x16_bf16 {d}, {f}, {x}, {cc}')

    F.add(job_gate()); F.add(job_nonce_load()); F.add(job_lambda()); F.add(job_pack()); F.add(job_nonce_check())
    g.wl0()
    n = g.wv_n('st0')
    e(f's_waitcnt vmcnt({n})')
    e('s_barrier')
    stamp(1)
    for tg, tx in reads(0): g.lds(tx, tg)
    pend = []; gapi = 0
    for K in range(40):
        s, kk = divmod(K, 4)
        nxt = reads(K+1) if K < 39 else []
        gaps = [[] for _ in range(7)]
        if kk < 3:
            for i_, rd in enumerate(nxt): gaps[i_ // 2].append(rd)
        else:
            for i_, rd in enumerate(nxt): gaps[3 + i_ // 3].append(rd)
        for ti, t in enumerate(tiles):
            need = [f'{t}{K}'] + ([f'x{K}'] if ti == 0 else [])
            if ti % 2 == 0:
                if ti + 1 < 7: need.append(f'{tiles[ti+1]}{K}')
                g.wl(need)
            mfma1(t, K)
            n0 = g.n
            if kk == 3 and ti == 2:
                tags = [f'st{s+1}']
                if s == o.fp_stage: tags.append('pst')
                nv = g.wv_n(tags)
                g.lq = []
                stg_pre()
                e(f's_waitcnt vmcnt({nv}) lgkmcnt(0)' if nv is not None else 's_waitcnt lgkmcnt(0)')
                e('s_barrier')
                stg_post()
                F.barrier()
                if s == o.fp_stage:
                    assert F.empty(), 'pass-1 jobs must be finished before the pack flag'
                    flag_atom(off_FP)
                assert not pend
                if s + 3 <= 11: pend = dma_stage(s + 3)
                ngap = 27; issued = 0; gapi = 0; npend = len(pend)
            for tg, tx in gaps[ti]: g.lds(tx, tg)
            if pend and not (kk == 3 and ti <= 2):
                gapi += 1
                want = -(-npend * gapi // 25)
                while pend and issued < want:
                    pend.pop(0)(); issued += 1
            if not o.nofill and not (kk == 3 and ti in (1, 2)):
                F.run(o.p1_budget - (g.n - n0))
    assert not pend
    if o.nofill: F.drain()
    assert F.empty()
    stamp(2)

    def glu_epi(q, tag):
        Gr, Ur = aG[q], aU[q]
        H = T + 16
        for p in range(8):
            if o.mimic:
                e(f'v_cvt_pk_bf16_f32 v{T}, v{Gr+2*p}, v{Gr+2*p+1}'); e(f'v_cvt_pk_bf16_f32 v{T+1}, v{Ur+2*p}, v{Ur+2*p+1}'); yield
                e(f'v_lshlrev_b32 v{T+2}, 16, v{T}'); e(f'v_and_b32 v{T+3}, 0xffff0000, v{T}'); yield
                e(f'v_lshlrev_b32 v{T+4}, 16, v{T+1}'); e(f'v_and_b32 v{T+5}, 0xffff0000, v{T+1}'); yield
                e(f'v_mul_f32 v{T+2}, v{T+2}, v{T+4}'); e(f'v_mul_f32 v{T+3}, v{T+3}, v{T+5}'); yield
            else:
                e(f'v_mul_f32 v{T+2}, v{Gr+2*p}, v{Ur+2*p}'); e(f'v_mul_f32 v{T+3}, v{Gr+2*p+1}, v{Ur+2*p+1}'); yield
            e(f'v_cvt_pk_bf16_f32 v{H+p}, v{T+2}, v{T+3}'); yield
        if q < 2: e(f's_lshl_b32 s52, s{S_C}, 1'); e(f's_add_u32 s52, s52, {q}')
        else: e(f's_add_u32 s52, s{S_C}, 32')
        e(f's_lshl_b32 s53, s{S_J}, 3'); e(f's_lshl_b32 s54, s{S_W}, 1'); yield
        e('s_add_u32 s53, s53, s54'); e('s_mul_i32 s53, s53, 88'); e('s_add_u32 s52, s52, s53'); e('s_lshl_b32 s52, s52, 10'); yield
        g.vm(f'buffer_store_dwordx4 {vr(H,4)}, v{VHO}, s[{R_WS}:{R_WS+3}], s52 offen {o.st}', tag); yield
        g.vm(f'buffer_store_dwordx4 {vr(H+4,4)}, v{VHO}, s[{R_WS}:{R_WS+3}], s52 offen offset:512 {o.st}', tag); e('s_nop 1'); yield

    def job_hoaddr():
        e(f'v_bfe_u32 v{T}, v{VL}, 4, 1'); e(f'v_mul_u32_u24 v{T}, {88*1024}, v{T}'); yield
        e(f'v_lshrrev_b32 v{T+1}, 5, v{VL}'); e(f'v_lshl_add_u32 v{T}, v{T+1}, 8, v{T}'); yield
        e(f'v_and_b32 v{T+1}, 15, v{VL}'); e(f'v_lshl_add_u32 v{VHO}, v{T+1}, 4, v{T}'); yield

    E_RD = T + 16; E_RX = T + 32
    def job_aggr2():
        er, ei, tr_, ti_ = T, T+1, T+2, T+3
        XB = T+4; xo, xt = T+5, T+6
        e(f'v_mov_b32 v{er}, v{aR}'); e(f'v_mov_b32 v{ei}, v{aI}'); yield
        e(f'v_bfe_u32 v{T+7}, v{VL}, 3, 1'); e(f'v_cmp_eq_u32 s[56:57], 1, v{T+7}'); yield
        e(f'v_sub_f32 v{XB}, 0, v{XLI}'); e(f'v_mov_b32 v{xo}, v{aX}'); e(f'v_cndmask_b32 v{XB}, v{XB}, v{XLI}, s[56:57]'); yield
        cur = (er, ei); alt = (tr_, ti_); xc, xa = xo, xt
        for r in range(1, 16):
            e(f'v_fma_f32 v{xa}, v{XLR}, v{xc}, v{aX+r}')
            e(f'v_fma_f32 v{alt[0]}, v{LR}, v{cur[0]}, v{aR+r}'); yield
            e(f'v_fma_f32 v{alt[1]}, v{LR}, v{cur[1]}, v{aI+r}')
            e(f'v_fma_f32 v{alt[0]}, -v{LI}, v{cur[1]}, v{alt[0]}'); yield
            e(f'v_fmac_f32 v{alt[1]}, v{LI}, v{cur[0]}')
            e(f'v_fmac_f32_dpp v{xa}, v{xc}, v{XB} row_ror:8 row_mask:0xf bank_mask:0xf'); yield
            cur, alt = alt, cur; xc, xa = xa, xc
        e(f'v_lshrrev_b32 v{T+8}, 5, v{VL}'); e(f's_lshl_b32 s52, s{S_W}, 1'); e('s_add_u32 s52, s52, 7'); yield
        e(f'v_add_u32 v{T+8}, s52, v{T+8}'); e(f'v_lshlrev_b32 v{T+8}, 9, v{T+8}'); yield
        e(f'v_add_u32 v{T+8}, {L_TE}, v{T+8}'); e(f'v_and_b32 v{T+9}, 31, v{VL}'); yield
        e(f'v_lshl_add_u32 v{T+10}, v{T+9}, 3, v{T+8}')
        g.lds(f'ds_write_b64 v{T+10}, {vr(cur[0],2)}', 'ew'); yield
        e(f'v_and_b32 v{T+11}, 7, v{VL}'); e(f'v_lshl_add_u32 v{T+11}, v{T+11}, 3, v{T+8}'); yield
        e(f'v_add_u32 v{T+11}, 256, v{T+11}'); e(f'v_lshl_add_u32 v{T+12}, v{T+7}, 2, v{T+11}'); yield
        e(f'v_cmp_gt_u32 vcc, 16, v{T+9}')
        e('s_and_saveexec_b64 s[52:53], vcc')
        g.lds(f'ds_write_b32 v{T+12}, v{xc}', 'ew')
        e('s_mov_b64 exec, s[52:53]'); yield
        e(f'v_subrev_u32 v{T+13}, {7*512}, v{T+10}'); e(f'v_subrev_u32 v{T+14}, {7*512}, v{T+11}'); yield 'p2_bar'
        g.lds(f'ds_read_b64 {vr(E_RD,2)}, v{T+10}', 'er'); yield
        for m in range(1, 8):
            g.lds(f'ds_read_b64 {vr(E_RD+2*m,2)}, v{T+13} offset:{(7-m)*512}', 'er'); yield
        g.wl('er'); yield
        def horner(RDb, lr, li, pr_, pi2):
            cur = (RDb+14, RDb+15); alt = (T+48, T+49); alt2 = (T+50, T+51)
            for m in range(6, 0, -1):
                dst = (pr_, pi2) if m == 1 else (alt if cur != alt else alt2)
                e(f'v_fma_f32 v{dst[0]}, v{lr}, v{cur[0]}, v{RDb+2*m}'); e(f'v_fma_f32 v{dst[1]}, v{lr}, v{cur[1]}, v{RDb+2*m+1}'); yield
                e(f'v_fma_f32 v{dst[0]}, -v{li}, v{cur[1]}, v{dst[0]}'); e(f'v_fmac_f32 v{dst[1]}, v{li}, v{cur[0]}'); yield
                cur = dst
        g.lds(f'ds_read_b64 {vr(E_RX,2)}, v{T+11}', 'ex'); yield
        for m in range(1, 8):
            g.lds(f'ds_read_b64 {vr(E_RX+2*m,2)}, v{T+14} offset:{(7-m)*512}', 'ex'); yield
        yield from horner(E_RD, L16R, L16I, PR, PI)
        g.wl('ex'); yield
        yield from horner(E_RX, XL16R, XL16I, XPR, XPI)
        cfma(L16R, L16I, PR, PI, E_RD, E_RD+1, T+48, T+50); yield
        cfma(XL16R, XL16I, XPR, XPI, E_RX, E_RX+1, T+20, T+22); yield
        e(f'v_mov_b32 v{T+49}, s{S_NON}'); e(f'v_mov_b32 v{T+51}, s{S_NON}'); yield
        e(f'v_mov_b32 v{T+21}, s{S_NON}'); e(f'v_mov_b32 v{T+23}, s{S_NON}'); yield
        e(f's_lshl_b32 s52, s{S_C}, 4'); e(f's_add_u32 s52, s52, s{S_J}'); e('s_mul_i32 s52, s52, 640'); e(f's_add_u32 s52, s52, {WS_EP}'); yield
        e(f's_cmp_lg_u32 s{S_W}, 3'); e('s_cselect_b32 s52, 0x7ff00000, s52'); e(f'v_lshlrev_b32 v{T+12}, 4, v{T+9}'); yield
        e('s_mov_b32 exec_lo, 0')
        g.vm(f'buffer_store_dwordx4 {vr(T+48,4)}, v{T+12}, s[{R_WS}:{R_WS+3}], s52 offen sc0 sc1', 'pub')
        e('s_mov_b32 exec_hi, 0xff')
        g.vm(f'buffer_store_dwordx4 {vr(T+20,4)}, v{T+12}, s[{R_WS}:{R_WS+3}], s52 offen offset:512 sc0 sc1', 'pub')
        e('s_mov_b64 exec, -1'); yield

    NS = 22
    SLOT = G2_SLOT
    def g2_issue_w(S):
        tag = f'w{S}'; P = []
        def w0():
            e(f's_add_u32 m0, s{S_W5K}, {SLOT[S % 4]}'); e(f's_add_u32 s42, s{S_W2B}, {S*4*5120}')
            g.vm(f'buffer_load_dwordx4 v{VAO2}, s[{R_WS}:{R_WS+3}], s42 offen {o.ld} lds', tag)
        P.append(w0)
        for t in range(1, 4):
            P.append(lambda t=t: g.vm(f'buffer_load_dwordx4 v{VAO2}, s[{R_WS}:{R_WS+3}], s42 offen offset:{t*1024} {o.ld} lds', tag))
        def w4():
            e(f's_add_u32 m0, s{S_W5K}, {SLOT[S % 4] + 4096}'); e('s_add_u32 s42, s42, 4096')
            g.vm(f'buffer_load_dwordx4 v{VAO2}, s[{R_WS}:{R_WS+3}], s42 offen {o.ld} lds', tag)
        P.append(w4)
        return P
    def g2_issue_a(S):
        tag = f'a{S}'; P = []
        def a0():
            e(f's_add_u32 s45, s{S_A2}, {S*4096}')
            g.vm(f'buffer_load_dwordx4 {ar(G2A + 16*(S % 4), 4)}, v{VAO2}, s[{R_WS}:{R_WS+3}], s45 offen {o.ld}', tag)
        P.append(a0)
        for k in range(1, 4):
            P.append(lambda k=k: g.vm(f'buffer_load_dwordx4 {ar(G2A + 16*(S % 4) + 4*k, 4)}, v{VAO2}, s[{R_WS}:{R_WS+3}], s45 offen offset:{k*1024} {o.ld}', tag))
        return P
    def job_g2setup():
        e(f'v_lshlrev_b32 v{VAO2}, 4, v{VL}'); yield
        e(f's_lshl_b32 s{S_A2}, s{S_TB}, 2'); e(f's_add_u32 s{S_A2}, s{S_A2}, s{S_W}'); e(f's_mul_i32 s{S_A2}, s{S_A2}, {88*1024}'); yield
        e(f's_mul_i32 s{S_W2B}, s{S_DB}, 88'); e(f's_add_u32 s{S_W2B}, s{S_W2B}, s{S_W}'); e(f's_mul_i32 s{S_W2B}, s{S_W2B}, 5120'); e(f's_add_u32 s{S_W2B}, s{S_W2B}, {WS_W2}'); yield
        e(f's_mul_i32 s{S_W5K}, s{S_W}, 5120'); yield
        e(f'v_mov_b32 v{VRD[0]}, v{VAO2}'); e(f'v_add_u32 v{VRD[1]}, 49152, v{VAO2}'); e(f'v_add_u32 v{VRD[2]}, 100352, v{VAO2}'); yield
        e(f'v_add_u32 v{VFL}, {WS_FP}, v{VAO2}')
        g.vm(f'buffer_load_dwordx4 {vr(T+52,4)}, v{VFL}, s[{R_WS}:{R_WS+3}], 0 offen sc1', 'fp'); yield
    def flag_addr(kind):
        e(f's_lshr_b32 s60, s{S_TB}, 1'); e('s_lshl_b32 s60, s60, 7'); e(f's_add_u32 s60, s60, {WS_FL + kind*2048}')
        e(f'v_and_b32 v{VFL}, 15, v{VL}'); e(f'v_lshlrev_b32 v{VFL}, 2, v{VFL}'); e(f'v_add_u32 v{VFL}, s60, v{VFL}')

    def reads2(K):
        ss, kk = divmod(K, 4); base = p2_base(ss); fs = AF[K % 2]
        b = base // 49152
        off = base - b*49152
        breg = (VP2, VP2+1, 0)[b]
        R = []
        for m in range(2):
            for rd in range(2):
                R.append((f'p{m}_{K}', f'ds_read_b64_tr_b16 {ar(fs+4*m+2*rd,2)}, v{breg} offset:{off + m*4096 + kk*1024 + rd*256}'))
        return R
    def chain(*gens):
        for x in gens: yield from x
    F.add(job_hoaddr()); F.add(glu_epi(0, 'hA')); F.add(glu_epi(1, 'hA')); F.add(job_g2setup()); F.add(job_aggr2())
    e('s_nop 7')
    for tg, tx in reads2(0): g.lds(tx, tg)
    pend = []
    F2 = Fill(g)
    def job_pre():
        spin_flags(VFL, T+52, 4, 'fp'); yield
        for S in range(3):
            for p in g2_issue_w(S):
                p(); yield
        flag_addr(0)
        g.vm(f'buffer_load_dword v{T+52}, v{VFL}, s[{R_WS}:{R_WS+3}], 0 offen sc1', 'fa'); yield
        yield 'p2_late'
        spin_flags(VFL, T+52, 1, 'fa'); yield
        for S in range(3):
            for p in g2_issue_a(S):
                p(); yield
    KB2 = o.p2_ebar
    for K in range(40):
        fs = AF[K % 2]; x = ar(AX+4*K, 4)
        nxt = reads2(K+1) if K < 39 else []
        for m in range(2):
            g.wl(f'p{m}_{K}')
            d = vr((aG[2], aU[2])[m], 16); cc = d if K else '0'
            e(f'v_mfma_f32_32x32x16_bf16 {d}, {ar(fs+4*m,4)}, {x}, {cc}')
            n0 = g.n
            if K == 19 and m == 0:
                assert 'hA' in g.vq
                nv = g.wv_n(['st11', 'hA'])
                g.lq = []
                stg_pre()
                e(f's_waitcnt vmcnt({nv}) lgkmcnt(0)')
                e('s_barrier')
                stg_post()
                flag_atom(off_F(0))
                F2.add(job_pre())
            if K == KB2 and m == 0:
                while F.blocked != 'p2_bar': F.step()
                stg_pre()
                g.wl0()
                e('s_barrier')
                stg_post()
                F.release('p2_bar')
            if K == 34 and m == 0: F2.release('p2_late')
            for tg, tx in nxt[2*m:2*m+2]: g.lds(tx, tg)
            if K >= 19: F2.run(2)
            F.run(o.p2_budget - (g.n - n0))
        if K == 18:
            while g.vq.count('hA') < 4: F.step()
    F.drain()
    F2.release('p2_late'); F2.drain()
    e('s_nop 7'); e('s_nop 3')
    stamp(3)
    for _ in glu_epi(2, 'hB'): pass
    stamp(4)

    def job_tail():
        e(f'v_and_b32 v{T}, 7, v{VL}'); e(f'v_add_u32 v{T}, 32, v{T}'); yield
        e(f'v_cmp_gt_u32 vcc, 32, v{VL}'); e('s_nop 1'); e(f'v_cndmask_b32 v{T}, v{T}, v{VL}, vcc'); e(f'v_lshlrev_b32 v{T}, 4, v{T}'); yield
        EL = T + 8
        for mp in range(4):
            e(f's_lshl_b32 s52, s{S_W}, 2'); e(f's_add_u32 s52, s52, {1+mp}'); e(f's_cmp_ge_u32 s{S_J}, s52')
            e(f's_cselect_b32 s{56+mp}, s{S_NON}, 0'); e('s_cselect_b32 s53, 0, 0x7ff00000'); yield
            e(f's_sub_u32 s52, s{S_J}, s52'); e('s_and_b32 s52, s52, 15'); e(f's_lshl_b32 s54, s{S_C}, 4'); yield
            e('s_add_u32 s52, s52, s54'); e('s_mul_i32 s52, s52, 640'); e(f's_add_u32 s52, s52, {WS_EP}'); yield
            e('s_add_u32 s52, s52, s53'); e(f'v_add_u32 v{T+1+mp}, s52, v{T}'); yield
        for mp in range(4):
            g.vm(f'buffer_load_dwordx4 {vr(EL+4*mp,4)}, v{T+1+mp}, s[{R_WS}:{R_WS+3}], 0 offen sc0 sc1', 'el'); yield
        yield 'nextbar'
        lab = g.newlab('LB'); lab2 = g.newlab('LBD')
        g.wv('el')
        e(f's_mov_b32 s61, {SPIN_MAX}')
        g.label(lab)
        e('s_mov_b64 s[52:53], 0')
        for mp in range(4):
            e(f'v_cmp_ne_u32 vcc, s{56+mp}, v{EL+4*mp+1}'); e('s_or_b64 s[52:53], s[52:53], vcc')
            e(f'v_cmp_ne_u32 vcc, s{56+mp}, v{EL+4*mp+3}'); e('s_or_b64 s[52:53], s[52:53], vcc')
        e('s_cmp_eq_u64 s[52:53], 0'); e(f's_cbranch_scc1 {lab2}')
        e('s_sub_u32 s61, s61, 1'); e('s_cmp_eq_u32 s61, 0'); e(f's_cbranch_scc1 {lab2}')
        e('s_sleep 1')
        for mp in range(4):
            e(f'buffer_load_dwordx4 {vr(EL+4*mp,4)}, v{T+1+mp}, s[{R_WS}:{R_WS+3}], 0 offen sc0 sc1')
        e('s_waitcnt vmcnt(0)')
        e(f's_branch {lab}')
        g.label(lab2); yield
        cfma(D128R, D128I, EL+12, EL+14, EL+8, EL+10, T+24, T+25); yield
        cfma(D128R, D128I, T+24, T+25, EL+4, EL+6, T+26, T+27); yield
        cfma(D128R, D128I, T+26, T+27, EL, EL+2, T+24, T+25); yield
        e(f'v_lshlrev_b32 v{T+5}, 3, v{VL}'); e(f's_lshl_b32 s52, s{S_W}, 9'); e(f's_add_u32 s52, s52, {L_TQ}'); yield
        e(f'v_add_u32 v{T+6}, s52, v{T+5}')
        g.lds(f'ds_write_b64 v{T+6}, {vr(T+24,2)}', 'q'); yield
        e(f'v_add_u32 v{T+5}, {L_TQ}, v{T+5}'); yield 'nextbar'
        for k in range(4):
            g.lds(f'ds_read_b64 {vr(T+28+2*k,2)}, v{T+5} offset:{k*512}', 'qr'); yield
        g.wl('qr'); yield
        cfma(D512R, D512I, T+34, T+35, T+32, T+33, T+24, T+25); yield
        cfma(D512R, D512I, T+24, T+25, T+30, T+31, T+26, T+27); yield
        cfma(D512R, D512I, T+26, T+27, T+28, T+29, T+24, T+25); yield
        CR, CI, XCR, XCI = T+36, T+37, T+38, T+39
        redis(T+24, T+24, CR, XCR); yield
        redis(T+25, T+25, CI, XCI); yield
        cfma(PWR, PWI, CR, CI, PR, PI, T+40, T+41); yield
        cfma(XPWR, XPWI, XCR, XCI, XPR, XPI, T+42, T+43); yield
        XB = T+4; NLI = T+8
        e(f'v_bfe_u32 v{T+7}, v{VL}, 3, 1'); e(f'v_cmp_eq_u32 s[56:57], 1, v{T+7}'); yield
        e(f'v_sub_f32 v{XB}, 0, v{XLI}'); e(f'v_sub_f32 v{NLI}, 0, v{LI}'); yield
        e(f'v_cndmask_b32 v{XB}, v{XB}, v{XLI}, s[56:57]'); e(f'v_cndmask_b32 v{T+44}, v{T+42}, v{T+43}, s[56:57]'); yield
        hr, hi, xp = T+40, T+41, T+44
        for r in range(16):
            e(f'v_fmac_f32 v{aX+r}, v{XLR}, v{xp}'); e(f'v_fmac_f32 v{aR+r}, v{LR}, v{hr}'); yield
            e(f'v_fmac_f32 v{aI+r}, v{LR}, v{hi}'); e(f'v_fmac_f32 v{aR+r}, v{NLI}, v{hi}'); yield
            e(f'v_fmac_f32 v{aI+r}, v{LI}, v{hr}')
            e(f'v_fmac_f32_dpp v{aX+r}, v{xp}, v{XB} row_ror:8 row_mask:0xf bank_mask:0xf'); yield
            hr, hi, xp = aR+r, aI+r, aX+r
        XA, XBb = T+9, T+10
        e(f'v_sub_f32 v{XA}, 0, v{XCFR}'); e(f'v_sub_f32 v{XBb}, 0, v{XCFI}'); yield
        e(f'v_cndmask_b32 v{XA}, v{XCFR}, v{XA}, s[56:57]'); yield
        PK = T + 12
        for p in range(8):
            r = 2*p
            e(f'v_pk_mul_f32 {vr(T+40,2)}, {vr(aR+r,2)}, {vr(CFR,2)} op_sel_hi:[1,0]')
            e(f'v_pk_mul_f32 {vr(T+42,2)}, {vr(aI+r,2)}, {vr(CFR,2)} op_sel_hi:[1,0]'); yield
            e(f'v_pk_fma_f32 {vr(T+40,2)}, {vr(aI+r,2)}, {vr(CFR,2)}, {vr(T+40,2)} op_sel:[0,1,0] op_sel_hi:[1,1,1] neg_lo:[0,1,0] neg_hi:[0,1,0]')
            e(f'v_pk_fma_f32 {vr(T+42,2)}, {vr(aR+r,2)}, {vr(CFR,2)}, {vr(T+42,2)} op_sel:[0,1,0] op_sel_hi:[1,1,1]'); yield
            e(f'v_mul_f32 v{T+44}, v{XA}, v{aX+r}'); e(f'v_mul_f32 v{T+45}, v{XA}, v{aX+r+1}'); yield
            e(f'v_fmac_f32_dpp v{T+44}, v{aX+r}, v{XBb} row_ror:8 row_mask:0xf bank_mask:0xf')
            e(f'v_fmac_f32_dpp v{T+45}, v{aX+r+1}, v{XBb} row_ror:8 row_mask:0xf bank_mask:0xf'); yield
            e(f'v_cvt_pk_bf16_f32 v{PK+p}, v{T+40}, v{T+41}'); e(f'v_cvt_pk_bf16_f32 v{PK+8+p}, -v{T+42}, -v{T+43}'); yield
            e(f'v_cvt_pk_bf16_f32 v{PK+16+p}, v{T+44}, v{T+45}'); yield
        e(f's_mul_i32 s52, s{S_W}, {TH_W}'); e(f's_add_u32 s52, s52, {L_TH}'); e(f'v_and_b32 v{T}, 31, v{VL}'); yield
        e(f'v_mul_u32_u24 v{T+1}, {TH_PITCH}, v{T}'); e(f'v_lshrrev_b32 v{T+2}, 5, v{VL}'); yield
        e(f'v_lshl_add_u32 v{T+1}, v{T+2}, 5, v{T+1}'); e(f'v_add_u32 v{T+1}, s52, v{T+1}'); yield
        for cmp_ in range(2):
            for k in range(4):
                g.lds(f'ds_write_b64 v{T+1}, {vr(PK+8*cmp_+2*k,2)} offset:{cmp_*32*TH_PITCH + k*8}', 'tw'); yield
        e(f'v_cmp_gt_u32 vcc, 16, v{T}')
        e('s_and_saveexec_b64 s[54:55], vcc')
        for k in range(4):
            g.lds(f'ds_write_b64 v{T+1}, {vr(PK+16+2*k,2)} offset:{64*TH_PITCH + k*8}', 'tw')
        e('s_mov_b64 exec, s[54:55]'); yield
        e(f'v_bfe_u32 v{T+2}, v{VL}, 2, 2'); e(f'v_lshrrev_b32 v{T+3}, 5, v{VL}'); yield
        e(f'v_lshl_add_u32 v{T+4}, v{T+3}, 5, v{T+2}'); e(f'v_lshl_add_u32 v{T+5}, v{T+3}, 3, v{T+2}'); yield
        e(f'v_and_b32 v{T+6}, 1, v{VL}'); e(f'v_lshlrev_b32 v{T+6}, 5, v{T+6}'); yield
        e(f'v_bfe_u32 v{T+7}, v{VL}, 4, 1'); e(f'v_lshl_add_u32 v{T+6}, v{T+7}, 4, v{T+6}'); yield
        e(f'v_bfe_u32 v{T+7}, v{VL}, 1, 1'); e(f'v_lshl_add_u32 v{T+6}, v{T+7}, 3, v{T+6}'); yield
        e(f'v_add_u32 v{T+6}, s52, v{T+6}'); e(f's_movk_i32 s53, {TH_PITCH}'); yield
        e(f'v_mad_u32_u24 v{T+4}, v{T+4}, s53, v{T+6}'); e(f'v_mad_u32_u24 v{T+5}, v{T+5}, s53, v{T+6}'); yield
        g.wl('tw'); yield
        HO = T + 32
        for u in range(5):
            for rd in range(2):
                if u < 4: g.lds(f'ds_read_b64_tr_b16 {vr(HO+4*u+2*rd,2)}, v{T+4} offset:{(8*u + 4*rd)*TH_PITCH}', 'tr')
                else:     g.lds(f'ds_read_b64_tr_b16 {vr(HO+4*u+2*rd,2)}, v{T+5} offset:{(64 + 4*rd)*TH_PITCH}', 'tr')
                yield
        e(f'v_bfe_u32 v{T}, v{VL}, 4, 1'); e(f'v_mul_u32_u24 v{T}, {88*1024}, v{T}'); yield
        e(f'v_lshl_add_u32 v{T}, v{T+3}, 10, v{T}'); e(f'v_and_b32 v{T+1}, 15, v{VL}'); yield
        e(f'v_lshl_add_u32 v{T}, v{T+1}, 4, v{T}'); e(f's_lshl_b32 s53, s{S_J}, 3'); e(f's_lshl_b32 s54, s{S_W}, 1'); yield
        e('s_add_u32 s53, s53, s54'); e('s_mul_i32 s53, s53, 88'); e(f's_mul_i32 s54, s{S_C}, 5'); yield
        g.wl('tr'); yield
        for u in range(5):
            e(f's_add_u32 s55, s54, {u}'); e('s_lshr_b32 s56, s55, 2'); e('s_lshl_b32 s56, s56, 1'); e('s_add_u32 s56, s56, s53'); yield
            e('s_add_u32 s56, s56, 48'); e('s_lshl_b32 s56, s56, 10'); e('s_and_b32 s55, s55, 3'); e('s_lshl_b32 s55, s55, 8'); yield
            e('s_add_u32 s56, s56, s55')
            g.vm(f'buffer_store_dwordx4 {vr(HO+4*u,4)}, v{T}, s[{R_WS}:{R_WS+3}], s56 offen {o.st}', 'hC'); yield
        yield 'tail_done_mark'

    def job_epi_loads():
        srd(g, R_T, P_DSK, 1280); yield
        e(f's_lshl_b32 s52, s{S_TB}, 6'); e(f's_lshr_b32 s53, s{S_W}, 1'); e('s_lshl_b32 s53, s53, 5'); e('s_add_u32 s52, s52, s53'); yield
        e(f's_and_b32 s53, s{S_W}, 1'); e('s_lshl_b32 s53, s53, 3'); e('s_add_u32 s52, s52, s53'); yield
        e(f'v_bfe_u32 v{VTOK}, v{VL}, 4, 1'); e(f'v_lshlrev_b32 v{VTOK}, 4, v{VTOK}'); yield
        e(f'v_lshrrev_b32 v{VD}, 5, v{VL}'); e(f'v_lshl_add_u32 v{VTOK}, v{VD}, 2, v{VTOK}'); yield
        e(f'v_add_u32 v{VTOK}, s52, v{VTOK}'); e(f'v_and_b32 v{VD}, 15, v{VL}'); yield
        e(f's_mul_i32 s53, s{S_DB}, 80'); e(f'v_add_u32 v{VD}, s53, v{VD}'); yield
        e(f'v_lshlrev_b32 v{XV}, 2, v{VTOK}'); e(f'v_add_u32 v{XV}, {WS_G}, v{XV}')
        g.vm(f'buffer_load_dwordx4 {vr(GV,4)}, v{XV}, s[{R_WS}:{R_WS+3}], 0 offen sc1', 'ep'); yield
        e('s_movk_i32 s53, 1280'); e(f'v_mul_lo_u32 v{DV+5}, v{VTOK}, s53'); e(f'v_lshl_add_u32 v{DV+5}, v{VD}, 1, v{DV+5}'); yield
        for r in range(4):
            for t in range(5):
                g.vm(f'buffer_load_ushort v{XV+5*r+t}, v{DV+5}, s[{R_X}:{R_X+3}], 0 offen offset:{r*1280 + t*32}', 'ep'); yield
        e(f'v_lshlrev_b32 v{DV+6}, 1, v{VD}'); yield
        for t in range(5):
            g.vm(f'buffer_load_ushort v{DV+t}, v{DV+6}, s[{R_T}:{R_T+3}], 0 offen offset:{t*32}', 'ep'); yield

    def breads(S, k):
        fs = G2B + 20*((4*S + k) % 2)
        sl = S % 4
        base, o0 = {0: (VRD[0], 0), 1: (VRD[1], 79872-49152), 2: (VRD[1], 0), 3: (VRD[2], 0)}[sl]
        return [(f'b{S}_{k}_{t}', f'ds_read_b128 {ar(fs+4*t,4)}, v{base} offset:{o0 + k*5120 + t*1024}') for t in range(5)]
    F.add(job_tail())
    nv = g.wv_n(['w0', 'a0'])
    g.lq = []
    e(f's_waitcnt vmcnt({nv}) lgkmcnt(0)')
    e('s_barrier')
    stamp(5)
    for p in g2_issue_w(3) + g2_issue_a(3): p()
    for tg, tx in breads(0, 0): g.lds(tx, tg)
    pend = []
    FL2 = Fill(g)
    tail_flagged = False; hB_flagged = False; epi_added = False
    for S in range(NS):
        for k in range(4):
            ks = 4*S + k
            acc = aB_ if ks < 48 else aA_
            first = ks in (0, 48)
            last_k = (k == 3)
            nxt = [] if last_k else breads(S, k+1)
            fs = G2B + 20*(ks % 2)
            for t in range(5):
                if t % 2 == 0:
                    g.wl([f'b{S}_{k}_{t}'] + ([f'b{S}_{k}_{t+1}'] if t < 4 else []))
                d = vr(acc+4*t, 4); cc = '0' if first else d
                e(f'v_mfma_f32_16x16x32_bf16 {d}, {ar(G2A + 16*(S % 4) + 4*k, 4)}, {ar(fs+4*t,4)}, {cc}')
                n0 = g.n
                if last_k and t == 1 and S + 1 < NS:
                    tags = [f'w{S+1}', f'a{S+1}']
                    if S == 1: tags.append('hB')
                    if F.blocked == 'tail_done_mark' and not tail_flagged: tags.append('hC')
                    nv = g.wv_n(tags)
                    g.lq = []
                    if S < 20: stg_pre()
                    e(f's_waitcnt vmcnt({nv}) lgkmcnt(0)' if nv is not None else 's_waitcnt lgkmcnt(0)')
                    e('s_barrier')
                    if S < 20: stg_post()
                    F.barrier()
                    if S == 1: flag_atom(off_F(1))
                    if F.blocked == 'tail_done_mark' and not tail_flagged:
                        flag_atom(off_F(2)); tail_flagged = True; F.release('tail_done_mark')
                        o.tail_stage = S
                    nxt = breads(S+1, 0)
                    assert not pend
                    if S + 4 < NS:
                        pend = g2_issue_w(S + 4)
                        if S + 4 == 8 or S + 4 == 12:
                            pend.append(lambda: spin_flags(VFL, DV+7, 1, 'fx'))
                        pend += g2_issue_a(S + 4)
                        if S + 5 == 8 or S + 5 == 12:
                            kind = 1 if S + 5 == 8 else 2
                            def pre(kind=kind):
                                flag_addr(kind)
                                g.vm(f'buffer_load_dword v{DV+7}, v{VFL}, s[{R_WS}:{R_WS+3}], 0 offen sc1', 'fx')
                            pend.append(pre)
                if last_k:
                    if t >= 2 and nxt:
                        for _ in range(2 if t < 4 else 1):
                            if nxt:
                                tg, tx = nxt.pop(0); g.lds(tx, tg)
                else:
                    tg, tx = nxt[t]; g.lds(tx, tg)
                if pend and not (last_k and t < 2) and t % 2 == 0:
                    pend.pop(0)()
                if not (last_k and t <= 1):
                    F.run(o.g2_budget - (g.n - n0))
            if k == 2:
                while pend: pend.pop(0)()
        if F.empty() and not epi_added and S >= 12:
            F.add(job_epi_loads()); epi_added = True
    assert tail_flagged, 'tail not finished in time'
    assert epi_added
    F.drain()
    e('s_nop 7'); e('s_nop 3')
    stamp(6)
    g.wall()
    OG = T + 8
    srd(g, R_T, P_OUT, 2048*2560)
    for r in range(4):
        e(f'v_sub_f32 v{OG+r}, 1.0, v{GV+r}')
        e(f'v_cvt_pk_bf16_f32 v{OG+r}, v{OG+r}, v{OG+r}')
        e(f'v_lshlrev_b32 v{OG+r}, 16, v{OG+r}')
    for t in range(5): e(f'v_lshlrev_b32 v{DV+t}, 16, v{DV+t}')
    e('s_movk_i32 s53, 2560')
    e(f'v_mul_lo_u32 v{T}, v{VTOK}, s53'); e(f'v_lshl_add_u32 v{T}, v{VD}, 2, v{T}')
    e(f'v_add_u32 v{T+1}, {2*2560}, v{T}')
    for t in range(5):
        for r in range(4):
            xv = XV + 5*r + t; b = aB_ + 4*t + r; a = aA_ + 4*t + r
            e(f'v_lshlrev_b32 v{xv}, 16, v{xv}')
            e(f'v_mul_f32 v{xv}, v{xv}, v{DV+t}')
            e(f'v_cvt_pk_bf16_f32 v{b}, v{b}, v{xv}')
            e(f'v_and_b32 v{xv}, 0xffff0000, v{b}')
            e(f'v_lshlrev_b32 v{b}, 16, v{b}')
            e(f'v_fmac_f32 v{xv}, 2.0, v{a}')
            e(f'v_mul_f32 v{b}, v{OG+r}, v{b}')
            e(f'v_cvt_pk_bf16_f32 v{b}, v{b}, v{b}')
            e(f'v_lshlrev_b32 v{b}, 16, v{b}')
            e(f'v_fmac_f32 v{b}, v{GV+r}, v{xv}')
            base = T if r < 2 else T+1
            g.vm(f'buffer_store_dword v{b}, v{base}, s[{R_T}:{R_T+3}], 0 offen offset:{(r % 2)*2560 + t*64}', 'o')
    if o.hdiag:
        g.wv0()
        stamp(7)
        e(f's_lshl_b32 s42, s2, 2'); e(f's_add_u32 s42, s42, s{S_W}'); e('s_lshl_b32 s42, s42, 8'); e(f's_add_u32 s42, s42, {WS_DIAG}')
        e(f'v_lshlrev_b32 v{T}, 2, v{VL}')
        e(f'buffer_store_dword v{VDIAG}, v{T}, s[{R_WS}:{R_WS+3}], s42 offen')
        lab = g.newlab('HD')
        e(f's_or_b32 s42, s2, s{S_W}'); e('s_cmp_lg_u32 s42, 0'); e(f's_cbranch_scc1 {lab}')
        e('s_mov_b64 exec, 0xff')
        e(f'buffer_store_dword v{VDIAG}, v{T}, s[{R_DBG}:{R_DBG+3}], 0 offen offset:4')
        e('s_mov_b64 exec, -1')
        g.label(lab)
    g.label('K_END')
    e('s_endpgm')
    return g

HEADER = open('cdna_kernels/%s.s.ref' % NAME).read().split('; Override launch geometry')[0]

def build(o):
    k = gen(o)
    s = HEADER
    s += f'; @launch grid=(256,1,1) block=(256,1,1) lds={LDS}\n'
    s += '.amdgcn_target "amdgcn-amd-amdhsa--gfx950"\n.text\n'
    s += f'.globl {KN}\n.p2align 8\n.type {KN},@function\n{KN}:\n' + k.text()
    s += 'CODE_END:\n.fill 64, 4, 0xBF800000\n'
    s += f'''.section .rodata,"a"
.p2align 6
.amdhsa_kernel {KN}
  .amdhsa_next_free_vgpr 512
  .amdhsa_next_free_sgpr 102
  .amdhsa_accum_offset 256
  .amdhsa_group_segment_fixed_size 0
  .amdhsa_kernarg_size 136
  .amdhsa_user_sgpr_count 2
  .amdhsa_user_sgpr_kernarg_segment_ptr 1
  .amdhsa_system_sgpr_workgroup_id_x 1
.end_amdhsa_kernel
'''
    return s

if __name__ == '__main__':
    o = Opt()
    for a in sys.argv[2:]:
        k, v = a.split('=', 1)
        setattr(o, k, eval(v))
    open(sys.argv[1], 'w').write(build(o))
    print('tail flagged at stage', getattr(o, 'tail_stage', None))
```

```python
from collections import deque
class G:
    VMEM_COST = 4
    def __init__(s):
        s.L = []
        s.lq = []
        s.vq = []
        s.nlab = 0
        s.n = 0
    def e(s, t):
        for ln in t.split('\n'):
            ln = ln.strip()
            if ln:
                s.L.append(ln)
                if not (ln.endswith(':') or ln.startswith('.') or ln.startswith(';')):
                    c = 1
                    if ln.startswith('v_mfma'): c = 2
                    elif ln.startswith('buffer_') or ln.startswith('global_'): c = G.VMEM_COST
                    elif ln.startswith('s_nop'): c = int(ln.split()[1]) + 1
                    elif ln.split()[0] in ('v_exp_f32', 'v_rcp_f32', 'v_sin_f32', 'v_cos_f32', 'v_log_f32', 'v_sqrt_f32', 'v_rsq_f32'): c = 2
                    s.n += c
    def c(s, t): s.L.append('; ' + t)
    def label(s, name): s.L.append(name + ':')
    def newlab(s, p='L'):
        s.nlab += 1
        return '%s_%d' % (p, s.nlab)
    def lds(s, t, tag=None):
        s.e(t); s.lq.append(tag)
        assert len(s.lq) <= 64
    def _idx(s, q, tags):
        if not isinstance(tags, (list, tuple, set)): tags = [tags]
        idx = -1
        for i, t in enumerate(q):
            if t in tags: idx = i
        return idx
    def wl(s, tags):
        idx = s._idx(s.lq, tags)
        if idx < 0: return False
        n = len(s.lq) - 1 - idx
        if n > 15: n = 15
        s.e('s_waitcnt lgkmcnt(%d)' % n)
        s.lq = s.lq[len(s.lq)-n:] if n else []
        return True
    def wl0(s):
        s.e('s_waitcnt lgkmcnt(0)'); s.lq = []
    def vm(s, t, tag=None):
        s.e(t); s.vq.append(tag)
    def wv(s, tags):
        n = s.wv_n(tags)
        if n is None: return False
        s.e('s_waitcnt vmcnt(%d)' % n)
        return True
    def wv_n(s, tags):
        idx = s._idx(s.vq, tags)
        if idx < 0: return None
        n = len(s.vq) - 1 - idx
        assert n <= 63, n
        s.vq = s.vq[idx+1:]
        return n
    def wv0(s):
        s.e('s_waitcnt vmcnt(0)'); s.vq = []
    def wall(s):
        s.e('s_waitcnt vmcnt(0) lgkmcnt(0)'); s.vq = []; s.lq = []
    def text(s):
        out = []
        L2 = []
        for ln in s.L:
            if ln.startswith('v_mfma') and L2 and L2[-1].startswith('v_pk_'):
                L2.append('s_nop 0')
            L2.append(ln)
        for ln in L2:
            if ln.endswith(':') or ln.startswith('.') or ln.startswith(';'): out.append(ln)
            else: out.append('    ' + ln)
        return '\n'.join(out) + '\n'

class Fill:
    def __init__(s, g):
        s.g = g; s.q = deque(); s.blocked = None; s.done = set(); s.skip = 0
    def add(s, gen, name=''): s.q.append([gen, name])
    def step(s):
        while s.q:
            gen, name = s.q[0]
            try:
                r = next(gen)
            except StopIteration:
                s.q.popleft(); continue
            if isinstance(r, str) and r not in s.done:
                s.blocked = r
            elif isinstance(r, int) and not isinstance(r, bool):
                s.skip = r
            return True
        return False
    def run(s, budget):
        if s.blocked: return
        if s.skip > 0:
            s.skip -= 1
            return
        n0 = s.g.n
        while s.g.n - n0 < budget:
            if s.blocked or s.skip > 0 or not s.step(): break
    def release(s, ev):
        s.done.add(ev)
        if s.blocked == ev: s.blocked = None
    def barrier(s):
        if s.blocked == 'nextbar': s.blocked = None
    def drain(s):
        while s.q:
            assert not s.blocked, s.blocked
            s.skip = 0
            s.step()
    def empty(s): return not s.q

def vr(a, n=1):
    return 'v%d' % a if n == 1 else 'v[%d:%d]' % (a, a + n - 1)
def ar(a, n=1):
    return 'a%d' % a if n == 1 else 'a[%d:%d]' % (a, a + n - 1)
def sr(a, n=1):
    return 's%d' % a if n == 1 else 's[%d:%d]' % (a, a + n - 1)
```

```python
import sys
from asmlib import G, Fill, vr, ar, sr

NAME = 'gated_mix__ssm_conv_s5__glu_gated_bilinear__prompt'
KN = NAME + '_kernel'
WS_A2   = 0x0
WS_W2   = 0xB00000
WS_G    = 0xE70000
WS_EP   = 0xE80000
WS_FL   = 0xEC0000
WS_FP   = WS_FL + 0x2000
WS_DIAG = 0xF00000
WS_SIZE = 0x1000000
L_X = 0; L_B = 49152; L_W = 79872; L_S = 129024
XS = 16384; BS = 10240; WSZ = 16384
L_TE = L_S
L_TQ = L_S + 7680
L_TH = L_S + 9728
TH_PITCH = 72
TH_W = 80 * TH_PITCH
G2_SLOT = [0, 79872, 49152, 100352]
LDS = 163840
LOG2E = 0x3fb8aa3b
INV2PI = 0x3e22f983
SPIN_MAX = 40000

class Opt:
    hdiag = False
    stg = False
    stg2 = False
    mimic = False
    st = 'sc1'
    ld = 'sc1'
    p1_budget = 6
    p2_budget = 5
    g2_budget = 7
    touch = False
    rot = True
    prefill = False
    align = 1000
    pk_stage = 0
    fc_delay = 3
    st_gap = 8
    x_nohc = False
    x_notail = False
    chk_b = 4
    chk_c = 9
    chk_g = 15
    nofill = False
    p2_ebar = 27
    fp_stage = 5
    lam_first = 22
    p2_fa = 31

P_X, P_LRE, P_LIM, P_BRE, P_BIM, P_CRE, P_CIM, P_LDT = 64, 66, 68, 70, 72, 74, 76, 78
P_DSK, P_BX, P_WG, P_WU, P_WD, P_GW, P_OUT, P_DBG, P_WS = 80, 82, 84, 86, 88, 90, 92, 94, 96
S_W, S_J, S_C = 4, 5, 6
R_X, R_BRE, R_BIM, R_WG, R_WU, R_WS, R_T, R_DBG = 8, 12, 16, 20, 24, 28, 32, 36
S_K128, S_KW = 43, 45
S_W4K, S_W1280, S_W2K, S_W1K = 46, 47, 48, 49
S_NON = 50
S_PH, S_PH2 = 64, 65
S_TB, S_DB, S_A2, S_W2B, S_W5K = 3, 7, 44, 51, 98
S_HQ = 66; S_PUB = 69; S_FO = 70; S_FPO = 73
S_EL = 84; S_TAG = (88, 89, 94, 95); S_HC = 74; S_CF = 79; S_FPB = 96; S_FG = 97

def srd(g, d, ptr, nbytes):
    g.e(f's_mov_b32 s{d}, s{ptr}')
    g.e(f's_and_b32 s{d+1}, s{ptr+1}, 0xffff')
    g.e(f's_mov_b32 s{d+2}, {nbytes}')
    g.e(f's_mov_b32 s{d+3}, 0x20000')

def gen(o):
    g = G(); e = g.e
    F = Fill(g)
    VL = 1
    VXO = 2; VBO = 6; VWO = 10; VW2O = 12
    VXA = 13; VBR = 17; VXX = 21; VWR = 25; VP2 = 27
    VDIAG = 29; VNON = 30; VHO = 31
    LR, LI, L16R, L16I, PWR, PWI, CFR, CFI = range(32, 40)
    XLR, XLI, XL16R, XL16I, XPWR, XPWI, XCFR, XCFI = range(40, 48)
    D128R, D128I, D512R, D512I = range(48, 52)
    PR, PI, XPR, XPI = range(52, 56)
    T = 56
    aR, aI, aX = 112, 128, 144
    aG = [160, 176, 224]; aU = [192, 208, 240]
    AX = 0; AF = [160, 188]; APF = 216
    G2A = 0
    G2B = 64
    aB_, aA_ = 160, 180
    XV = 200; GV = 220; DV = 224
    VAO2 = 2; VRD = [3, 4, 5]; VTOK = 6; VD = 7; VFL = 8

    def stamp(idx):
        if not o.hdiag: return
        g.wl0()
        e('s_memrealtime s[40:41]')
        e('s_memtime s[62:63]')
        e('s_waitcnt lgkmcnt(0)')
        e(f'v_writelane_b32 v{VDIAG}, s40, {idx}')
        e(f'v_writelane_b32 v{VDIAG}, s62, {idx+16}')

    stgn = [0]
    def stg_pre():
        if o.stg: e('s_memtime s[62:63]')
    def stg_post():
        if o.stg:
            e(f'v_writelane_b32 v{VDIAG}, s62, {32 + stgn[0]}'); stgn[0] += 1
    def cmul_sq(r, i, ro, io, t):
        e(f'v_mul_f32 v{t}, v{r}, v{r}')
        e(f'v_add_f32 v{io}, v{r}, v{r}')
        e(f'v_fma_f32 v{ro}, -v{i}, v{i}, v{t}')
        e(f'v_mul_f32 v{io}, v{io}, v{i}')
    def cmul(ar_, ai, br, bi, ro, io):
        e(f'v_mul_f32 v{ro}, v{ar_}, v{br}')
        e(f'v_mul_f32 v{io}, v{ar_}, v{bi}')
        e(f'v_fma_f32 v{ro}, -v{ai}, v{bi}, v{ro}')
        e(f'v_fmac_f32 v{io}, v{ai}, v{br}')
    def cfma(lr, li, hr, hi, ur, ui, ro, io):
        e(f'v_fma_f32 v{ro}, v{lr}, v{hr}, v{ur}')
        e(f'v_fma_f32 v{io}, v{lr}, v{hi}, v{ui}')
        e(f'v_fma_f32 v{ro}, -v{li}, v{hi}, v{ro}')
        e(f'v_fmac_f32 v{io}, v{li}, v{hr}')
    def redis(srcA, srcB, dRI, dX):
        e(f'v_mov_b32 v{dRI}, v{srcA}'); e(f'v_mov_b32 v{dX}, v{srcB}')
        e('s_nop 1')
        e(f'v_permlane32_swap_b32 v{dRI}, v{dX}')
    def spin_flags(ldtext, vdst, ndw, tag):
        lab = g.newlab('SP'); lab2 = g.newlab('SPD')
        g.wv(tag)
        e(f's_cmp_lg_u32 s{S_W}, 0'); e(f's_cbranch_scc1 {lab2}')
        e(f's_mov_b32 s60, {SPIN_MAX}')
        g.label(lab)
        e(f'v_cmp_ne_u32 s[100:101], s{S_NON}, v{vdst}')
        for k in range(1, ndw):
            e(f'v_cmp_ne_u32 vcc, s{S_NON}, v{vdst+k}')
            e(f's_or_b64 s[100:101], s[100:101], vcc')
        e('s_nop 0')
        e('s_cmp_eq_u64 s[100:101], 0')
        e(f's_cbranch_scc1 {lab2}')
        e('s_sub_u32 s60, s60, 1'); e('s_cmp_eq_u32 s60, 0')
        e(f's_cbranch_scc1 {lab2}')
        e('s_sleep 4')
        e(ldtext)
        e('s_waitcnt vmcnt(0)')
        e(f's_branch {lab}')
        g.label(lab2)

    e('s_cmp_ge_u32 s2, 256')
    e('s_cbranch_scc1 K_END')
    e('s_load_dwordx16 s[64:79], s[0:1], 0')
    e('s_load_dwordx16 s[80:95], s[0:1], 64')
    e('s_load_dwordx2 s[96:97], s[0:1], 128')
    if o.hdiag: e('s_memrealtime s[100:101]')
    e('s_getpc_b64 s[40:41]')
    g.label('K_PC')
    e(f'v_and_b32 v{VL}, 63, v0')
    e('v_lshrrev_b32 v56, 6, v0')
    e('s_lshr_b32 s3, s2, 3')
    e('s_lshl_b32 s3, s3, 11')
    e('v_lshlrev_b32 v57, 3, v0')
    e('v_add_u32 v57, s3, v57')
    e('v_min_u32 v57, CODE_END-K_PC-8, v57')
    g.vm(f'global_load_dwordx2 {ar(APF,2)}, v57, s[40:41]', 'pf')
    e(f'v_readfirstlane_b32 s{S_W}, v56')
    if o.hdiag: e(f'v_mov_b32 v{VDIAG}, 0')
    e('s_and_b32 s3, s2, 7'); e('s_lshr_b32 s7, s2, 3')
    e(f's_and_b32 s{S_J}, s3, 1'); e(f's_lshl_b32 s{S_J}, s{S_J}, 3')
    e('s_and_b32 s42, s7, 7'); e(f's_add_u32 s{S_J}, s{S_J}, s42')
    e(f's_lshr_b32 s{S_C}, s3, 1'); e(f's_lshl_b32 s{S_C}, s{S_C}, 2')
    e('s_lshr_b32 s42, s7, 3'); e(f's_add_u32 s{S_C}, s{S_C}, s42')
    e(f's_and_b32 s60, s{S_J}, 7'); e(f's_and_b32 s61, s{S_C}, 3'); e('s_mul_i32 s61, s61, 3'); e('s_add_u32 s60, s60, s61')
    e('s_sub_u32 s61, s60, 10'); e('s_cmp_ge_u32 s60, 10'); e('s_cselect_b32 s60, s61, s60')
    if not o.rot: e('s_mov_b32 s60, 0')
    e('s_and_b32 s52, s3, 3'); e('s_lshl_b32 s52, s52, 3'); e('s_and_b32 s42, s7, 7'); e('s_add_u32 s52, s52, s42')
    e('s_lshr_b32 s53, s3, 2'); e('s_lshl_b32 s53, s53, 2'); e('s_lshr_b32 s42, s7, 3'); e('s_add_u32 s53, s53, s42')
    e(f's_mov_b32 s{S_TB}, s52'); e(f's_mov_b32 s{S_DB}, s53')
    e(f's_lshl_b32 s{S_W4K}, s{S_W}, 12')
    e(f's_lshl_b32 s{S_W2K}, s{S_W}, 11'); e(f's_lshl_b32 s{S_W1K}, s{S_W}, 10')
    e(f'v_lshrrev_b32 v{T}, 3, v{VL}')
    e(f'v_and_b32 v{T+1}, 7, v{VL}')
    e(f'v_lshrrev_b32 v{T+2}, 4, v{VL}')
    e(f'v_lshrrev_b32 v{T+3}, 5, v{VL}')
    e(f'v_and_b32 v{T+4}, 3, v{T}')
    e(f'v_lshl_add_u32 v{T+5}, v{T+3}, 4, v{T+4}')
    e(f's_lshl_b32 s42, s{S_J}, 7'); e(f's_lshl_b32 s43, s{S_W}, 5'); e('s_add_u32 s42, s42, s43')
    e(f'v_add_u32 v{T+5}, s42, v{T+5}')
    e('s_movk_i32 s55, 1280')
    e(f'v_mul_lo_u32 v{T+5}, v{T+5}, s55')
    e(f'v_xor_b32 v{T+6}, v{T+1}, v{T+2}')
    e(f'v_xor_b32 v{T+7}, 4, v{T+6}')
    for q in range(4):
        e(f'v_lshl_add_u32 v{VXO+q}, v{T+6+(q&1)}, 4, v{T+5}')
        if q: e(f'v_add_u32 v{VXO+q}, {q*4096}, v{VXO+q}')
    e(f's_and_b32 s42, s{S_W}, 1'); e('s_mul_i32 s42, s42, 20')
    e(f'v_add_u32 v{T+8}, s42, v{T}')
    e(f's_mul_i32 s54, s{S_C}, 40')
    e(f's_lshr_b32 s53, s{S_W}, 1'); e('s_lshl_b32 s53, s53, 2')
    for b in range(3):
        if b: e(f'v_add_u32 v{T+8}, 8, v{T+8}')
        e(f'v_bfe_u32 v{T+9}, v{T+8}, 1, 3')
        e(f'v_xor_b32 v{T+9}, v{T+9}, v{T+1}')
        e(f'v_xor_b32 v{T+9}, s53, v{T+9}')
        e(f'v_add_u32 v{T+10}, s54, v{T+8}')
        e(f'v_mul_lo_u32 v{T+10}, v{T+10}, s55')
        if b: e(f'v_subrev_u32 v{T+10}, {b*1024}, v{T+10}')
        e(f'v_lshl_add_u32 v{VBO+b}, v{T+9}, 4, v{T+10}')
    e(f's_lshr_b32 s{S_W1280}, s{S_W}, 1'); e(f's_mul_i32 s{S_W1280}, s{S_W1280}, 5120'); e(f's_and_b32 s42, s{S_W}, 1'); e('s_mul_i32 s42, s42, 2560'); e(f's_add_u32 s{S_W1280}, s{S_W1280}, s42')
    e(f's_lshr_b32 s56, s{S_C}, 1'); e('s_mul_i32 s56, s56, 384')
    e(f's_and_b32 s57, s{S_C}, 1')
    e('s_lshl_b32 s58, s57, 8'); e('s_add_u32 s58, s58, s56')
    e('s_lshl_b32 s59, s57, 6'); e('s_add_u32 s59, s59, s56'); e('s_add_u32 s59, s59, 128')
    e(f's_lshl_b32 s42, s{S_W}, 4')
    e(f'v_add_u32 v{T+8}, s42, v{T}')
    e('s_movk_i32 s56, 3072')
    e(f'v_mul_lo_u32 v{T+8}, v{T+8}, s56')
    e(f'v_and_b32 v{T+9}, 1, v{T+2}')
    e(f'v_lshlrev_b32 v{T+9}, 2, v{T+9}')
    e(f'v_xor_b32 v{T+9}, v{T+9}, v{T+1}')
    e(f'v_lshl_add_u32 v{T+8}, v{T+9}, 4, v{T+8}')
    e(f'v_add_u32 v{VWO}, s58, v{T+8}')
    e(f'v_add_u32 v{VWO+1}, {8*3072-1024}, v{VWO}')
    e(f'v_lshrrev_b32 v{T+8}, 2, v{VL}')
    e(f'v_add_u32 v{T+8}, s42, v{T+8}')
    e(f'v_mul_lo_u32 v{T+8}, v{T+8}, s56')
    e(f'v_and_b32 v{T+9}, 3, v{VL}')
    e(f'v_lshl_add_u32 v{T+8}, v{T+9}, 4, v{T+8}')
    e(f'v_add_u32 v{VW2O}, s59, v{T+8}')
    e('s_waitcnt lgkmcnt(0)')
    stamp(0)
    if o.hdiag: e(f'v_writelane_b32 v{VDIAG}, s100, 0')
    def p2_base(ss):
        slot = (10 + ss // 5) % 3
        sub = ss % 5
        if sub < 2: return L_X + slot*XS + sub*8192
        if sub == 2: return L_B + slot*BS
        return L_W + slot*WSZ + (sub-3)*8192
    def dma_stage(s):
        slot = s % 3; P = []; tag = f'st{s}'
        if s < 10:
            def grp(m0base, sreg, first, loads):
                def f():
                    if first: e(first)
                    e(f's_add_u32 m0, s{sreg}, {m0base}')
                return f
            def px0():
                e(f's_add_u32 m0, s{S_W4K}, {L_X + slot*XS}'); e(f's_lshl_b32 s{S_K128}, s{S_PH}, 7')
                g.vm(f'buffer_load_dwordx4 v{VXO}, s[{R_X}:{R_X+3}], s{S_K128} offen lds', tag)
            P.append(px0)
            for q in range(1, 4):
                P.append(lambda q=q: g.vm(f'buffer_load_dwordx4 v{VXO+q}, s[{R_X}:{R_X+3}], s{S_K128} offen offset:{q*1024} lds', tag))
            def pb0():
                e(f's_add_u32 m0, s{S_W1280}, {L_B + slot*BS}')
                e('s_nop 0')
                g.vm(f'buffer_load_dwordx4 v{VBO}, s[{R_BRE}:{R_BRE+3}], s{S_K128} offen lds', tag)
            def pb2():
                e('s_mov_b32 exec_hi, 0')
                g.vm(f'buffer_load_dwordx4 v{VBO+2}, s[{R_BRE}:{R_BRE+3}], s{S_K128} offen offset:2048 lds', tag)
                e('s_mov_b32 exec_hi, -1')
            P.append(pb0)
            P.append(lambda: g.vm(f'buffer_load_dwordx4 v{VBO+1}, s[{R_BRE}:{R_BRE+3}], s{S_K128} offen offset:1024 lds', tag))
            P.append(pb2)
            for m in range(2):
                r = R_WG if m == 0 else R_WU
                def pw(m=m):
                    e(f's_add_u32 m0, s{S_W2K}, {L_W + slot*WSZ + m*8192}')
                    if m == 0: e(f's_mul_i32 s{S_KW}, s{S_PH}, {64*3072}')
                    else: e('s_nop 0')
                def pw0(m=m, r=r):
                    pw(m); g.vm(f'buffer_load_dwordx4 v{VWO}, s[{r}:{r+3}], s{S_KW} offen lds', tag)
                P.append(pw0)
                def pw1(m=m, r=r):
                    g.vm(f'buffer_load_dwordx4 v{VWO+1}, s[{r}:{r+3}], s{S_KW} offen offset:1024 lds', tag)
                    if m == 1:
                        e(f's_add_u32 s{S_PH}, s{S_PH}, 1'); e(f's_cmp_eq_u32 s{S_PH}, 10'); e(f's_cselect_b32 s{S_PH}, 0, s{S_PH}')
                P.append(pw1)
        else:
            for sub in range(5):
                ss = (s - 10) * 5 + sub
                base = p2_base(ss)
                for m in range(2):
                    r = R_WG if m == 0 else R_WU
                    def pp(base=base, m=m, ss=ss, r=r):
                        e(f's_add_u32 m0, s{S_W1K}, {base + m*4096}')
                        if m == 0: e(f's_mul_i32 s{S_KW}, s{S_PH2}, {64*3072}')
                        else: e('s_nop 0')
                        g.vm(f'buffer_load_dwordx4 v{VW2O}, s[{r}:{r+3}], s{S_KW} offen lds', tag)
                        if m == 1:
                            e(f's_add_u32 s{S_PH2}, s{S_PH2}, 1'); e(f's_cmp_eq_u32 s{S_PH2}, 10'); e(f's_cselect_b32 s{S_PH2}, 0, s{S_PH2}')
                    P.append(pp)
        return P
    GX, GW = 224, 236
    VGT = T + 55
    PL = T + 52
    VPK = T + 24
    def job_ldsaddr():
        U = T + 32
        e(f'v_lshrrev_b32 v{U+3}, 5, v{VL}'); e(f'v_and_b32 v{U+1}, 7, v{VL}'); e(f'v_lshrrev_b32 v{U+2}, 4, v{VL}'); yield
        e(f'v_and_b32 v{U+8}, 31, v{VL}'); e(f'v_bfe_u32 v{U+9}, v{VL}, 1, 3'); yield
        e(f'v_xor_b32 v{U+9}, v{U+9}, v{U+3}'); e(f'v_lshlrev_b32 v{U+10}, 7, v{U+8}'); yield
        for kk in range(4):
            e(f'v_xor_b32 v{U+11}, {2*kk}, v{U+9}'); e(f'v_lshl_add_u32 v{U+11}, v{U+11}, 4, v{U+10}'); yield
            e(f'v_add_u32 v{VXA+kk}, s{S_W4K}, v{U+11}'); e(f'v_add_u32 v{VBR+kk}, {L_B}, v{U+11}'); yield
        e(f'v_bfe_u32 v{U+11}, v{VL}, 3, 1'); e(f'v_lshrrev_b32 v{U+12}, 1, v{U+1}'); yield
        e(f'v_lshl_add_u32 v{U+12}, v{U+11}, 2, v{U+12}'); e(f'v_xor_b32 v{U+12}, v{U+12}, v{U+3}'); yield
        e(f'v_mul_u32_u24 v{U+13}, 5120, v{U+11}'); e(f'v_lshl_add_u32 v{U+13}, v{U+1}, 7, v{U+13}'); yield
        e(f'v_add_u32 v{U+13}, {L_B + 32*128}, v{U+13}'); yield
        for kk in range(4):
            e(f'v_xor_b32 v{U+14}, {2*kk}, v{U+12}'); e(f'v_lshl_add_u32 v{VXX+kk}, v{U+14}, 4, v{U+13}'); yield
        e(f'v_bfe_u32 v{U+11}, v{VL}, 2, 2'); e(f'v_lshl_add_u32 v{U+12}, v{U+3}, 3, v{U+11}'); yield
        e(f'v_and_b32 v{U+13}, 1, v{U+2}'); e(f'v_bfe_u32 v{U+14}, v{VL}, 1, 1'); yield
        e(f'v_lshl_add_u32 v{U+14}, v{U+13}, 1, v{U+14}'); e(f'v_bfe_u32 v{U+15}, v{VL}, 3, 1'); yield
        e(f'v_lshl_add_u32 v{U+14}, v{U+15}, 2, v{U+14}'); e(f'v_and_b32 v{U+15}, 1, v{VL}'); yield
        e(f'v_lshlrev_b32 v{U+15}, 3, v{U+15}'); e(f'v_lshl_add_u32 v{U+15}, v{U+12}, 7, v{U+15}'); yield
        e(f'v_add_u32 v{U+15}, {L_W}, v{U+15}'); e(f'v_lshl_add_u32 v{VWR}, v{U+14}, 4, v{U+15}'); yield
        e(f'v_xor_b32 v{U+14}, 4, v{U+14}'); e(f'v_lshl_add_u32 v{VWR+1}, v{U+14}, 4, v{U+15}'); yield
        e(f'v_and_b32 v{U+14}, 3, v{VL}'); e(f'v_lshlrev_b32 v{U+14}, 3, v{U+14}'); yield
        e(f'v_lshl_add_u32 v{U+14}, v{U+13}, 5, v{U+14}'); e(f'v_lshl_add_u32 v{VP2}, v{U+12}, 6, v{U+14}'); yield
        e(f'v_add_u32 v{VP2+1}, 49152, v{VP2}'); e(f'v_lshlrev_b32 v{U+11}, 4, v0'); yield
        for k in range(4): e(f'v_mov_b32 v{U+12+k}, 0')
        yield
        e(f'v_add_u32 v{U+11}, {L_TE}, v{U+11}')
        g.lds(f'ds_write_b128 v{U+11}, {vr(U+12,4)}', 'zero'); yield
        e(f'v_add_u32 v0, 98304, v{VP2}'); yield
    def job_small_loads():
        e(f'v_and_b32 v{T+12}, 7, v{VL}'); e(f'v_add_u32 v{T+12}, 32, v{T+12}'); yield
        e(f'v_cmp_gt_u32 vcc, 32, v{VL}'); e('s_nop 1'); e(f'v_cndmask_b32 v{T+12}, v{T+12}, v{VL}, vcc'); yield
        e(f's_mul_i32 s54, s{S_C}, 40'); e(f'v_add_u32 v{T+13}, s54, v{T+12}'); e(f'v_lshlrev_b32 v{T+13}, 1, v{T+13}'); yield
        for k, p in enumerate((P_LRE, P_LIM, P_LDT)):
            srd(g, R_T, p, 1280)
            g.vm(f'buffer_load_ushort v{PL+k}, v{T+13}, s[{R_T}:{R_T+3}], 0 offen', 'par'); yield
    def job_nonce_pub():
        srd(g, R_DBG, P_DBG, 256); yield
        e('s_memrealtime s[40:41]'); g.wl0()
        e('s_or_b32 s40, s40, 1')
        e(f'v_accvgpr_write_b32 a255, s40')
        e(f's_or_b32 s52, s2, s{S_W}'); e('s_cmp_lg_u32 s52, 0'); e('s_cselect_b32 s52, 0x1000, 0')
        e('s_mov_b64 exec, 1')
        g.vm(f'buffer_store_dword a255, off, s[{R_DBG}:{R_DBG+3}], s52 sc0 sc1', 'nn')
        e('s_mov_b64 exec, -1'); yield
        srd(g, R_WS, P_WS, WS_SIZE); yield
    S_PK = 99
    def job_pack_setup():
        labS = g.newlab('PKS'); labE = g.newlab('PKE'); labN = g.newlab('PKN')
        e(f's_lshl_b32 s52, s2, 2'); e(f's_add_u32 s52, s52, s{S_W}')
        e('s_cmp_ge_u32 s52, 880'); e(f's_cbranch_scc1 {labN}')
        e('s_cmp_ge_u32 s52, 480'); e(f's_cbranch_scc1 {labS}')
        e('s_mul_i32 s53, s52, 6554'); e('s_lshr_b32 s53, s53, 16')
        e('s_mul_i32 s54, s53, 10'); e('s_sub_u32 s54, s52, s54')
        e('s_lshr_b32 s55, s53, 1'); e('s_sub_u32 s56, s53, 32'); e('s_cmp_lt_u32 s53, 32'); e('s_cselect_b32 s55, s55, s56')
        e('s_and_b32 s56, s55, 1')
        e('s_lshl_b32 s57, s56, 2'); e('s_and_b32 s58, s53, 1'); e('s_add_u32 s57, s57, s58')
        e('s_add_u32 s58, s56, 2')
        e('s_cmp_lt_u32 s53, 32'); e('s_cselect_b32 s57, s57, s58')
        e('s_lshr_b32 s55, s55, 1'); e('s_mul_i32 s55, s55, 6'); e('s_add_u32 s55, s55, s57')
        srd(g, R_T, P_WD, 1536*1280)
        e(f'v_lshrrev_b32 v{VPK}, 3, v{VL}'); e('s_movk_i32 s56, 1280'); e(f'v_mul_lo_u32 v{VPK}, v{VPK}, s56')
        e(f'v_and_b32 v{VPK+1}, 7, v{VL}'); e(f'v_lshl_add_u32 v{VPK}, v{VPK+1}, 4, v{VPK}')
        e('s_mul_i32 s55, s55, 40960'); e('s_lshl_b32 s56, s54, 7'); e('s_add_u32 s59, s55, s56')
        for q in range(1, 4): e(f'v_add_u32 v{VPK+q}, {q*(8*1280-1024)}, v{VPK}')
        e(f's_mov_b32 s{S_PK}, 1'); e(f's_mov_b32 s{S_PK+1}, s53'); e(f's_mov_b32 s{S_PK+2}, s54')
        e(f's_branch {labE}')
        g.label(labS)
        e('s_sub_u32 s52, s52, 480')
        e('s_cmp_ge_u32 s52, 200'); e('s_cselect_b32 s53, 1, 0')
        e('s_mul_i32 s54, s53, 200'); e('s_sub_u32 s52, s52, s54')
        e('s_mul_i32 s54, s52, 52429'); e('s_lshr_b32 s54, s54, 18')
        e('s_mul_i32 s55, s54, 5'); e('s_sub_u32 s55, s52, s55')
        e('s_cmp_lg_u32 s53, 0')
        e(f's_cselect_b32 s{R_T}, s{P_CIM}, s{P_CRE}'); e(f's_cselect_b32 s{R_T+1}, s{P_CIM+1}, s{P_CRE+1}')
        e(f's_and_b32 s{R_T+1}, s{R_T+1}, 0xffff'); e(f's_mov_b32 s{R_T+2}, {640*1280}'); e(f's_mov_b32 s{R_T+3}, 0x20000')
        e(f'v_lshrrev_b32 v{T}, 4, v{VL}'); e(f'v_and_b32 v{T+1}, 15, v{VL}')
        e('s_movk_i32 s56, 1280')
        e('s_mul_i32 s57, s54, 20480'); e('s_lshl_b32 s58, s55, 8'); e('s_add_u32 s59, s57, s58')
        for q in range(4):
            e(f'v_add_u32 v{T+2}, {4*q}, v{T}')
            e(f'v_xor_b32 v{T+3}, v{T+2}, v{T+1}')
            e(f'v_mul_lo_u32 v{T+2}, v{T+2}, s56')
            e(f'v_lshl_add_u32 v{VPK+q}, v{T+3}, 4, v{T+2}')
            if q: e(f'v_subrev_u32 v{VPK+q}, {q*1024}, v{VPK+q}')
        e('s_lshl_b32 s55, s55, 3'); e('s_add_u32 s55, s55, 48'); e('s_add_u32 s55, s55, s53')
        e(f's_mov_b32 s{S_PK}, 2'); e(f's_mov_b32 s{S_PK+1}, s55'); e(f's_mov_b32 s{S_PK+2}, s54')
        e(f's_branch {labE}')
        g.label(labN)
        srd(g, R_T, P_WD, 1536*1280)
        for q in range(4): e(f'v_lshlrev_b32 v{VPK+q}, 4, v{VL}')
        e('s_mov_b32 s59, 0')
        e(f's_mov_b32 s{S_PK}, 0'); e(f's_mov_b32 s{S_PK+1}, 0'); e(f's_mov_b32 s{S_PK+2}, 0')
        g.label(labE)
        e(f's_mov_b32 s{P_WD}, s59')
        yield 'pack_dma'
    pack_issued = []
    def pack_dma_atom():
        pack_issued.append(1)
        e(f's_add_u32 m0, s{S_W4K}, {L_TH}'); e('s_nop 0')
        for q in range(4):
            g.vm(f'buffer_load_dwordx4 v{VPK+q}, s[{R_T}:{R_T+3}], s{P_WD} offen offset:{q*1024} lds', 'pk')

    def job_touch():
        U = T + 28
        e('s_mov_b32 s52, 0x24924925'); e(f'v_mul_hi_u32 v{U}, v{VL}, s52'); yield
        e(f'v_mul_u32_u24 v{U+1}, 7, v{U}'); e(f'v_sub_u32 v{U+1}, v{VL}, v{U+1}'); yield
        e(f's_and_b32 s53, s{S_C}, 3'); e('s_lshl_b32 s53, s53, 5'); e(f's_lshl_b32 s54, s{S_J}, 7'); e('s_add_u32 s53, s53, s54'); yield
        e(f's_lshl_b32 s54, s{S_W}, 3'); e('s_add_u32 s53, s53, s54'); e('s_movk_i32 s55, 1280'); yield
        e(f'v_add_u32 v{U+2}, s53, v{U}'); e(f'v_mul_lo_u32 v{U+2}, v{U+2}, s55'); yield
        e(f'v_lshl_add_u32 v{U+2}, v{U+1}, 7, v{U+2}'); e(f'v_cmp_gt_u32 vcc, 56, v{VL}'); yield
        e(f'v_add_u32 v{U+2}, 384, v{U+2}'); e(f'v_mov_b32 v{U+3}, 0x7fff0000'); e(f'v_cndmask_b32 v{U+2}, v{U+3}, v{U+2}, vcc')
        g.vm(f'buffer_load_dword a250, v{U+2}, s[{R_X}:{R_X+3}], 0 offen', 'tch'); yield
        e(f's_mul_i32 s53, s{S_C}, 40'); e(f's_and_b32 s54, s{S_J}, 7'); e('s_mul_i32 s54, s54, 5'); e('s_add_u32 s53, s53, s54'); yield
        e(f'v_add_u32 v{U+2}, s53, v{U}'); e(f'v_mul_lo_u32 v{U+2}, v{U+2}, s55'); yield
        e(f'v_lshl_add_u32 v{U+2}, v{U+1}, 7, v{U+2}'); e(f'v_cmp_gt_u32 vcc, 35, v{VL}'); yield
        e(f'v_add_u32 v{U+2}, 384, v{U+2}'); e('s_nop 0'); e(f'v_cndmask_b32 v{U+2}, v{U+3}, v{U+2}, vcc'); yield
        lab = g.newlab('TB'); lab2 = g.newlab('TBE')
        e(f's_cmp_ge_u32 s{S_W}, 2'); e(f's_cbranch_scc1 {lab}')
        e(f'buffer_load_dword a251, v{U+2}, s[{R_BRE}:{R_BRE+3}], 0 offen'); e(f's_branch {lab2}')
        g.label(lab)
        e(f'buffer_load_dword a251, v{U+2}, s[{R_BIM}:{R_BIM+3}], 0 offen')
        g.label(lab2); g.vq.append('tch'); yield
        e(f's_and_b32 s53, s{S_J}, 7'); e('s_mul_i32 s53, s53, 56'); e('s_add_u32 s53, s53, 192'); e('s_movk_i32 s55, 3072'); yield
        e(f'v_add_u32 v{U+2}, s53, v{VL}'); e(f'v_mul_lo_u32 v{U+2}, v{U+2}, s55'); yield
        e(f's_lshr_b32 s53, s{S_C}, 1'); e('s_mul_i32 s53, s53, 384'); e(f's_and_b32 s54, s{S_C}, 1'); yield
        e('s_lshl_b32 s54, s54, 8'); e(f's_and_b32 s56, s{S_W}, 1'); e('s_cmp_lg_u32 s56, 0'); e('s_cselect_b32 s54, 128, s54'); yield
        e('s_add_u32 s53, s53, s54'); e(f'v_add_u32 v{U+2}, s53, v{U+2}'); e(f'v_cmp_gt_u32 vcc, 56, v{VL}'); yield
        e('s_nop 0'); e(f'v_cndmask_b32 v{U+2}, v{U+3}, v{U+2}, vcc'); yield
        lab = g.newlab('TW'); lab2 = g.newlab('TWE')
        e(f's_cmp_ge_u32 s{S_W}, 2'); e(f's_cbranch_scc1 {lab}')
        e(f'buffer_load_dword a252, v{U+2}, s[{R_WG}:{R_WG+3}], 0 offen'); e(f's_branch {lab2}')
        g.label(lab)
        e(f'buffer_load_dword a252, v{U+2}, s[{R_WU}:{R_WU+3}], 0 offen')
        g.label(lab2); g.vq.append('tch'); yield

    def job_scalars():
        e(f's_lshl_b32 s53, s{S_J}, 3'); e(f's_lshl_b32 s54, s{S_W}, 1'); e('s_add_u32 s53, s53, s54'); e('s_mul_i32 s53, s53, 88'); yield
        e(f's_lshl_b32 s52, s{S_C}, 1'); e('s_add_u32 s52, s52, s53'); e(f's_lshl_b32 s{S_HQ}, s52, 10'); e(f's_add_u32 s{S_HQ+1}, s{S_HQ}, 1024'); yield
        e(f's_add_u32 s52, s{S_C}, 32'); e('s_add_u32 s52, s52, s53'); e(f's_lshl_b32 s{S_HQ+2}, s52, 10'); yield
        e(f's_mul_i32 s54, s{S_C}, 5'); yield
        for u in range(5):
            e(f's_add_u32 s55, s54, {u}'); e('s_lshr_b32 s56, s55, 2'); e('s_lshl_b32 s56, s56, 1'); e('s_add_u32 s56, s56, s53'); yield
            e('s_add_u32 s56, s56, 48'); e('s_lshl_b32 s56, s56, 10'); e('s_and_b32 s55, s55, 3'); e('s_lshl_b32 s55, s55, 8'); yield
            e(f's_add_u32 s{S_HC+u}, s56, s55'); yield
        e(f's_lshl_b32 s52, s{S_C}, 4'); e(f's_add_u32 s52, s52, s{S_J}'); e('s_mul_i32 s52, s52, 640'); e(f's_add_u32 s52, s52, {WS_EP}'); yield
        e(f's_mov_b32 s55, s52'); e(f's_cmp_lg_u32 s{S_W}, 3'); e(f's_cselect_b32 s{S_PUB}, 0x7ff00000, s52'); yield
        e(f's_lshl_b32 s52, s{S_J}, 6'); e(f's_lshl_b32 s53, s{S_C}, 2'); e('s_add_u32 s52, s52, s53'); e(f's_add_u32 s52, s52, {WS_FL}'); yield
        e(f's_cmp_lg_u32 s{S_W}, 0'); e(f's_cselect_b32 s{S_FO}, 0x7ff00000, s52'); yield
        e(f's_add_u32 s{S_FO+1}, s{S_FO}, 1024'); e(f's_add_u32 s{S_FO+2}, s{S_FO}, 2048'); e(f's_add_u32 s{S_FG}, s{S_FO}, 3072'); yield
        e('s_lshl_b32 s52, s2, 2'); e(f's_add_u32 s52, s52, {WS_FP}'); e(f's_cmp_lg_u32 s{S_W}, 0'); e(f's_cselect_b32 s{S_FPO}, 0x7ff00000, s52'); yield
        e(f's_lshr_b32 s52, s{S_TB}, 1'); e('s_lshl_b32 s52, s52, 6'); e(f's_add_u32 s{S_CF}, s52, {WS_FL}'); yield
        for mp in range(4):
            e(f's_lshl_b32 s52, s{S_W}, 2'); e(f's_add_u32 s52, s52, {1+mp}'); e('s_mul_i32 s53, s52, 640'); e('s_sub_u32 s53, s55, s53'); yield
            e(f's_cmp_ge_u32 s{S_J}, s52'); e(f's_cselect_b32 s{S_EL+mp}, s53, 0x7ff00000'); yield
        e(f's_lshl_b32 s{S_A2}, s{S_TB}, 2'); e(f's_add_u32 s{S_A2}, s{S_A2}, s{S_W}'); e(f's_mul_i32 s{S_A2}, s{S_A2}, {88*1024}'); yield
        e(f's_mul_i32 s{S_W2B}, s{S_DB}, 88'); e(f's_add_u32 s{S_W2B}, s{S_W2B}, s{S_W}'); e(f's_mul_i32 s{S_W2B}, s{S_W2B}, 5120'); e(f's_add_u32 s{S_W2B}, s{S_W2B}, {WS_W2}'); yield
        e(f's_mul_i32 s{S_W5K}, s{S_W}, 5120'); yield
    def job_tags():
        e(f'v_accvgpr_write_b32 a255, s{S_NON}'); yield
        for mp in range(4):
            e(f's_cmp_eq_u32 s{S_EL+mp}, 0x7ff00000'); e(f's_cselect_b32 s{S_TAG[mp]}, 0, s{S_NON}'); yield

    FP_ = Fill(g)
    FP_.add(job_ldsaddr()); FP_.add(job_small_loads()); FP_.add(job_nonce_pub())
    srd(g, R_X, P_X, 2048*1280)
    e(f's_mov_b32 s{S_PH}, s60'); e(f's_mov_b32 s{S_PH2}, s60')
    st0 = dma_stage(0)
    for i_, p in enumerate(st0):
        if i_ == 4:
            e(f's_cmp_ge_u32 s{S_W}, 2')
            e(f's_cselect_b32 s{R_BRE}, s{P_BIM}, s{P_BRE}'); e(f's_cselect_b32 s{R_BRE+1}, s{P_BIM+1}, s{P_BRE+1}')
            e(f's_and_b32 s{R_BRE+1}, s{R_BRE+1}, 0xffff'); e(f's_mov_b32 s{R_BRE+2}, {640*1280}'); e(f's_mov_b32 s{R_BRE+3}, 0x20000')
        if i_ == 7: srd(g, R_WG, P_WG, 640*3072); srd(g, R_WU, P_WU, 640*3072)
        p()
        FP_.run(5)
    while FP_.q and FP_.q[0][0].__name__ != 'job_nonce_pub': FP_.step()
    for p in dma_stage(1): p(); FP_.run(2)
    FP_.drain()
    FP_.add(job_pack_setup()); FP_.add(job_scalars())
    while FP_.q:
        FP_.step()
        if FP_.blocked == 'pack_dma': FP_.release('pack_dma')

    def job_gate():
        GX, GW, VGT = T+24, T+36, T+22
        srd(g, R_T, P_GW, 1280); yield
        e(f'v_lshrrev_b32 v{T+3}, 5, v{VL}'); e(f'v_and_b32 v{T+8}, 31, v{VL}'); yield
        e(f's_lshl_b32 s52, s{S_J}, 7'); e(f's_lshl_b32 s53, s{S_C}, 3'); e('s_add_u32 s52, s52, s53'); yield
        e(f's_lshl_b32 s53, s{S_W}, 1'); e('s_add_u32 s52, s52, s53'); e('s_movk_i32 s55, 1280'); yield
        e(f'v_add_u32 v{VGT}, s52, v{T+3}'); e(f'v_mul_lo_u32 v{T+9}, v{VGT}, s55'); yield
        e(f'v_lshl_add_u32 v{T+9}, v{T+8}, 4, v{T+9}'); e(f'v_lshlrev_b32 v{T+10}, 4, v{T+8}'); yield
        e(f'v_cmp_gt_u32 vcc, 16, v{T+8}'); e(f'v_mov_b32 v{T+11}, 0x7fff0000'); e('s_nop 0')
        e(f'v_cndmask_b32 v{T+11}, v{T+11}, v{T+9}, vcc'); yield
        g.vm(f'buffer_load_dwordx4 {vr(GX,4)}, v{T+9}, s[{R_X}:{R_X+3}], 0 offen', 'gate'); yield 2
        g.vm(f'buffer_load_dwordx4 {vr(GW,4)}, v{T+10}, s[{R_T}:{R_T+3}], 0 offen', 'gate'); yield 2
        g.vm(f'buffer_load_dwordx4 {vr(GX+4,4)}, v{T+9}, s[{R_X}:{R_X+3}], 0 offen offset:512', 'gate'); yield 2
        g.vm(f'buffer_load_dwordx4 {vr(GW+4,4)}, v{T+10}, s[{R_T}:{R_T+3}], 0 offen offset:512', 'gate'); yield 2
        g.vm(f'buffer_load_dwordx4 {vr(GX+8,4)}, v{T+11}, s[{R_X}:{R_X+3}], 0 offen offset:1024', 'gate'); yield 2
        g.vm(f'buffer_load_dwordx4 {vr(GW+8,4)}, v{T+10}, s[{R_T}:{R_T+3}], 0 offen offset:1024', 'gate'); yield 2
        e('s_mov_b32 s52, 0x3f803f80'); e(f'v_mov_b32 v{T+12}, 0'); yield 'nextbar'
        g.wv('gate'); yield
        P_ = [T+14, T+16, T+18]
        for d in range(12 + 2):
            if d < 12:
                pr = P_[d % 3]
                e(f'v_and_b32 v{T+4}, 0xffff, v{GW+d}'); e(f'v_and_b32 v{T+5}, 0xffff0000, v{GW+d}'); yield
                e(f'v_dot2_f32_bf16 v{pr}, v{GX+d}, v{T+4}, 0'); e(f'v_dot2_f32_bf16 v{pr+1}, v{GX+d}, v{T+5}, 0'); yield
            else:
                e('s_nop 1'); yield
            if d >= 2:
                pr = P_[(d-2) % 3]
                e(f'v_cvt_pk_bf16_f32 v{T+20}, v{pr}, v{pr+1}'); e(f'v_dot2_f32_bf16 v{T+12}, v{T+20}, s52, v{T+12}'); yield
        e('s_nop 2'); yield
        for sh in (1, 2, 4, 8):
            e('s_nop 1'); e(f'v_add_f32_dpp v{T+12}, v{T+12}, v{T+12} row_ror:{sh} row_mask:0xf bank_mask:0xf'); yield
        e(f'v_mov_b32 v{T+13}, v{T+12}'); e('s_nop 1'); yield
        e(f'v_permlane16_swap_b32 v{T+12}, v{T+13}'); e(f'v_add_f32 v{T+12}, v{T+12}, v{T+13}'); yield
        e(f'v_cvt_pk_bf16_f32 v{T+12}, v{T+12}, v{T+12}'); e(f'v_lshlrev_b32 v{T+12}, 16, v{T+12}'); yield
        e(f'v_mul_f32 v{T+12}, 0xbfb8aa3b, v{T+12}'); e(f'v_exp_f32 v{T+12}, v{T+12}'); yield
        e('s_nop 0'); e(f'v_add_f32 v{T+12}, 1.0, v{T+12}'); e(f'v_rcp_f32 v{T+12}, v{T+12}'); yield
        e('s_nop 0'); e(f'v_cvt_pk_bf16_f32 v{T+12}, v{T+12}, v{T+12}'); e(f'v_lshlrev_b32 v{T+12}, 16, v{T+12}'); yield
        e(f'v_lshlrev_b32 v{T+13}, 2, v{VGT}'); e(f'v_add_u32 v{T+13}, {WS_G}, v{T+13}'); yield
        e(f'v_and_b32 v{T+14}, 31, v{VL}'); e(f'v_cmp_eq_u32 vcc, 0, v{T+14}')
        e('s_and_saveexec_b64 s[52:53], vcc')
        g.vm(f'buffer_store_dword v{T+12}, v{T+13}, s[{R_WS}:{R_WS+3}], 0 offen {o.st}', 'gst')
        e('s_mov_b64 exec, s[52:53]'); yield
        yield 'gate_done_mark'

    def job_lambda():
        g.wv('par'); yield
        A_, B_, DT = T+28, T+29, T+30
        Q = 224
        e(f'v_lshlrev_b32 v{PL}, 16, v{PL}'); e(f'v_lshlrev_b32 v{PL+1}, 16, v{PL+1}'); yield
        e(f'v_lshlrev_b32 v{PL+2}, 16, v{PL+2}'); e(f'v_mul_f32 v{DT}, {LOG2E}, v{PL+2}'); yield
        e(f'v_exp_f32 v{DT}, v{DT}'); e('s_nop 0'); yield
        e(f'v_cvt_pk_bf16_f32 v{DT}, v{DT}, v{DT}'); e(f'v_lshlrev_b32 v{DT}, 16, v{DT}'); yield
        e(f'v_mul_f32 v{A_}, v{DT}, v{PL}'); e(f'v_mul_f32 v{B_}, v{DT}, v{PL+1}'); yield
        e(f'v_mul_f32 v{A_}, {LOG2E}, v{A_}'); e(f'v_mul_f32 v{B_}, {INV2PI}, v{B_}'); yield
        e(f'v_exp_f32 v{A_}, v{A_}'); e(f'v_fract_f32 v{B_}, v{B_}'); yield
        e('s_nop 0'); e(f'v_cos_f32 v{Q}, v{B_}'); yield
        e(f'v_sin_f32 v{Q+1}, v{B_}'); e('s_nop 0'); yield
        e(f'v_mul_f32 v{Q}, v{Q}, v{A_}'); e(f'v_mul_f32 v{Q+1}, v{Q+1}, v{A_}'); yield
        e(f'v_add_f32 v{Q+2}, -1.0, v{Q}'); e(f'v_mul_f32 v{Q+3}, v{PL}, v{PL}'); yield
        e(f'v_fmac_f32 v{Q+3}, v{PL+1}, v{PL+1}'); e(f'v_rcp_f32 v{Q+3}, v{Q+3}'); yield
        e(f'v_mul_f32 v{Q+4}, v{Q+2}, v{PL}'); e(f'v_fmac_f32 v{Q+4}, v{Q+1}, v{PL+1}'); yield
        e(f'v_mul_f32 v{Q+5}, v{Q+1}, v{PL}'); e(f'v_fma_f32 v{Q+5}, -v{Q+2}, v{PL+1}, v{Q+5}'); yield
        e(f'v_mul_f32 v{CFR}, v{Q+4}, v{Q+3}'); e(f'v_mul_f32 v{CFI}, v{Q+5}, v{Q+3}'); yield
        cur = (Q, Q+1)
        slots = {2: (Q+6, Q+7), 4: (Q+8, Q+9), 8: (Q+6, Q+7), 16: (Q+10, Q+11), 32: (Q+12, Q+13), 64: (Q+14, Q+15),
                 128: (D128R, D128I), 256: (Q+6, Q+7), 512: (D512R, D512I)}
        for n_ in (2, 4, 8, 16, 32, 64, 128, 256, 512):
            ro, io = slots[n_]
            cmul_sq(cur[0], cur[1], ro, io, Q+16); cur = (ro, io); yield
        Z = Q + 18
        e(f's_and_b32 s52, s{S_W}, 1'); e('s_cmp_lg_u32 s52, 0'); e('s_cselect_b64 s[52:53], -1, 0'); yield
        e(f'v_mov_b32 v{Z}, 1.0'); e(f'v_mov_b32 v{Z+1}, 0'); yield
        e(f'v_cndmask_b32 v{Z}, v{Z}, v{Q+12}, s[52:53]'); e(f'v_cndmask_b32 v{Z+1}, v{Z+1}, v{Q+13}, s[52:53]'); yield
        e(f's_and_b32 s52, s{S_W}, 2'); e('s_cmp_lg_u32 s52, 0'); e('s_cselect_b64 s[52:53], -1, 0'); yield
        e(f'v_mov_b32 v{Z+2}, 1.0'); e(f'v_mov_b32 v{Z+3}, 0'); yield
        e(f'v_cndmask_b32 v{Z+2}, v{Z+2}, v{Q+14}, s[52:53]'); e(f'v_cndmask_b32 v{Z+3}, v{Z+3}, v{Q+15}, s[52:53]'); yield
        cmul(Z, Z+1, Z+2, Z+3, Z+4, Z+5); yield
        cmul(Z+4, Z+5, Q+10, Q+11, Z+6, Z+7); yield
        for a_, b_, d1, d2 in ((Q, Q, LR, XLR), (Q+1, Q+1, LI, XLI), (Q+10, Q+10, L16R, XL16R), (Q+11, Q+11, L16I, XL16I),
                               (Z+4, Z+6, PWR, XPWR), (Z+5, Z+7, PWI, XPWI)):
            redis(a_, b_, d1, d2); yield
        e(f'v_mov_b32 v{XCFR}, v{CFR}'); e(f'v_mov_b32 v{XCFI}, v{CFI}'); e('s_nop 1'); yield
        e(f'v_permlane32_swap_b32 v{CFR}, v{XCFR}'); e(f'v_permlane32_swap_b32 v{CFI}, v{XCFI}'); yield

    def job_pack():
        assert pack_issued
        g.wv('pk'); yield
        labS = g.newlab('PJS'); labE = g.newlab('PJE')
        e(f's_cmp_eq_u32 s{S_PK}, 2'); e(f's_cbranch_scc1 {labS}')
        e(f'v_lshrrev_b32 v{T+2}, 5, v{VL}'); e(f'v_lshlrev_b32 v{T+2}, 4, v{T+2}')
        e(f'v_bfe_u32 v{T+3}, v{VL}, 4, 1'); e(f'v_lshl_add_u32 v{T+2}, v{T+3}, 2, v{T+2}')
        e(f'v_bfe_u32 v{T+3}, v{VL}, 2, 2'); e(f'v_add_u32 v{T+2}, v{T+2}, v{T+3}')
        e(f'v_lshlrev_b32 v{T+2}, 7, v{T+2}')
        e(f'v_and_b32 v{T+3}, 3, v{VL}'); e(f'v_lshl_add_u32 v{T+2}, v{T+3}, 3, v{T+2}')
        e(f'v_add_u32 v{T+2}, s{S_W4K}, v{T+2}'); e(f'v_add_u32 v{T+2}, {L_TH}, v{T+2}')
        for tp in range(4):
            e(f'ds_read_b64_tr_b16 {vr(T+8+4*tp,2)}, v{T+2} offset:{tp*32}')
            e(f'ds_read_b64_tr_b16 {vr(T+10+4*tp,2)}, v{T+2} offset:{tp*32 + 8*128}')
        e(f's_branch {labE}')
        g.label(labS)
        e(f'v_and_b32 v{T+1}, 15, v{VL}'); e(f'v_lshrrev_b32 v{T}, 4, v{VL}')
        e(f'v_lshlrev_b32 v{T+2}, 8, v{T+1}'); e(f'v_add_u32 v{T+2}, s{S_W4K}, v{T+2}'); e(f'v_add_u32 v{T+2}, {L_TH}, v{T+2}')
        for tp in range(4):
            e(f'v_add_u32 v{T+3}, {4*tp}, v{T}'); e(f'v_xor_b32 v{T+3}, v{T+3}, v{T+1}')
            e(f'v_lshl_add_u32 v{T+3}, v{T+3}, 4, v{T+2}')
            e(f'ds_read_b128 {vr(T+8+4*tp,4)}, v{T+3}')
            e(f'ds_read_b128 {vr(T+8+4*tp,4)}, v{T+3}') if False else None
        for tp in range(4):
            e(f'ds_read_b32 v{T+24+tp}, v{T+2}')
        g.label(labE)
        g.lq += ['pkr'] * 8
        yield 4
        g.wl('pkr'); e(f'v_lshlrev_b32 v{T+4}, 4, v{VL}'); yield
        for tp in range(4):
            e(f's_lshl_b32 s52, s{S_PK+2}, 2'); e(f's_add_u32 s52, s52, {tp}')
            e(f's_add_u32 s53, s{S_PK+1}, {2*tp}')
            e(f's_cmp_eq_u32 s{S_PK}, 2'); e(f's_cselect_b32 s52, s{S_PK+2}, s52'); e(f's_cselect_b32 s53, s53, s{S_PK+1}'); yield
            e('s_mul_i32 s54, s52, 52429'); e('s_lshr_b32 s54, s54, 18')
            e('s_mul_i32 s55, s54, 5'); e('s_sub_u32 s55, s52, s55'); yield
            e('s_mul_i32 s54, s54, 88'); e('s_add_u32 s54, s54, s53'); e('s_mul_i32 s54, s54, 5'); e('s_add_u32 s54, s54, s55'); yield
            e('s_lshl_b32 s54, s54, 10'); e(f's_add_u32 s54, s54, {WS_W2}')
            e(f's_cmp_eq_u32 s{S_PK}, 0'); e('s_cselect_b32 s54, 0x7ff00000, s54')
            g.vm(f'buffer_store_dwordx4 {vr(T+8+4*tp,4)}, v{T+4}, s[{R_WS}:{R_WS+3}], s54 offen {o.st}', 'pst'); yield 2

    def job_nonce_load():
        g.vm(f'buffer_load_dword v{VNON}, off, s[{R_DBG}:{R_DBG+3}], 0 sc0 sc1', 'non'); yield
    def job_nonce_check():
        g.wv('non')
        lab = g.newlab('NP'); lab2 = g.newlab('NPD')
        e(f's_mov_b32 s60, {SPIN_MAX}')
        g.label(lab)
        e(f'v_readfirstlane_b32 s{S_NON}, v{VNON}'); e('s_nop 3')
        e(f's_cmp_lg_u32 s{S_NON}, 0'); e(f's_cbranch_scc1 {lab2}')
        e('s_sub_u32 s60, s60, 1'); e('s_cmp_eq_u32 s60, 0'); e(f's_cbranch_scc1 {lab2}')
        e('s_sleep 2')
        e(f'buffer_load_dword v{VNON}, off, s[{R_DBG}:{R_DBG+3}], 0 sc0 sc1'); e('s_waitcnt vmcnt(0)')
        e(f's_branch {lab}')
        g.label(lab2)
        yield

    def flag_atom(sreg):
        e('s_mov_b64 exec, 1')
        g.vm(f'buffer_store_dword a255, off, s[{R_WS}:{R_WS+3}], s{sreg} sc0 sc1', 'flag')
        e('s_mov_b64 exec, -1')

    tiles = ['R', 'I', 'X', 'G0', 'G1', 'U0', 'U1']
    accs = {'R': aR, 'I': aI, 'X': aX, 'G0': aG[0], 'G1': aG[1], 'U0': aU[0], 'U1': aU[1]}
    def reads(K):
        s, kk = divmod(K, 4); slot = s % 3; fs = AF[K % 2]
        R = []
        R.append((f'x{K}', f'ds_read_b128 {ar(AX+4*K,4)}, v{VXA+kk} offset:{slot*XS}'))
        R.append((f'R{K}', f'ds_read_b128 {ar(fs,4)}, v{VBR+kk} offset:{slot*BS}'))
        R.append((f'I{K}', f'ds_read_b128 {ar(fs+4,4)}, v{VBR+(kk^2)} offset:{slot*BS+5120}'))
        R.append((f'X{K}', f'ds_read_b128 {ar(fs+8,4)}, v{VXX+kk} offset:{slot*BS}'))
        for m in range(2):
            for ft in range(2):
                t = ('G', 'U')[m] + str(ft)
                fr = fs + 12 + 4*(2*m+ft)
                for rd in range(2):
                    R.append((f'{t}{K}', f'ds_read_b64_tr_b16 {ar(fr+2*rd,2)}, v{VWR+ft} offset:{slot*WSZ + m*8192 + kk*2048 + rd*512}'))
        return R
    def mfma1(t, K):
        fs = AF[K % 2]; x = ar(AX+4*K, 4); d = vr(accs[t], 16); cc = d if K else '0'
        idx = tiles.index(t); f = ar(fs + 4*idx, 4)
        if idx < 3: e(f'v_mfma_f32_32x32x16_bf16 {d}, {x}, {f}, {cc}')
        else:       e(f'v_mfma_f32_32x32x16_bf16 {d}, {f}, {x}, {cc}')

    if o.touch: F.add(job_touch())
    lam = job_lambda()
    def job_lambda_wrap():
        for _ in range(o.lam_first):
            yield next(lam)
    def job_lambda_rest():
        yield from lam
    done = set()
    def mark(name):
        done.add(name)
        return
        yield
    F.add(job_nonce_load()); F.add(job_lambda_wrap()); F.add(job_pack()); F.add(job_nonce_check()); F.add(job_tags()); F.add(mark('pack')); F.add(job_lambda_rest())
    g.wl0()
    n = g.wv_n('st0')
    e(f's_waitcnt vmcnt({n})')
    e('s_barrier')
    if o.prefill:
        pack_dma_atom(); F.drain()
    stamp(1)
    for tg, tx in reads(0): g.lds(tx, tg)
    pend = dma_stage(2)
    for K in range(40):
        s, kk = divmod(K, 4)
        nxt = reads(K+1) if K < 39 else []
        gaps = [[] for _ in range(7)]
        rg = (1, 3, 5, 6) if kk < 3 else (3, 4, 5, 6)
        for i_, rd in enumerate(nxt): gaps[rg[i_ // 3]].append(rd)
        dg = (0, 2, 4) if kk < 3 else (0, 1)
        for ti, t in enumerate(tiles):
            need = [f'{t}{K}'] + ([f'x{K}'] if ti == 0 else [])
            if ti % 2 == 0:
                if ti + 1 < 7: need.append(f'{tiles[ti+1]}{K}')
                g.wl(need)
            mfma1(t, K)
            n0 = g.n
            if kk == 3 and ti == 2:
                while pend: pend.pop(0)()
                tags = [f'st{s+1}']
                if s == o.fp_stage: tags.append('pst')
                nv = g.wv_n(tags)
                g.lq = []
                stg_pre()
                e(f's_waitcnt vmcnt({nv}) lgkmcnt(0)' if nv is not None else 's_waitcnt lgkmcnt(0)')
                e('s_barrier')
                stg_post()
                F.barrier()
                if s == o.fp_stage:
                    assert 'pack' in done, 'pack job must be finished before the pack flag'
                    flag_atom(S_FPO)
                if s == o.pk_stage and not o.prefill:
                    pack_dma_atom()
                if s + 3 <= 11: pend = dma_stage(s + 3)
            for tg, tx in gaps[ti]: g.lds(tx, tg)
            if ti in dg and pend and not (kk == 3 and ti == 2):
                pend.pop(0)()
            wcost = 1 if ti in (1, 3, 5, 6) else 0
            if not o.nofill and not (kk == 3 and ti in (1, 2)):
                F.run(o.p1_budget - wcost - (g.n - n0))
    assert not pend
    if o.nofill: F.drain()
    assert F.empty()
    stamp(2)

    def glu_epi(q, tag):
        Gr, Ur = aG[q], aU[q]
        H = T + 16
        for p in range(8):
            if o.mimic:
                e(f'v_cvt_pk_bf16_f32 v{T}, v{Gr+2*p}, v{Gr+2*p+1}'); e(f'v_cvt_pk_bf16_f32 v{T+1}, v{Ur+2*p}, v{Ur+2*p+1}'); yield
                e(f'v_lshlrev_b32 v{T+2}, 16, v{T}'); e(f'v_and_b32 v{T+3}, 0xffff0000, v{T}'); yield
                e(f'v_lshlrev_b32 v{T+4}, 16, v{T+1}'); e(f'v_and_b32 v{T+5}, 0xffff0000, v{T+1}'); yield
                e(f'v_mul_f32 v{T+2}, v{T+2}, v{T+4}'); e(f'v_mul_f32 v{T+3}, v{T+3}, v{T+5}'); yield
            else:
                e(f'v_mul_f32 v{T+2}, v{Gr+2*p}, v{Ur+2*p}'); e(f'v_mul_f32 v{T+3}, v{Gr+2*p+1}, v{Ur+2*p+1}'); yield
            e(f'v_cvt_pk_bf16_f32 v{H+p}, v{T+2}, v{T+3}'); yield
        g.vm(f'buffer_store_dwordx4 {vr(H,4)}, v{VHO}, s[{R_WS}:{R_WS+3}], s{S_HQ+q} offen {o.st}', tag); yield 1
        g.vm(f'buffer_store_dwordx4 {vr(H+4,4)}, v{VHO}, s[{R_WS}:{R_WS+3}], s{S_HQ+q} offen offset:512 {o.st}', tag); e('s_nop 1'); yield

    def job_hoaddr():
        e(f'v_bfe_u32 v{T}, v{VL}, 4, 1'); e(f'v_mul_u32_u24 v{T}, {88*1024}, v{T}'); yield
        e(f'v_lshrrev_b32 v{T+1}, 5, v{VL}'); e(f'v_lshl_add_u32 v{T}, v{T+1}, 8, v{T}'); yield
        e(f'v_and_b32 v{T+1}, 15, v{VL}'); e(f'v_lshl_add_u32 v{VHO}, v{T+1}, 4, v{T}'); yield

    E_RD = T + 16; E_RX = T + 32
    def job_aggr2():
        er, ei, tr_, ti_ = T, T+1, T+2, T+3
        XB = T+4; xo, xt = T+5, T+6
        e(f'v_mov_b32 v{er}, v{aR}'); e(f'v_mov_b32 v{ei}, v{aI}'); yield
        e(f'v_bfe_u32 v{T+7}, v{VL}, 3, 1'); e(f'v_cmp_eq_u32 s[56:57], 1, v{T+7}'); yield
        e(f'v_sub_f32 v{XB}, 0, v{XLI}'); e(f'v_mov_b32 v{xo}, v{aX}'); e(f'v_cndmask_b32 v{XB}, v{XB}, v{XLI}, s[56:57]'); yield
        cur = (er, ei); alt = (tr_, ti_); xc, xa = xo, xt
        for r in range(1, 16):
            e(f'v_fma_f32 v{xa}, v{XLR}, v{xc}, v{aX+r}')
            e(f'v_fma_f32 v{alt[0]}, v{LR}, v{cur[0]}, v{aR+r}'); yield
            e(f'v_fma_f32 v{alt[1]}, v{LR}, v{cur[1]}, v{aI+r}')
            e(f'v_fma_f32 v{alt[0]}, -v{LI}, v{cur[1]}, v{alt[0]}'); yield
            e(f'v_fmac_f32 v{alt[1]}, v{LI}, v{cur[0]}')
            e(f'v_fmac_f32_dpp v{xa}, v{xc}, v{XB} row_ror:8 row_mask:0xf bank_mask:0xf'); yield
            cur, alt = alt, cur; xc, xa = xa, xc
        e(f'v_lshrrev_b32 v{T+8}, 5, v{VL}'); e(f's_lshl_b32 s52, s{S_W}, 1'); e('s_add_u32 s52, s52, 7'); yield
        e(f'v_add_u32 v{T+8}, s52, v{T+8}'); e(f'v_lshlrev_b32 v{T+8}, 9, v{T+8}'); yield
        e(f'v_add_u32 v{T+8}, {L_TE}, v{T+8}'); e(f'v_and_b32 v{T+9}, 31, v{VL}'); yield
        e(f'v_lshl_add_u32 v{T+10}, v{T+9}, 3, v{T+8}')
        g.lds(f'ds_write_b64 v{T+10}, {vr(cur[0],2)}', 'ew'); yield
        e(f'v_and_b32 v{T+11}, 7, v{VL}'); e(f'v_lshl_add_u32 v{T+11}, v{T+11}, 3, v{T+8}'); yield
        e(f'v_add_u32 v{T+11}, 256, v{T+11}'); e(f'v_lshl_add_u32 v{T+12}, v{T+7}, 2, v{T+11}'); yield
        e(f'v_cmp_gt_u32 vcc, 16, v{T+9}')
        e('s_and_saveexec_b64 s[52:53], vcc')
        g.lds(f'ds_write_b32 v{T+12}, v{xc}', 'ew')
        e('s_mov_b64 exec, s[52:53]'); yield
        e(f'v_subrev_u32 v{T+13}, {7*512}, v{T+10}'); e(f'v_subrev_u32 v{T+14}, {7*512}, v{T+11}'); yield 'p2_bar'
        g.lds(f'ds_read_b64 {vr(E_RD,2)}, v{T+10}', 'er'); yield
        for m in range(1, 8):
            g.lds(f'ds_read_b64 {vr(E_RD+2*m,2)}, v{T+13} offset:{(7-m)*512}', 'er'); yield
        def horner(RDb, lr, li, pr_, pi2):
            cur = (RDb+14, RDb+15); alt = (T+48, T+49); alt2 = (T+50, T+51)
            for m in range(6, 0, -1):
                dst = (pr_, pi2) if m == 1 else (alt if cur != alt else alt2)
                e(f'v_fma_f32 v{dst[0]}, v{lr}, v{cur[0]}, v{RDb+2*m}'); e(f'v_fma_f32 v{dst[1]}, v{lr}, v{cur[1]}, v{RDb+2*m+1}'); yield
                e(f'v_fma_f32 v{dst[0]}, -v{li}, v{cur[1]}, v{dst[0]}'); e(f'v_fmac_f32 v{dst[1]}, v{li}, v{cur[0]}'); yield
                cur = dst
        g.lds(f'ds_read_b64 {vr(E_RX,2)}, v{T+11}', 'ex'); yield
        for m in range(1, 8):
            g.lds(f'ds_read_b64 {vr(E_RX+2*m,2)}, v{T+14} offset:{(7-m)*512}', 'ex'); yield
        yield 2
        g.wl('er'); yield
        yield from horner(E_RD, L16R, L16I, PR, PI)
        g.wl('ex'); yield
        yield from horner(E_RX, XL16R, XL16I, XPR, XPI)
        cfma(L16R, L16I, PR, PI, E_RD, E_RD+1, T+48, T+50); yield
        cfma(XL16R, XL16I, XPR, XPI, E_RX, E_RX+1, T+20, T+22); yield
        e(f'v_mov_b32 v{T+49}, s{S_NON}'); e(f'v_mov_b32 v{T+51}, s{S_NON}'); yield
        e(f'v_mov_b32 v{T+21}, s{S_NON}'); e(f'v_mov_b32 v{T+23}, s{S_NON}'); yield
        e(f'v_lshlrev_b32 v{T+12}, 4, v{T+9}'); yield
        e('s_mov_b32 exec_lo, 0')
        g.vm(f'buffer_store_dwordx4 {vr(T+48,4)}, v{T+12}, s[{R_WS}:{R_WS+3}], s{S_PUB} offen sc0 sc1', 'pub')
        e('s_mov_b32 exec_hi, 0xff')
        g.vm(f'buffer_store_dwordx4 {vr(T+20,4)}, v{T+12}, s[{R_WS}:{R_WS+3}], s{S_PUB} offen offset:512 sc0 sc1', 'pub')
        e('s_mov_b64 exec, -1'); yield

    NS = 22
    SLOT = G2_SLOT
    def g2_issue_w(S):
        tag = f'w{S}'; P = []
        def w0():
            e(f's_add_u32 m0, s{S_W5K}, {SLOT[S % 4]}'); e(f's_add_u32 s42, s{S_W2B}, {S*4*5120}')
            g.vm(f'buffer_load_dwordx4 v{VAO2}, s[{R_WS}:{R_WS+3}], s42 offen {o.ld} lds', tag)
        P.append(w0)
        for t in range(1, 4):
            P.append(lambda t=t: g.vm(f'buffer_load_dwordx4 v{VAO2}, s[{R_WS}:{R_WS+3}], s42 offen offset:{t*1024} {o.ld} lds', tag))
        def w4():
            e(f's_add_u32 m0, s{S_W5K}, {SLOT[S % 4] + 4096}'); e('s_add_u32 s42, s42, 4096')
            g.vm(f'buffer_load_dwordx4 v{VAO2}, s[{R_WS}:{R_WS+3}], s42 offen {o.ld} lds', tag)
        P.append(w4)
        return P
    def g2_issue_a(S):
        tag = f'a{S}'; P = []
        def a0():
            e(f's_add_u32 s45, s{S_A2}, {S*4096}')
            g.vm(f'buffer_load_dwordx4 {ar(G2A + 16*(S % 4), 4)}, v{VAO2}, s[{R_WS}:{R_WS+3}], s45 offen {o.ld}', tag)
        P.append(a0)
        for k in range(1, 4):
            P.append(lambda k=k: g.vm(f'buffer_load_dwordx4 {ar(G2A + 16*(S % 4) + 4*k, 4)}, v{VAO2}, s[{R_WS}:{R_WS+3}], s45 offen offset:{k*1024} {o.ld}', tag))
        return P
    FP_LD = f'buffer_load_dwordx4 {vr(T+52,4)}, v{VAO2}, s[{R_WS}:{R_WS+3}], s{S_FPB} offen sc1'
    def fl_ld(kind, vdst): return f'buffer_load_dword v{vdst}, v{VFL}, s[{R_WS}:{R_WS+3}], s{S_CF} offen offset:{kind*1024} sc1'
    def job_g2setup():
        e(f'v_lshlrev_b32 v{VAO2}, 4, v{VL}'); e(f's_mov_b32 s{S_FPB}, {WS_FP}'); yield
        g.vm(FP_LD, 'fp'); yield
        e(f'v_mov_b32 v{VRD[0]}, v{VAO2}'); e(f'v_add_u32 v{VRD[1]}, 49152, v{VAO2}'); e(f'v_add_u32 v{VRD[2]}, 100352, v{VAO2}'); yield
        e(f'v_and_b32 v{VFL}, 15, v{VL}'); e(f'v_lshlrev_b32 v{VFL}, 2, v{VFL}'); yield

    P2F = 160
    def reads2(K):
        ss, kk = divmod(K, 4); base = p2_base(ss); fs = P2F + 8*(K % 4)
        b = base // 49152
        off = base - b*49152
        breg = (VP2, VP2+1, 0)[b]
        R = []
        for m in range(2):
            for rd in range(2):
                R.append((f'p{m}_{K}', f'ds_read_b64_tr_b16 {ar(fs+4*m+2*rd,2)}, v{breg} offset:{off + m*4096 + kk*1024 + rd*256}'))
        return R
    def chain(*gens):
        for x in gens: yield from x
    F.add(job_g2setup()); F.add(job_hoaddr()); F.add(glu_epi(0, 'hA')); F.add(glu_epi(1, 'hA')); F.add(job_aggr2())
    e('s_nop 7')
    for K_ in range(3):
        for tg, tx in reads2(K_): g.lds(tx, tg)
    pend = []
    F2 = Fill(g)
    def job_pre():
        for S in range(3):
            for p in g2_issue_w(S):
                p(); yield
    KB2 = o.p2_ebar; KB1 = 17
    for K in range(40):
        fs = P2F + 8*(K % 4); x = ar(AX+4*K, 4)
        nxt = reads2(K+3) if K + 3 < 40 else []
        for m in range(2):
            if m == 0: g.wl([f'p0_{K}', f'p1_{K}'])
            d = vr((aG[2], aU[2])[m], 16); cc = d if K else '0'
            e(f'v_mfma_f32_32x32x16_bf16 {d}, {ar(fs+4*m,4)}, {x}, {cc}')
            n0 = g.n
            if K == KB1 and m == 0:
                spin_flags(FP_LD, T+52, 4, 'fp')
                nv = g.wv_n(['st11'])
                g.lq = []
                stg_pre()
                e(f's_waitcnt vmcnt({nv}) lgkmcnt(0)' if nv is not None else 's_waitcnt lgkmcnt(0)')
                e('s_barrier')
                stg_post()
                F2.add(job_pre())
            if K == KB2 and m == 0:
                while F.blocked != 'p2_bar': F.step()
                stg_pre()
                g.wl0()
                e('s_barrier')
                stg_post()
                F.release('p2_bar')
            if K == o.p2_fa and m == 0:
                g.wv('hA')
                e('s_barrier')
                flag_atom(S_FO)
            for tg, tx in nxt[2*m:2*m+2]: g.lds(tx, tg)
            if K >= KB1: F2.run(2)
            F.run(o.p2_budget - (g.n - n0))
        if K == KB1 - 1:
            while 'fp' not in g.vq: F.step()
    F.drain()
    F2.drain()
    e('s_nop 7'); e('s_nop 3')
    stamp(3)
    for _ in glu_epi(2, 'hB'): pass
    stamp(4)

    XS_ = 232
    RS_ = 9
    EL = T + 8
    def el(mp): return f'buffer_load_dwordx4 {vr(EL+4*mp,4)}, v{T}, s[{R_WS}:{R_WS+3}], s{S_EL+mp} offen sc0 sc1'
    AW, AR0, AR1, AS = T+44, T+45, T+46, T+47
    XB = T+48; NLI = T+49
    def tail_part1():
        e(f'v_and_b32 v{T}, 7, v{VL}'); e(f'v_add_u32 v{T}, 32, v{T}')
        e(f'v_cmp_gt_u32 vcc, 32, v{VL}'); e('s_nop 1'); e(f'v_cndmask_b32 v{T}, v{T}, v{VL}, vcc'); e(f'v_lshlrev_b32 v{T}, 4, v{T}')
        for mp in range(4): g.vm(el(mp), 'el')
        g.vm(fl_ld(0, T+52), 'fa')
        XA, XBb, NCR, NCI = T+4, T+5, T+6, T+7
        e(f'v_bfe_u32 v{T+1}, v{VL}, 3, 1'); e(f'v_cmp_eq_u32 s[56:57], 1, v{T+1}')
        e(f'v_sub_f32 v{XA}, 0, v{XCFR}'); e(f'v_sub_f32 v{XBb}, 0, v{XCFI}')
        e(f'v_cndmask_b32 v{XA}, v{XCFR}, v{XA}, s[56:57]')
        for p in range(8):
            r = 2*p
            e(f'v_pk_mul_f32 {vr(T+24,2)}, {vr(aR+r,2)}, {vr(CFR,2)} op_sel_hi:[1,0]')
            e(f'v_pk_mul_f32 {vr(T+26,2)}, {vr(aI+r,2)}, {vr(CFR,2)} op_sel_hi:[1,0] neg_lo:[0,1] neg_hi:[0,1]')
            e(f'v_mul_f32 v{XS_+r}, v{XA}, v{aX+r}'); e(f'v_mul_f32 v{XS_+r+1}, v{XA}, v{aX+r+1}')
            e(f'v_pk_fma_f32 {vr(T+24,2)}, {vr(aI+r,2)}, {vr(CFR,2)}, {vr(T+24,2)} op_sel:[0,1,0] op_sel_hi:[1,1,1] neg_lo:[0,1,0] neg_hi:[0,1,0]')
            e(f'v_pk_fma_f32 {vr(aI+r,2)}, {vr(aR+r,2)}, {vr(CFR,2)}, {vr(T+26,2)} op_sel:[0,1,0] op_sel_hi:[1,1,1] neg_lo:[0,1,0] neg_hi:[0,1,0]')
            e(f'v_fmac_f32_dpp v{XS_+r}, v{aX+r}, v{XBb} row_ror:8 row_mask:0xf bank_mask:0xf')
            e(f'v_fmac_f32_dpp v{XS_+r+1}, v{aX+r+1}, v{XBb} row_ror:8 row_mask:0xf bank_mask:0xf')
            e(f'v_pk_mul_f32 {vr(aR+r,2)}, {vr(T+24,2)}, 1.0 op_sel_hi:[1,0]')
        t0 = T + 24
        for (pr_, pi_, cr_, ci_) in ((PR, PI, CFR, CFI), (XPR, XPI, XCFR, XCFI)):
            e(f'v_mul_f32 v{t0}, v{cr_}, v{pr_}'); e(f'v_mul_f32 v{t0+1}, v{cr_}, v{pi_}')
            e(f'v_fma_f32 v{t0}, -v{ci_}, v{pi_}, v{t0}'); e(f'v_fmac_f32 v{t0+1}, v{ci_}, v{pr_}')
            e(f'v_mov_b32 v{pr_}, v{t0}'); e(f'v_sub_f32 v{pi_}, 0, v{t0+1}')
        for (pr_, pi_, cr_, ci_) in ((PWR, PWI, CFR, CFI), (XPWR, XPWI, XCFR, XCFI)):
            cmul(pr_, pi_, cr_, ci_, t0, t0+1)
            e(f'v_mov_b32 v{pr_}, v{t0}'); e(f'v_mov_b32 v{pi_}, v{t0+1}')
    def tail_addr():
        e(f's_mul_i32 s52, s{S_W}, {TH_W}'); e(f's_add_u32 s52, s52, {L_TH}'); e(f'v_and_b32 v{T+28}, 31, v{VL}')
        e(f'v_mul_u32_u24 v{AW}, {TH_PITCH}, v{T+28}'); e(f'v_lshrrev_b32 v{T+29}, 5, v{VL}')
        e(f'v_lshl_add_u32 v{AW}, v{T+29}, 5, v{AW}'); e(f'v_add_u32 v{AW}, s52, v{AW}')
        e(f'v_bfe_u32 v{T+30}, v{VL}, 2, 2'); e(f'v_lshl_add_u32 v{AR0}, v{T+29}, 5, v{T+30}')
        e(f'v_lshl_add_u32 v{AR1}, v{T+29}, 3, v{T+30}'); e(f'v_and_b32 v{T+31}, 1, v{VL}')
        e(f'v_lshlrev_b32 v{T+31}, 5, v{T+31}'); e(f'v_bfe_u32 v{T+30}, v{VL}, 4, 1')
        e(f'v_lshl_add_u32 v{T+31}, v{T+30}, 4, v{T+31}'); e(f'v_mul_u32_u24 v{AS}, {88*1024}, v{T+30}')
        e(f'v_bfe_u32 v{T+30}, v{VL}, 1, 1'); e(f'v_lshl_add_u32 v{T+31}, v{T+30}, 3, v{T+31}')
        e(f'v_add_u32 v{T+31}, s52, v{T+31}'); e(f's_movk_i32 s53, {TH_PITCH}')
        e(f'v_mad_u32_u24 v{AR0}, v{AR0}, s53, v{T+31}'); e(f'v_mad_u32_u24 v{AR1}, v{AR1}, s53, v{T+31}')
        e(f'v_lshl_add_u32 v{AS}, v{T+29}, 10, v{AS}'); e(f'v_and_b32 v{T+30}, 15, v{VL}')
        e(f'v_lshl_add_u32 v{AS}, v{T+30}, 4, v{AS}')
        e(f'v_sub_f32 v{XB}, 0, v{XLI}'); e(f'v_sub_f32 v{NLI}, 0, v{LI}'); e('s_nop 0')
        e(f'v_cndmask_b32 v{XB}, v{XLI}, v{XB}, s[56:57]')
    def tail_part2():
        lab = g.newlab('LB'); lab2 = g.newlab('LBD')
        g.wv('el')
        e(f's_mov_b32 s61, {SPIN_MAX}')
        g.label(lab)
        e('s_mov_b64 s[52:53], 0')
        for mp in range(4):
            e(f'v_cmp_ne_u32 vcc, s{S_TAG[mp]}, v{EL+4*mp+1}'); e('s_or_b64 s[52:53], s[52:53], vcc')
            e(f'v_cmp_ne_u32 vcc, s{S_TAG[mp]}, v{EL+4*mp+3}'); e('s_or_b64 s[52:53], s[52:53], vcc')
        e('s_cmp_eq_u64 s[52:53], 0'); e(f's_cbranch_scc1 {lab2}')
        e('s_sub_u32 s61, s61, 1'); e('s_cmp_eq_u32 s61, 0'); e(f's_cbranch_scc1 {lab2}')
        e('s_sleep 4')
        for mp in range(4): e(el(mp))
        e('s_waitcnt vmcnt(0)')
        e(f's_branch {lab}')
        g.label(lab2)
        cfma(D128R, D128I, EL+12, EL+14, EL+8, EL+10, T+24, T+25)
        cfma(D128R, D128I, T+24, T+25, EL+4, EL+6, T+26, T+27)
        cfma(D128R, D128I, T+26, T+27, EL, EL+2, T+24, T+25)
        e(f'v_lshlrev_b32 v{T+1}, 3, v{VL}'); e(f's_lshl_b32 s52, s{S_W}, 9'); e(f's_add_u32 s52, s52, {L_TQ}')
        e(f'v_add_u32 v{T+2}, s52, v{T+1}')
        g.lds(f'ds_write_b64 v{T+2}, {vr(T+24,2)}', 'q')
        e(f'v_add_u32 v{T+1}, {L_TQ}, v{T+1}')
    def tail_part3():
        def cfma_y(lr, li, hr, hi, ur, ui, ro, io):
            e(f'v_fma_f32 v{ro}, v{lr}, v{hr}, v{ur}'); e(f'v_fma_f32 v{io}, v{lr}, v{hi}, v{ui}'); yield
            e(f'v_fma_f32 v{ro}, -v{li}, v{hi}, v{ro}'); e(f'v_fmac_f32 v{io}, v{li}, v{hr}'); yield
        for k in range(4):
            g.lds(f'ds_read_b64 {vr(T+28+2*k,2)}, v{T+1} offset:{k*512}', 'qr'); yield (3 if k == 3 else None)
        g.wl('qr'); yield
        yield from cfma_y(D512R, D512I, T+34, T+35, T+32, T+33, T+24, T+25)
        yield from cfma_y(D512R, D512I, T+24, T+25, T+30, T+31, T+26, T+27)
        yield from cfma_y(D512R, D512I, T+26, T+27, T+28, T+29, T+24, T+25)
        CR, CI, XCR, XCI = T+36, T+37, T+38, T+39
        redis(T+24, T+24, CR, XCR); yield
        redis(T+25, T+25, CI, XCI); yield
        hr, hy, xp = T+40, T+41, T+17
        e(f'v_fma_f32 v{hr}, v{PWR}, v{CR}, v{PR}'); e(f'v_fma_f32 v{hy}, -v{PWR}, v{CI}, v{PI}'); yield
        e(f'v_fma_f32 v{hr}, -v{PWI}, v{CI}, v{hr}'); e(f'v_fma_f32 v{hy}, -v{PWI}, v{CR}, v{hy}'); yield
        e(f'v_fma_f32 v{T+42}, v{XPWR}, v{XCR}, v{XPR}'); e(f'v_fma_f32 v{T+43}, -v{XPWR}, v{XCI}, v{XPI}'); yield
        e(f'v_fma_f32 v{T+42}, -v{XPWI}, v{XCI}, v{T+42}'); e(f'v_fma_f32 v{T+43}, -v{XPWI}, v{XCR}, v{T+43}'); yield
        e(f'v_cndmask_b32 v{xp}, v{T+42}, v{T+43}, s[56:57]'); e('s_nop 0'); yield
        PK = T + 20
        for r in range(16):
            e(f'v_fmac_f32 v{XS_+r}, v{XLR}, v{xp}'); e(f'v_fmac_f32 v{aR+r}, v{LR}, v{hr}'); yield
            e(f'v_fmac_f32 v{aI+r}, v{LR}, v{hy}'); e(f'v_fmac_f32 v{aR+r}, v{LI}, v{hy}'); yield
            e(f'v_fmac_f32 v{aI+r}, v{NLI}, v{hr}')
            e(f'v_fmac_f32_dpp v{XS_+r}, v{xp}, v{XB} row_ror:8 row_mask:0xf bank_mask:0xf'); yield
            hr, hy, xp = aR+r, aI+r, XS_+r
            if r % 2 == 1:
                p = r // 2
                e(f'v_cvt_pk_bf16_f32 v{PK+p}, v{aR+r-1}, v{aR+r}'); e(f'v_cvt_pk_bf16_f32 v{PK+8+p}, v{aI+r-1}, v{aI+r}'); yield
                e(f'v_cvt_pk_bf16_f32 v{PK+16+p}, v{XS_+r-1}, v{XS_+r}'); yield
        for cmp_ in range(2):
            for k in range(4):
                g.lds(f'ds_write_b64 v{AW}, {vr(PK+8*cmp_+2*k,2)} offset:{cmp_*32*TH_PITCH + k*8}', 'tw'); yield (1 if k % 2 else None)
        e(f'v_and_b32 v{T+12}, 31, v{VL}'); e(f'v_cmp_gt_u32 vcc, 16, v{T+12}')
        e('s_and_saveexec_b64 s[54:55], vcc')
        for k in range(4):
            g.lds(f'ds_write_b64 v{AW}, {vr(PK+16+2*k,2)} offset:{64*TH_PITCH + k*8}', 'tw')
        e('s_mov_b64 exec, s[54:55]'); yield 4
        return
        yield
    def job_tail():
        yield 2
        g.wl('tw'); yield
        HO = T + 20
        for u in range(5):
            for rd in range(2):
                if u < 4: g.lds(f'ds_read_b64_tr_b16 {vr(HO+4*u+2*rd,2)}, v{AR0} offset:{(8*u + 4*rd)*TH_PITCH}', f'tr{u}')
                else:     g.lds(f'ds_read_b64_tr_b16 {vr(HO+4*u+2*rd,2)}, v{AR1} offset:{(64 + 4*rd)*TH_PITCH}', f'tr{u}')
                yield (3 if (u == 4 and rd == 1) else None)
        for u in range(5):
            g.wl(f'tr{u}')
            if o.x_nohc: g.vq.append('hC'); g.vq.pop(); g.vm('s_nop 0', 'hC') if False else None
            else: g.vm(f'buffer_store_dwordx4 {vr(HO+4*u,4)}, v{AS}, s[{R_WS}:{R_WS+3}], s{S_HC+u} offen {o.st}', 'hC')
            yield o.st_gap
        yield 'tail_done_mark'

    OG = T + 8; G2_ = T + 12; VO = T + 16
    L_EX = L_TE
    EXW = 2816
    def job_epi_loads():
        srd(g, R_T, P_DSK, 1280); yield
        e(f's_lshl_b32 s52, s{S_TB}, 6'); e(f's_lshr_b32 s53, s{S_W}, 1'); e('s_lshl_b32 s53, s53, 5'); e('s_add_u32 s52, s52, s53'); yield
        e(f's_and_b32 s53, s{S_W}, 1'); e('s_lshl_b32 s53, s53, 3'); e('s_add_u32 s52, s52, s53'); yield
        e(f'v_bfe_u32 v{VTOK}, v{VL}, 4, 1'); e(f'v_lshlrev_b32 v{VTOK}, 4, v{VTOK}'); yield
        e(f'v_lshrrev_b32 v{VD}, 5, v{VL}'); e(f'v_lshl_add_u32 v{VTOK}, v{VD}, 2, v{VTOK}'); yield
        e(f'v_add_u32 v{VTOK}, s52, v{VTOK}'); e(f'v_and_b32 v{VD}, 15, v{VL}'); yield
        e(f's_mul_i32 s53, s{S_DB}, 80'); e(f'v_add_u32 v{VD}, s53, v{VD}'); yield
        e(f's_mul_i32 s54, s{S_DB}, 160'); e('s_mov_b32 s55, 0x1999999a'); e('s_movk_i32 s56, 1280'); yield
        for i in range(3):
            q, row, c, tk = XV, XV+1, XV+2, XV+3
            e(f'v_add_u32 v{q}, {64*i}, v{VL}'); e(f'v_mul_hi_u32 v{row}, v{q}, s55'); yield
            e(f'v_mul_u32_u24 v{c}, 10, v{row}'); e(f'v_sub_u32 v{c}, v{q}, v{c}'); yield
            e(f'v_bfe_u32 v{tk}, v{row}, 2, 1'); e(f'v_lshlrev_b32 v{tk}, 4, v{tk}'); yield
            e(f'v_bfe_u32 v{q}, v{row}, 3, 1'); e(f'v_lshl_add_u32 v{tk}, v{q}, 2, v{tk}'); yield
            e(f'v_and_b32 v{q}, 3, v{row}'); e(f'v_add3_u32 v{tk}, v{tk}, v{q}, s52'); yield
            e(f'v_mul_lo_u32 v{tk}, v{tk}, s56'); e(f'v_lshl_add_u32 v{tk}, v{c}, 4, v{tk}'); yield
            e(f'v_add_u32 v{XV+4+i}, s54, v{tk}'); yield
        e(f's_mul_i32 s57, s{S_W}, {EXW}'); e(f's_add_u32 s57, s57, {L_EX}'); yield
        yield 'ex_dma'
        e(f'v_lshrrev_b32 v{XV}, 4, v{VL}'); e(f'v_mul_u32_u24 v{XV}, 640, v{XV}'); yield
        e(f'v_and_b32 v{XV+1}, 15, v{VL}'); e(f'v_lshl_add_u32 v{XV}, v{XV+1}, 1, v{XV}'); yield
        e(f'v_add_u32 v{DV+5}, s57, v{XV}'); e(f'v_lshlrev_b32 v{XV+1}, 1, v{XV+1}'); e(f'v_add_u32 v{DV+6}, s57, v{XV+1}'); yield 'nextbar'
        g.wv('ex'); yield
        for r in range(4):
            for t in range(5):
                g.lds(f'ds_read_u16_d16_hi v{XV+5*r+t}, v{DV+5} offset:{r*160 + t*32}', 'exr'); yield
        for t in range(5):
            g.lds(f'ds_read_u16_d16_hi v{DV+t}, v{DV+6} offset:{2560 + t*32}', 'exr'); yield
    def ex_dma_atom():
        e('s_mov_b32 m0, s57'); e('s_nop 0')
        g.vm(f'buffer_load_dwordx4 v{XV+4}, s[{R_X}:{R_X+3}], 0 offen lds', 'ex')
        g.vm(f'buffer_load_dwordx4 v{XV+5}, s[{R_X}:{R_X+3}], 0 offen offset:1024 lds', 'ex') if False else None
        e('s_add_u32 m0, s57, 1024'); e('s_nop 0')
        g.vm(f'buffer_load_dwordx4 v{XV+5}, s[{R_X}:{R_X+3}], 0 offen lds', 'ex')
        e('s_add_u32 m0, s57, 2048'); e('s_mov_b32 exec_hi, 0')
        g.vm(f'buffer_load_dwordx4 v{XV+6}, s[{R_X}:{R_X+3}], 0 offen lds', 'ex')
        e('s_add_u32 m0, s57, 2560'); e(f's_mul_i32 s54, s{S_DB}, 160'); e('s_mov_b32 exec_lo, 0x3ff')
        g.vm(f'buffer_load_dwordx4 v{VAO2}, s[{R_T}:{R_T+3}], s54 offen lds', 'ex')
        e('s_mov_b64 exec, -1')
    def job_epi_pre():
        e(f'v_lshlrev_b32 v{T+20}, 2, v{VTOK}'); e(f'v_add_u32 v{T+20}, {WS_G}, v{T+20}')
        g.vm(f'buffer_load_dwordx4 {vr(GV,4)}, v{T+20}, s[{R_WS}:{R_WS+3}], 0 offen sc1', 'epg'); yield
        srd(g, R_T, P_OUT, 2048*2560); yield
        e('s_movk_i32 s53, 2560'); e(f'v_mul_lo_u32 v{VO}, v{VTOK}, s53'); yield
        e(f'v_lshl_add_u32 v{VO}, v{VD}, 2, v{VO}'); e(f'v_add_u32 v{VO+1}, {2*2560}, v{VO}'); yield 'nextbar'
        g.wv('epg'); g.wl('exr'); yield
        for r in range(4):
            e(f'v_sub_f32 v{OG+r}, 1.0, v{GV+r}'); e(f'v_add_f32 v{G2_+r}, v{GV+r}, v{GV+r}'); yield
            e(f'v_cvt_pk_bf16_f32 v{OG+r}, v{OG+r}, v{OG+r}'); e(f'v_lshlrev_b32 v{OG+r}, 16, v{OG+r}'); yield
        for t in range(5): e(f'v_and_b32 v{DV+t}, 0xffff0000, v{DV+t}')
        yield
        for t in range(5):
            for r in range(4):
                xv = XV + 5*r + t; b = aB_ + 4*t + r
                e(f'v_and_b32 v{xv}, 0xffff0000, v{xv}'); e(f'v_mul_f32 v{xv}, v{xv}, v{DV+t}'); yield
                e(f'v_cvt_pk_bf16_f32 v{b}, v{b}, v{xv}'); e(f'v_and_b32 v{xv}, 0xffff0000, v{b}'); yield
                e(f'v_lshlrev_b32 v{b}, 16, v{b}'); e(f'v_mul_f32 v{b}, v{OG+r}, v{b}'); yield
                e(f'v_cvt_pk_bf16_f32 v{b}, v{b}, v{b}'); e(f'v_lshlrev_b32 v{b}, 16, v{b}'); yield
                e(f'v_fma_f32 v{xv}, v{GV+r}, v{xv}, v{b}'); yield

    def breads(S, k):
        fs = G2B + 20*((4*S + k) % 2)
        sl = S % 4
        base, o0 = {0: (VRD[0], 0), 1: (VRD[1], 79872-49152), 2: (VRD[1], 0), 3: (VRD[2], 0)}[sl]
        return [(f'b{S}_{k}_{t}', f'ds_read_b128 {ar(fs+4*t,4)}, v{base} offset:{o0 + k*5120 + t*1024}') for t in range(5)]
    tail_part1()
    stamp(5)
    tail_part2()
    stamp(6)
    spin_flags(fl_ld(0, T+52), T+52, 1, 'fa')
    g.wl0()
    e('s_barrier')
    stamp(7)
    for S in range(2):
        for p in g2_issue_a(S): p()
    tail_addr()
    for _ in tail_part3(): pass
    stamp(8)
    nv = g.wv_n(['w0', 'a0'])
    e(f's_waitcnt vmcnt({nv})' if nv is not None else 's_nop 0')
    e('s_barrier')
    stamp(9)
    def last_reads(t):
        S = NS - 1; sl = S % 4
        base, o0 = {0: (VRD[0], 0), 1: (VRD[1], 79872-49152), 2: (VRD[1], 0), 3: (VRD[2], 0)}[sl]
        fs = G2B + 20*(t % 2)
        return [(f'l{t}_{k}', f'ds_read_b128 {ar(fs+4*k,4)}, v{base} offset:{o0 + k*5120 + t*1024}') for k in range(4)]
    F.add(job_tail()); F.add(job_gate()); F.add(job_epi_loads())
    for tg, tx in breads(0, 0): g.lds(tx, tg)
    pend = g2_issue_a(2) + g2_issue_w(3) + g2_issue_a(3)
    FL2 = Fill(g)
    epi_added = False; seen = {}; waiting = []; flagged = {}; a_next = 4
    for S in range(NS - 1):
        for k in range(4):
            ks = 4*S + k
            acc = aB_ if ks < 48 else aA_
            first = ks in (0, 48)
            last_k = (k == 3)
            nxt = [] if last_k else breads(S, k+1)
            fs = G2B + 20*(ks % 2)
            for t in range(5):
                if t % 2 == 0:
                    g.wl([f'b{S}_{k}_{t}'] + ([f'b{S}_{k}_{t+1}'] if t < 4 else []))
                d = vr(acc+4*t, 4); cc = '0' if first else d
                e(f'v_mfma_f32_16x16x32_bf16 {d}, {ar(G2A + 16*(S % 4) + 4*k, 4)}, {ar(fs+4*t,4)}, {cc}')
                n0 = g.n
                if last_k and t == 1 and S + 1 < NS:
                    tags = [f'w{S+1}', f'a{S+1}']
                    if S == 1: tags.append('hB')
                    post = []
                    for mark_, tag_, freg in (('tail_done_mark', 'hC', S_FO+2), ('gate_done_mark', 'gst', S_FG)):
                        if F.blocked == mark_:
                            seen[mark_] = seen.get(mark_, 0) + 1
                            if seen[mark_] == 1: F.release(mark_); waiting.append([mark_, tag_, freg, S])
                    for w_ in list(waiting):
                        if S - w_[3] + 1 >= o.fc_delay:
                            tags.append(w_[1]); post.append(w_); waiting.remove(w_)
                    chk = {o.chk_b: 1, o.chk_c: 2, o.chk_g: 3}.get(S)
                    if chk and o.stg2 and S < 10:
                        e('s_memtime s[62:63]'); g.wl0(); e(f'v_writelane_b32 v{VDIAG}, s62, {62 if chk == 1 else 63}')
                    if chk: spin_flags(fl_ld(chk, DV+7), DV+7, 1, 'fx')
                    nv = g.wv_n(tags)
                    g.lq = []
                    if S < 20: stg_pre()
                    if o.stg2 and S < 10:
                        g2s = S
                        e('s_memtime s[62:63]'); e('s_waitcnt lgkmcnt(0)'); e(f'v_writelane_b32 v{VDIAG}, s62, {32 + 3*S}')
                    e(f's_waitcnt vmcnt({nv}) lgkmcnt(0)' if nv is not None else 's_waitcnt lgkmcnt(0)')
                    if o.stg2 and S < 10:
                        e('s_memtime s[62:63]'); e('s_waitcnt lgkmcnt(0)'); e(f'v_writelane_b32 v{VDIAG}, s62, {33 + 3*S}')
                    e('s_barrier')
                    if o.stg2 and S < 10:
                        e('s_memtime s[62:63]'); e('s_waitcnt lgkmcnt(0)'); e(f'v_writelane_b32 v{VDIAG}, s62, {34 + 3*S}')
                    if S < 20: stg_post()
                    F.barrier()
                    if F.blocked == 'ex_dma': ex_dma_atom(); F.release('ex_dma')
                    if S == 1: flag_atom(S_FO+1)
                    for w_ in post:
                        flag_atom(w_[2]); flagged[w_[0]] = S
                    nxt = breads(S+1, 0) if S + 2 < NS else last_reads(0)
                    assert not pend
                    if S + 4 < NS: pend = g2_issue_w(S + 4)
                    for Sa in range(a_next, min(S + 5, NS)):
                        if Sa >= 12 and S < o.chk_c: break
                        pend += g2_issue_a(Sa); a_next = Sa + 1
                    nchk = {o.chk_b: 1, o.chk_c: 2, o.chk_g: 3}.get(S + 2)
                    if nchk: pend.insert(0, lambda nchk=nchk: g.vm(fl_ld(nchk, DV+7), 'fx'))
                    if S == o.chk_g: F.add(job_epi_pre()); epi_added = True
                if last_k:
                    if t >= 2 and nxt:
                        for _ in range(2):
                            if nxt:
                                tg, tx = nxt.pop(0); g.lds(tx, tg)
                else:
                    tg, tx = nxt[t]; g.lds(tx, tg)
                if pend and not last_k and (t % 2 == 0 or len(pend) > 9):
                    pend.pop(0)()
                wcost = 1 if t in (1, 3, 4) else 0
                if not (last_k and t <= 1):
                    F.run(o.g2_budget - wcost - (g.n - n0))
            if k == 2:
                while pend: pend.pop(0)()
    o.flagged = flagged
    assert 'tail_done_mark' in flagged and flagged['tail_done_mark'] < o.chk_c, flagged
    assert 'gate_done_mark' in flagged and flagged['gate_done_mark'] < o.chk_g, flagged
    assert epi_added
    F.drain()
    S = NS - 1
    def out_tile(t):
        for r in range(4):
            e(f'v_fma_f32 v{XV+5*r+t}, v{G2_+r}, v{aA_+4*t+r}, v{XV+5*r+t}')
        for r in range(4):
            g.vm(f'buffer_store_dword v{XV+5*r+t}, v{VO + (r >> 1)}, s[{R_T}:{R_T+3}], 0 offen offset:{(r % 2)*2560 + t*64}', 'o')
    for t in range(5):
        nxt = last_reads(t+1) if t < 4 else []
        fs = G2B + 20*(t % 2)
        for k in range(4):
            if k % 2 == 0: g.wl([f'l{t}_{k}', f'l{t}_{k+1}'])
            d = vr(aA_+4*t, 4)
            e(f'v_mfma_f32_16x16x32_bf16 {d}, {ar(G2A + 16*(S % 4) + 4*k, 4)}, {ar(fs+4*k,4)}, {d}')
            if nxt:
                tg, tx = nxt.pop(0); g.lds(tx, tg)
            if t >= 1 and k == 2:
                if t == 4: e('s_nop 3')
                out_tile(t-1)
    e('s_nop 7')
    stamp(10)
    out_tile(4)
    if o.hdiag:
        g.wv0()
        stamp(11)
        e(f's_lshl_b32 s42, s2, 2'); e(f's_add_u32 s42, s42, s{S_W}'); e('s_lshl_b32 s42, s42, 8'); e(f's_add_u32 s42, s42, {WS_DIAG}')
        e(f'v_lshlrev_b32 v{T}, 2, v{VL}')
        e(f'buffer_store_dword v{VDIAG}, v{T}, s[{R_WS}:{R_WS+3}], s42 offen')
        lab = g.newlab('HD')
        e(f's_or_b32 s42, s2, s{S_W}'); e('s_cmp_lg_u32 s42, 0'); e(f's_cbranch_scc1 {lab}')
        e('s_mov_b64 exec, 0xff')
        e(f'buffer_store_dword v{VDIAG}, v{T}, s[{R_DBG}:{R_DBG+3}], 0 offen offset:4')
        e('s_mov_b64 exec, -1')
        g.label(lab)
    g.label('K_END')
    e('s_endpgm')
    return g

HEADER = open('cdna_kernels/%s.s.ref' % NAME).read().split('; Override launch geometry')[0]

def build(o):
    k = gen(o)
    s = HEADER
    s += f'; @launch grid=(256,1,1) block=(256,1,1) lds={LDS}\n'
    s += '.amdgcn_target "amdgcn-amd-amdhsa--gfx950"\n.text\n'
    s += f'.globl {KN}\n.p2align 8\n.type {KN},@function\n{KN}:\n' + k.text()
    s += 'CODE_END:\n.fill 64, 4, 0xBF800000\n'
    s += f'''.section .rodata,"a"
.p2align 6
.amdhsa_kernel {KN}
  .amdhsa_next_free_vgpr 512
  .amdhsa_next_free_sgpr 102
  .amdhsa_accum_offset 256
  .amdhsa_group_segment_fixed_size 0
  .amdhsa_kernarg_size 136
  .amdhsa_user_sgpr_count 2
  .amdhsa_user_sgpr_kernarg_segment_ptr 1
  .amdhsa_system_sgpr_workgroup_id_x 1
.end_amdhsa_kernel
'''
    return s

if __name__ == '__main__':
    o = Opt()
    for a in sys.argv[2:]:
        k, v = a.split('=', 1)
        setattr(o, k, eval(v))
    txt = build(o)
    if o.align:
        import align
        txt, p_, n_, m_ = align.align(txt, None, nop_run=o.align)
        print('align: promoted', p_, 'nops', n_, 'misaligned', m_)
    open(sys.argv[1], 'w').write(txt)
    print('flagged', getattr(o, 'flagged', None))
```

```python
import sys
from asmlib import G, Fill, vr, ar, sr

NAME = 'gated_mix__ssm_conv_s5__glu_gated_bilinear__prompt'
KN = NAME + '_kernel'
WS_A2   = 0x0
WS_W2   = 0xB00000
WS_G    = 0xE70000
WS_EP   = 0xE80000
WS_FL   = 0xEC0000
WS_FP   = WS_FL + 0x2000
WS_DIAG = 0xF00000
WS_SIZE = 0x1000000
L_X = 0; L_B = 49152; L_W = 79872; L_S = 129024
XS = 16384; BS = 10240; WSZ = 16384
L_TE = L_S
L_TQ = L_S + 7680
L_TH = L_S + 9728
TH_PITCH = 72
TH_W = 80 * TH_PITCH
G2_SLOT = [0, 79872, 49152, 100352]
LDS = 163840
LOG2E = 0x3fb8aa3b
INV2PI = 0x3e22f983
SPIN_MAX = 40000

class Opt:
    hdiag = False
    stg = False
    stg2 = False
    mimic = False
    st = 'sc1'
    ld = 'sc1'
    p1_budget = 6
    p2_budget = 5
    g2_budget = 7
    touch = False
    rot = True
    prefill = False
    align = 1000
    pk_stage = 0
    fc_delay = 3
    st_gap = 8
    ost = ''
    x_nohc = False
    x_notail = False
    chk_b = 4
    chk_c = 9
    chk_g = 14
    nofill = False
    p2_ebar = 27
    fp_stage = 5
    lam_first = 22
    p2_fa = 31

P_X, P_LRE, P_LIM, P_BRE, P_BIM, P_CRE, P_CIM, P_LDT = 64, 66, 68, 70, 72, 74, 76, 78
P_DSK, P_BX, P_WG, P_WU, P_WD, P_GW, P_OUT, P_DBG, P_WS = 80, 82, 84, 86, 88, 90, 92, 94, 96
S_W, S_J, S_C = 4, 5, 6
R_X, R_BRE, R_BIM, R_WG, R_WU, R_WS, R_T, R_DBG = 8, 12, 16, 20, 24, 28, 32, 36
S_K128, S_KW = 43, 45
S_W4K, S_W1280, S_W2K, S_W1K = 46, 47, 48, 49
S_NON = 50
S_PH, S_PH2 = 64, 65
S_TB, S_DB, S_A2, S_W2B, S_W5K = 3, 7, 44, 51, 98
S_HQ = 66; S_PUB = 69; S_FO = 70; S_FPO = 73
S_EL = 84; S_TAG = (88, 89, 94, 95); S_HC = 74; S_CF = 79; S_FPB = 96; S_FG = 97

def srd(g, d, ptr, nbytes):
    g.e(f's_mov_b32 s{d}, s{ptr}')
    g.e(f's_and_b32 s{d+1}, s{ptr+1}, 0xffff')
    g.e(f's_mov_b32 s{d+2}, {nbytes}')
    g.e(f's_mov_b32 s{d+3}, 0x20000')

def gen(o):
    g = G(); e = g.e
    F = Fill(g)
    VL = 1
    VXO = 2; VBO = 6; VWO = 10; VW2O = 12
    VXA = 13; VBR = 17; VXX = 21; VWR = 25; VP2 = 27
    VDIAG = 29; VNON = 30; VHO = 31
    LR, LI, L16R, L16I, PWR, PWI, CFR, CFI = range(32, 40)
    XLR, XLI, XL16R, XL16I, XPWR, XPWI, XCFR, XCFI = range(40, 48)
    D128R, D128I, D512R, D512I = range(48, 52)
    PR, PI, XPR, XPI = range(52, 56)
    T = 56
    aR, aI, aX = 112, 128, 144
    aG = [160, 176, 224]; aU = [192, 208, 240]
    AX = 0; AF = [160, 188]; APF = 216
    G2A = 0
    G2B = 64
    aB_, aA_ = 160, 180
    XV = 200; GV = 220; DV = 224
    VAO2 = 2; VRD = [3, 4, 5]; VTOK = 6; VD = 7; VFL = 8

    def stamp(idx):
        if not o.hdiag: return
        g.wl0()
        e('s_memrealtime s[40:41]')
        e('s_memtime s[62:63]')
        e('s_waitcnt lgkmcnt(0)')
        e(f'v_writelane_b32 v{VDIAG}, s40, {idx}')
        e(f'v_writelane_b32 v{VDIAG}, s62, {idx+16}')

    stgn = [0]
    def stg_pre():
        if o.stg: e('s_memtime s[62:63]')
    def stg_post():
        if o.stg:
            e(f'v_writelane_b32 v{VDIAG}, s62, {32 + stgn[0]}'); stgn[0] += 1
    def cmul_sq(r, i, ro, io, t):
        e(f'v_mul_f32 v{t}, v{r}, v{r}')
        e(f'v_add_f32 v{io}, v{r}, v{r}')
        e(f'v_fma_f32 v{ro}, -v{i}, v{i}, v{t}')
        e(f'v_mul_f32 v{io}, v{io}, v{i}')
    def cmul(ar_, ai, br, bi, ro, io):
        e(f'v_mul_f32 v{ro}, v{ar_}, v{br}')
        e(f'v_mul_f32 v{io}, v{ar_}, v{bi}')
        e(f'v_fma_f32 v{ro}, -v{ai}, v{bi}, v{ro}')
        e(f'v_fmac_f32 v{io}, v{ai}, v{br}')
    def cfma(lr, li, hr, hi, ur, ui, ro, io):
        e(f'v_fma_f32 v{ro}, v{lr}, v{hr}, v{ur}')
        e(f'v_fma_f32 v{io}, v{lr}, v{hi}, v{ui}')
        e(f'v_fma_f32 v{ro}, -v{li}, v{hi}, v{ro}')
        e(f'v_fmac_f32 v{io}, v{li}, v{hr}')
    def redis(srcA, srcB, dRI, dX):
        e(f'v_mov_b32 v{dRI}, v{srcA}'); e(f'v_mov_b32 v{dX}, v{srcB}')
        e('s_nop 1')
        e(f'v_permlane32_swap_b32 v{dRI}, v{dX}')
    def spin_flags(ldtext, vdst, ndw, tag):
        lab = g.newlab('SP'); lab2 = g.newlab('SPD')
        g.wv(tag)
        e(f's_cmp_lg_u32 s{S_W}, 0'); e(f's_cbranch_scc1 {lab2}')
        e(f's_mov_b32 s60, {SPIN_MAX}')
        g.label(lab)
        e(f'v_cmp_ne_u32 s[100:101], s{S_NON}, v{vdst}')
        for k in range(1, ndw):
            e(f'v_cmp_ne_u32 vcc, s{S_NON}, v{vdst+k}')
            e(f's_or_b64 s[100:101], s[100:101], vcc')
        e('s_nop 0')
        e('s_cmp_eq_u64 s[100:101], 0')
        e(f's_cbranch_scc1 {lab2}')
        e('s_sub_u32 s60, s60, 1'); e('s_cmp_eq_u32 s60, 0')
        e(f's_cbranch_scc1 {lab2}')
        e('s_sleep 4')
        e(ldtext)
        e('s_waitcnt vmcnt(0)')
        e(f's_branch {lab}')
        g.label(lab2)

    e('s_cmp_ge_u32 s2, 256')
    e('s_cbranch_scc1 K_END')
    e('s_load_dwordx16 s[64:79], s[0:1], 0')
    e('s_load_dwordx16 s[80:95], s[0:1], 64')
    e('s_load_dwordx2 s[96:97], s[0:1], 128')
    if o.hdiag: e('s_memrealtime s[100:101]')
    e('s_getpc_b64 s[40:41]')
    g.label('K_PC')
    e(f'v_and_b32 v{VL}, 63, v0')
    e('v_lshrrev_b32 v56, 6, v0')
    e('s_lshr_b32 s3, s2, 3')
    e('s_lshl_b32 s3, s3, 11')
    e('v_lshlrev_b32 v57, 3, v0')
    e('v_add_u32 v57, s3, v57')
    e('v_min_u32 v57, CODE_END-K_PC-8, v57')
    g.vm(f'global_load_dwordx2 {ar(APF,2)}, v57, s[40:41]', 'pf')
    e(f'v_readfirstlane_b32 s{S_W}, v56')
    if o.hdiag: e(f'v_mov_b32 v{VDIAG}, 0')
    e('s_and_b32 s3, s2, 7'); e('s_lshr_b32 s7, s2, 3')
    e(f's_and_b32 s{S_J}, s3, 1'); e(f's_lshl_b32 s{S_J}, s{S_J}, 3')
    e('s_and_b32 s42, s7, 7'); e(f's_add_u32 s{S_J}, s{S_J}, s42')
    e(f's_lshr_b32 s{S_C}, s3, 1'); e(f's_lshl_b32 s{S_C}, s{S_C}, 2')
    e('s_lshr_b32 s42, s7, 3'); e(f's_add_u32 s{S_C}, s{S_C}, s42')
    e(f's_and_b32 s60, s{S_J}, 7'); e(f's_and_b32 s61, s{S_C}, 3'); e('s_mul_i32 s61, s61, 3'); e('s_add_u32 s60, s60, s61')
    e('s_sub_u32 s61, s60, 10'); e('s_cmp_ge_u32 s60, 10'); e('s_cselect_b32 s60, s61, s60')
    if not o.rot: e('s_mov_b32 s60, 0')
    e('s_and_b32 s52, s3, 3'); e('s_lshl_b32 s52, s52, 3'); e('s_and_b32 s42, s7, 7'); e('s_add_u32 s52, s52, s42')
    e('s_lshr_b32 s53, s3, 2'); e('s_lshl_b32 s53, s53, 2'); e('s_lshr_b32 s42, s7, 3'); e('s_add_u32 s53, s53, s42')
    e(f's_mov_b32 s{S_TB}, s52'); e(f's_mov_b32 s{S_DB}, s53')
    e(f's_lshl_b32 s{S_W4K}, s{S_W}, 12')
    e(f's_lshl_b32 s{S_W2K}, s{S_W}, 11'); e(f's_lshl_b32 s{S_W1K}, s{S_W}, 10')
    e(f'v_lshrrev_b32 v{T}, 3, v{VL}')
    e(f'v_and_b32 v{T+1}, 7, v{VL}')
    e(f'v_lshrrev_b32 v{T+2}, 4, v{VL}')
    e(f'v_lshrrev_b32 v{T+3}, 5, v{VL}')
    e(f'v_and_b32 v{T+4}, 3, v{T}')
    e(f'v_lshl_add_u32 v{T+5}, v{T+3}, 4, v{T+4}')
    e(f's_lshl_b32 s42, s{S_J}, 7'); e(f's_lshl_b32 s43, s{S_W}, 5'); e('s_add_u32 s42, s42, s43')
    e(f'v_add_u32 v{T+5}, s42, v{T+5}')
    e('s_movk_i32 s55, 1280')
    e(f'v_mul_lo_u32 v{T+5}, v{T+5}, s55')
    e(f'v_xor_b32 v{T+6}, v{T+1}, v{T+2}')
    e(f'v_xor_b32 v{T+7}, 4, v{T+6}')
    for q in range(4):
        e(f'v_lshl_add_u32 v{VXO+q}, v{T+6+(q&1)}, 4, v{T+5}')
        if q: e(f'v_add_u32 v{VXO+q}, {q*4096}, v{VXO+q}')
    e(f's_and_b32 s42, s{S_W}, 1'); e('s_mul_i32 s42, s42, 20')
    e(f'v_add_u32 v{T+8}, s42, v{T}')
    e(f's_mul_i32 s54, s{S_C}, 40')
    e(f's_lshr_b32 s53, s{S_W}, 1'); e('s_lshl_b32 s53, s53, 2')
    for b in range(3):
        if b: e(f'v_add_u32 v{T+8}, 8, v{T+8}')
        e(f'v_bfe_u32 v{T+9}, v{T+8}, 1, 3')
        e(f'v_xor_b32 v{T+9}, v{T+9}, v{T+1}')
        e(f'v_xor_b32 v{T+9}, s53, v{T+9}')
        e(f'v_add_u32 v{T+10}, s54, v{T+8}')
        e(f'v_mul_lo_u32 v{T+10}, v{T+10}, s55')
        if b: e(f'v_subrev_u32 v{T+10}, {b*1024}, v{T+10}')
        e(f'v_lshl_add_u32 v{VBO+b}, v{T+9}, 4, v{T+10}')
    e(f's_lshr_b32 s{S_W1280}, s{S_W}, 1'); e(f's_mul_i32 s{S_W1280}, s{S_W1280}, 5120'); e(f's_and_b32 s42, s{S_W}, 1'); e('s_mul_i32 s42, s42, 2560'); e(f's_add_u32 s{S_W1280}, s{S_W1280}, s42')
    e(f's_lshr_b32 s56, s{S_C}, 1'); e('s_mul_i32 s56, s56, 384')
    e(f's_and_b32 s57, s{S_C}, 1')
    e('s_lshl_b32 s58, s57, 8'); e('s_add_u32 s58, s58, s56')
    e('s_lshl_b32 s59, s57, 6'); e('s_add_u32 s59, s59, s56'); e('s_add_u32 s59, s59, 128')
    e(f's_lshl_b32 s42, s{S_W}, 4')
    e(f'v_add_u32 v{T+8}, s42, v{T}')
    e('s_movk_i32 s56, 3072')
    e(f'v_mul_lo_u32 v{T+8}, v{T+8}, s56')
    e(f'v_and_b32 v{T+9}, 1, v{T+2}')
    e(f'v_lshlrev_b32 v{T+9}, 2, v{T+9}')
    e(f'v_xor_b32 v{T+9}, v{T+9}, v{T+1}')
    e(f'v_lshl_add_u32 v{T+8}, v{T+9}, 4, v{T+8}')
    e(f'v_add_u32 v{VWO}, s58, v{T+8}')
    e(f'v_add_u32 v{VWO+1}, {8*3072-1024}, v{VWO}')
    e(f'v_lshrrev_b32 v{T+8}, 2, v{VL}')
    e(f'v_add_u32 v{T+8}, s42, v{T+8}')
    e(f'v_mul_lo_u32 v{T+8}, v{T+8}, s56')
    e(f'v_and_b32 v{T+9}, 3, v{VL}')
    e(f'v_lshl_add_u32 v{T+8}, v{T+9}, 4, v{T+8}')
    e(f'v_add_u32 v{VW2O}, s59, v{T+8}')
    e('s_waitcnt lgkmcnt(0)')
    stamp(0)
    if o.hdiag: e(f'v_writelane_b32 v{VDIAG}, s100, 0')
    def p2_base(ss):
        slot = (10 + ss // 5) % 3
        sub = ss % 5
        if sub < 2: return L_X + slot*XS + sub*8192
        if sub == 2: return L_B + slot*BS
        return L_W + slot*WSZ + (sub-3)*8192
    def dma_stage(s):
        slot = s % 3; P = []; tag = f'st{s}'
        if s < 10:
            def grp(m0base, sreg, first, loads):
                def f():
                    if first: e(first)
                    e(f's_add_u32 m0, s{sreg}, {m0base}')
                return f
            def px0():
                e(f's_add_u32 m0, s{S_W4K}, {L_X + slot*XS}'); e(f's_lshl_b32 s{S_K128}, s{S_PH}, 7')
                g.vm(f'buffer_load_dwordx4 v{VXO}, s[{R_X}:{R_X+3}], s{S_K128} offen lds', tag)
            P.append(px0)
            for q in range(1, 4):
                P.append(lambda q=q: g.vm(f'buffer_load_dwordx4 v{VXO+q}, s[{R_X}:{R_X+3}], s{S_K128} offen offset:{q*1024} lds', tag))
            def pb0():
                e(f's_add_u32 m0, s{S_W1280}, {L_B + slot*BS}')
                e('s_nop 0')
                g.vm(f'buffer_load_dwordx4 v{VBO}, s[{R_BRE}:{R_BRE+3}], s{S_K128} offen lds', tag)
            def pb2():
                e('s_mov_b32 exec_hi, 0')
                g.vm(f'buffer_load_dwordx4 v{VBO+2}, s[{R_BRE}:{R_BRE+3}], s{S_K128} offen offset:2048 lds', tag)
                e('s_mov_b32 exec_hi, -1')
            P.append(pb0)
            P.append(lambda: g.vm(f'buffer_load_dwordx4 v{VBO+1}, s[{R_BRE}:{R_BRE+3}], s{S_K128} offen offset:1024 lds', tag))
            P.append(pb2)
            for m in range(2):
                r = R_WG if m == 0 else R_WU
                def pw(m=m):
                    e(f's_add_u32 m0, s{S_W2K}, {L_W + slot*WSZ + m*8192}')
                    if m == 0: e(f's_mul_i32 s{S_KW}, s{S_PH}, {64*3072}')
                    else: e('s_nop 0')
                def pw0(m=m, r=r):
                    pw(m); g.vm(f'buffer_load_dwordx4 v{VWO}, s[{r}:{r+3}], s{S_KW} offen lds', tag)
                P.append(pw0)
                def pw1(m=m, r=r):
                    g.vm(f'buffer_load_dwordx4 v{VWO+1}, s[{r}:{r+3}], s{S_KW} offen offset:1024 lds', tag)
                    if m == 1:
                        e(f's_add_u32 s{S_PH}, s{S_PH}, 1'); e(f's_cmp_eq_u32 s{S_PH}, 10'); e(f's_cselect_b32 s{S_PH}, 0, s{S_PH}')
                P.append(pw1)
        else:
            for sub in range(5):
                ss = (s - 10) * 5 + sub
                base = p2_base(ss)
                for m in range(2):
                    r = R_WG if m == 0 else R_WU
                    def pp(base=base, m=m, ss=ss, r=r):
                        e(f's_add_u32 m0, s{S_W1K}, {base + m*4096}')
                        if m == 0: e(f's_mul_i32 s{S_KW}, s{S_PH2}, {64*3072}')
                        else: e('s_nop 0')
                        g.vm(f'buffer_load_dwordx4 v{VW2O}, s[{r}:{r+3}], s{S_KW} offen lds', tag)
                        if m == 1:
                            e(f's_add_u32 s{S_PH2}, s{S_PH2}, 1'); e(f's_cmp_eq_u32 s{S_PH2}, 10'); e(f's_cselect_b32 s{S_PH2}, 0, s{S_PH2}')
                    P.append(pp)
        return P
    GX, GW = 224, 236
    VGT = T + 55
    PL = T + 52
    VPK = T + 24
    def job_ldsaddr():
        U = T + 32
        e(f'v_lshrrev_b32 v{U+3}, 5, v{VL}'); e(f'v_and_b32 v{U+1}, 7, v{VL}'); e(f'v_lshrrev_b32 v{U+2}, 4, v{VL}'); yield
        e(f'v_and_b32 v{U+8}, 31, v{VL}'); e(f'v_bfe_u32 v{U+9}, v{VL}, 1, 3'); yield
        e(f'v_xor_b32 v{U+9}, v{U+9}, v{U+3}'); e(f'v_lshlrev_b32 v{U+10}, 7, v{U+8}'); yield
        for kk in range(4):
            e(f'v_xor_b32 v{U+11}, {2*kk}, v{U+9}'); e(f'v_lshl_add_u32 v{U+11}, v{U+11}, 4, v{U+10}'); yield
            e(f'v_add_u32 v{VXA+kk}, s{S_W4K}, v{U+11}'); e(f'v_add_u32 v{VBR+kk}, {L_B}, v{U+11}'); yield
        e(f'v_bfe_u32 v{U+11}, v{VL}, 3, 1'); e(f'v_lshrrev_b32 v{U+12}, 1, v{U+1}'); yield
        e(f'v_lshl_add_u32 v{U+12}, v{U+11}, 2, v{U+12}'); e(f'v_xor_b32 v{U+12}, v{U+12}, v{U+3}'); yield
        e(f'v_mul_u32_u24 v{U+13}, 5120, v{U+11}'); e(f'v_lshl_add_u32 v{U+13}, v{U+1}, 7, v{U+13}'); yield
        e(f'v_add_u32 v{U+13}, {L_B + 32*128}, v{U+13}'); yield
        for kk in range(4):
            e(f'v_xor_b32 v{U+14}, {2*kk}, v{U+12}'); e(f'v_lshl_add_u32 v{VXX+kk}, v{U+14}, 4, v{U+13}'); yield
        e(f'v_bfe_u32 v{U+11}, v{VL}, 2, 2'); e(f'v_lshl_add_u32 v{U+12}, v{U+3}, 3, v{U+11}'); yield
        e(f'v_and_b32 v{U+13}, 1, v{U+2}'); e(f'v_bfe_u32 v{U+14}, v{VL}, 1, 1'); yield
        e(f'v_lshl_add_u32 v{U+14}, v{U+13}, 1, v{U+14}'); e(f'v_bfe_u32 v{U+15}, v{VL}, 3, 1'); yield
        e(f'v_lshl_add_u32 v{U+14}, v{U+15}, 2, v{U+14}'); e(f'v_and_b32 v{U+15}, 1, v{VL}'); yield
        e(f'v_lshlrev_b32 v{U+15}, 3, v{U+15}'); e(f'v_lshl_add_u32 v{U+15}, v{U+12}, 7, v{U+15}'); yield
        e(f'v_add_u32 v{U+15}, {L_W}, v{U+15}'); e(f'v_lshl_add_u32 v{VWR}, v{U+14}, 4, v{U+15}'); yield
        e(f'v_xor_b32 v{U+14}, 4, v{U+14}'); e(f'v_lshl_add_u32 v{VWR+1}, v{U+14}, 4, v{U+15}'); yield
        e(f'v_and_b32 v{U+14}, 3, v{VL}'); e(f'v_lshlrev_b32 v{U+14}, 3, v{U+14}'); yield
        e(f'v_lshl_add_u32 v{U+14}, v{U+13}, 5, v{U+14}'); e(f'v_lshl_add_u32 v{VP2}, v{U+12}, 6, v{U+14}'); yield
        e(f'v_add_u32 v{VP2+1}, 49152, v{VP2}'); e(f'v_lshlrev_b32 v{U+11}, 4, v0'); yield
        for k in range(4): e(f'v_mov_b32 v{U+12+k}, 0')
        yield
        e(f'v_add_u32 v{U+11}, {L_TE}, v{U+11}')
        g.lds(f'ds_write_b128 v{U+11}, {vr(U+12,4)}', 'zero'); yield
        e(f'v_add_u32 v0, 98304, v{VP2}'); yield
    def job_small_loads():
        e(f'v_and_b32 v{T+12}, 7, v{VL}'); e(f'v_add_u32 v{T+12}, 32, v{T+12}'); yield
        e(f'v_cmp_gt_u32 vcc, 32, v{VL}'); e('s_nop 1'); e(f'v_cndmask_b32 v{T+12}, v{T+12}, v{VL}, vcc'); yield
        e(f's_mul_i32 s54, s{S_C}, 40'); e(f'v_add_u32 v{T+13}, s54, v{T+12}'); e(f'v_lshlrev_b32 v{T+13}, 1, v{T+13}'); yield
        for k, p in enumerate((P_LRE, P_LIM, P_LDT)):
            srd(g, R_T, p, 1280)
            g.vm(f'buffer_load_ushort v{PL+k}, v{T+13}, s[{R_T}:{R_T+3}], 0 offen', 'par'); yield
    def job_nonce_pub():
        srd(g, R_DBG, P_DBG, 256); yield
        e('s_memrealtime s[40:41]'); g.wl0()
        e('s_or_b32 s40, s40, 1')
        e(f'v_accvgpr_write_b32 a255, s40')
        e(f's_or_b32 s52, s2, s{S_W}'); e('s_cmp_lg_u32 s52, 0'); e('s_cselect_b32 s52, 0x1000, 0')
        e('s_mov_b64 exec, 1')
        g.vm(f'buffer_store_dword a255, off, s[{R_DBG}:{R_DBG+3}], s52 sc0 sc1', 'nn')
        e('s_mov_b64 exec, -1'); yield
        srd(g, R_WS, P_WS, WS_SIZE); yield
    S_PK = 99
    def job_pack_setup():
        labS = g.newlab('PKS'); labE = g.newlab('PKE'); labN = g.newlab('PKN')
        e(f's_lshl_b32 s52, s2, 2'); e(f's_add_u32 s52, s52, s{S_W}')
        e('s_cmp_ge_u32 s52, 880'); e(f's_cbranch_scc1 {labN}')
        e('s_cmp_ge_u32 s52, 480'); e(f's_cbranch_scc1 {labS}')
        e('s_mul_i32 s53, s52, 6554'); e('s_lshr_b32 s53, s53, 16')
        e('s_mul_i32 s54, s53, 10'); e('s_sub_u32 s54, s52, s54')
        e('s_lshr_b32 s55, s53, 1'); e('s_sub_u32 s56, s53, 32'); e('s_cmp_lt_u32 s53, 32'); e('s_cselect_b32 s55, s55, s56')
        e('s_and_b32 s56, s55, 1')
        e('s_lshl_b32 s57, s56, 2'); e('s_and_b32 s58, s53, 1'); e('s_add_u32 s57, s57, s58')
        e('s_add_u32 s58, s56, 2')
        e('s_cmp_lt_u32 s53, 32'); e('s_cselect_b32 s57, s57, s58')
        e('s_lshr_b32 s55, s55, 1'); e('s_mul_i32 s55, s55, 6'); e('s_add_u32 s55, s55, s57')
        srd(g, R_T, P_WD, 1536*1280)
        e(f'v_lshrrev_b32 v{VPK}, 3, v{VL}'); e('s_movk_i32 s56, 1280'); e(f'v_mul_lo_u32 v{VPK}, v{VPK}, s56')
        e(f'v_and_b32 v{VPK+1}, 7, v{VL}'); e(f'v_lshl_add_u32 v{VPK}, v{VPK+1}, 4, v{VPK}')
        e('s_mul_i32 s55, s55, 40960'); e('s_lshl_b32 s56, s54, 7'); e('s_add_u32 s59, s55, s56')
        for q in range(1, 4): e(f'v_add_u32 v{VPK+q}, {q*(8*1280-1024)}, v{VPK}')
        e(f's_mov_b32 s{S_PK}, 1'); e(f's_mov_b32 s{S_PK+1}, s53'); e(f's_mov_b32 s{S_PK+2}, s54')
        e(f's_branch {labE}')
        g.label(labS)
        e('s_sub_u32 s52, s52, 480')
        e('s_cmp_ge_u32 s52, 200'); e('s_cselect_b32 s53, 1, 0')
        e('s_mul_i32 s54, s53, 200'); e('s_sub_u32 s52, s52, s54')
        e('s_mul_i32 s54, s52, 52429'); e('s_lshr_b32 s54, s54, 18')
        e('s_mul_i32 s55, s54, 5'); e('s_sub_u32 s55, s52, s55')
        e('s_cmp_lg_u32 s53, 0')
        e(f's_cselect_b32 s{R_T}, s{P_CIM}, s{P_CRE}'); e(f's_cselect_b32 s{R_T+1}, s{P_CIM+1}, s{P_CRE+1}')
        e(f's_and_b32 s{R_T+1}, s{R_T+1}, 0xffff'); e(f's_mov_b32 s{R_T+2}, {640*1280}'); e(f's_mov_b32 s{R_T+3}, 0x20000')
        e(f'v_lshrrev_b32 v{T}, 4, v{VL}'); e(f'v_and_b32 v{T+1}, 15, v{VL}')
        e('s_movk_i32 s56, 1280')
        e('s_mul_i32 s57, s54, 20480'); e('s_lshl_b32 s58, s55, 8'); e('s_add_u32 s59, s57, s58')
        for q in range(4):
            e(f'v_add_u32 v{T+2}, {4*q}, v{T}')
            e(f'v_xor_b32 v{T+3}, v{T+2}, v{T+1}')
            e(f'v_mul_lo_u32 v{T+2}, v{T+2}, s56')
            e(f'v_lshl_add_u32 v{VPK+q}, v{T+3}, 4, v{T+2}')
            if q: e(f'v_subrev_u32 v{VPK+q}, {q*1024}, v{VPK+q}')
        e('s_lshl_b32 s55, s55, 3'); e('s_add_u32 s55, s55, 48'); e('s_add_u32 s55, s55, s53')
        e(f's_mov_b32 s{S_PK}, 2'); e(f's_mov_b32 s{S_PK+1}, s55'); e(f's_mov_b32 s{S_PK+2}, s54')
        e(f's_branch {labE}')
        g.label(labN)
        srd(g, R_T, P_WD, 1536*1280)
        for q in range(4): e(f'v_lshlrev_b32 v{VPK+q}, 4, v{VL}')
        e('s_mov_b32 s59, 0')
        e(f's_mov_b32 s{S_PK}, 0'); e(f's_mov_b32 s{S_PK+1}, 0'); e(f's_mov_b32 s{S_PK+2}, 0')
        g.label(labE)
        e(f's_mov_b32 s{P_WD}, s59')
        yield 'pack_dma'
    pack_issued = []
    def pack_dma_atom():
        pack_issued.append(1)
        e(f's_add_u32 m0, s{S_W4K}, {L_TH}'); e('s_nop 0')
        for q in range(4):
            g.vm(f'buffer_load_dwordx4 v{VPK+q}, s[{R_T}:{R_T+3}], s{P_WD} offen offset:{q*1024} lds', 'pk')

    def job_touch():
        U = T + 28
        e('s_mov_b32 s52, 0x24924925'); e(f'v_mul_hi_u32 v{U}, v{VL}, s52'); yield
        e(f'v_mul_u32_u24 v{U+1}, 7, v{U}'); e(f'v_sub_u32 v{U+1}, v{VL}, v{U+1}'); yield
        e(f's_and_b32 s53, s{S_C}, 3'); e('s_lshl_b32 s53, s53, 5'); e(f's_lshl_b32 s54, s{S_J}, 7'); e('s_add_u32 s53, s53, s54'); yield
        e(f's_lshl_b32 s54, s{S_W}, 3'); e('s_add_u32 s53, s53, s54'); e('s_movk_i32 s55, 1280'); yield
        e(f'v_add_u32 v{U+2}, s53, v{U}'); e(f'v_mul_lo_u32 v{U+2}, v{U+2}, s55'); yield
        e(f'v_lshl_add_u32 v{U+2}, v{U+1}, 7, v{U+2}'); e(f'v_cmp_gt_u32 vcc, 56, v{VL}'); yield
        e(f'v_add_u32 v{U+2}, 384, v{U+2}'); e(f'v_mov_b32 v{U+3}, 0x7fff0000'); e(f'v_cndmask_b32 v{U+2}, v{U+3}, v{U+2}, vcc')
        g.vm(f'buffer_load_dword a250, v{U+2}, s[{R_X}:{R_X+3}], 0 offen', 'tch'); yield
        e(f's_mul_i32 s53, s{S_C}, 40'); e(f's_and_b32 s54, s{S_J}, 7'); e('s_mul_i32 s54, s54, 5'); e('s_add_u32 s53, s53, s54'); yield
        e(f'v_add_u32 v{U+2}, s53, v{U}'); e(f'v_mul_lo_u32 v{U+2}, v{U+2}, s55'); yield
        e(f'v_lshl_add_u32 v{U+2}, v{U+1}, 7, v{U+2}'); e(f'v_cmp_gt_u32 vcc, 35, v{VL}'); yield
        e(f'v_add_u32 v{U+2}, 384, v{U+2}'); e('s_nop 0'); e(f'v_cndmask_b32 v{U+2}, v{U+3}, v{U+2}, vcc'); yield
        lab = g.newlab('TB'); lab2 = g.newlab('TBE')
        e(f's_cmp_ge_u32 s{S_W}, 2'); e(f's_cbranch_scc1 {lab}')
        e(f'buffer_load_dword a251, v{U+2}, s[{R_BRE}:{R_BRE+3}], 0 offen'); e(f's_branch {lab2}')
        g.label(lab)
        e(f'buffer_load_dword a251, v{U+2}, s[{R_BIM}:{R_BIM+3}], 0 offen')
        g.label(lab2); g.vq.append('tch'); yield
        e(f's_and_b32 s53, s{S_J}, 7'); e('s_mul_i32 s53, s53, 56'); e('s_add_u32 s53, s53, 192'); e('s_movk_i32 s55, 3072'); yield
        e(f'v_add_u32 v{U+2}, s53, v{VL}'); e(f'v_mul_lo_u32 v{U+2}, v{U+2}, s55'); yield
        e(f's_lshr_b32 s53, s{S_C}, 1'); e('s_mul_i32 s53, s53, 384'); e(f's_and_b32 s54, s{S_C}, 1'); yield
        e('s_lshl_b32 s54, s54, 8'); e(f's_and_b32 s56, s{S_W}, 1'); e('s_cmp_lg_u32 s56, 0'); e('s_cselect_b32 s54, 128, s54'); yield
        e('s_add_u32 s53, s53, s54'); e(f'v_add_u32 v{U+2}, s53, v{U+2}'); e(f'v_cmp_gt_u32 vcc, 56, v{VL}'); yield
        e('s_nop 0'); e(f'v_cndmask_b32 v{U+2}, v{U+3}, v{U+2}, vcc'); yield
        lab = g.newlab('TW'); lab2 = g.newlab('TWE')
        e(f's_cmp_ge_u32 s{S_W}, 2'); e(f's_cbranch_scc1 {lab}')
        e(f'buffer_load_dword a252, v{U+2}, s[{R_WG}:{R_WG+3}], 0 offen'); e(f's_branch {lab2}')
        g.label(lab)
        e(f'buffer_load_dword a252, v{U+2}, s[{R_WU}:{R_WU+3}], 0 offen')
        g.label(lab2); g.vq.append('tch'); yield

    def job_scalars():
        e(f's_lshl_b32 s53, s{S_J}, 3'); e(f's_lshl_b32 s54, s{S_W}, 1'); e('s_add_u32 s53, s53, s54'); e('s_mul_i32 s53, s53, 88'); yield
        e(f's_lshl_b32 s52, s{S_C}, 1'); e('s_add_u32 s52, s52, s53'); e(f's_lshl_b32 s{S_HQ}, s52, 10'); e(f's_add_u32 s{S_HQ+1}, s{S_HQ}, 1024'); yield
        e(f's_add_u32 s52, s{S_C}, 32'); e('s_add_u32 s52, s52, s53'); e(f's_lshl_b32 s{S_HQ+2}, s52, 10'); yield
        e(f's_mul_i32 s54, s{S_C}, 5'); yield
        for u in range(5):
            e(f's_add_u32 s55, s54, {u}'); e('s_lshr_b32 s56, s55, 2'); e('s_lshl_b32 s56, s56, 1'); e('s_add_u32 s56, s56, s53'); yield
            e('s_add_u32 s56, s56, 48'); e('s_lshl_b32 s56, s56, 10'); e('s_and_b32 s55, s55, 3'); e('s_lshl_b32 s55, s55, 8'); yield
            e(f's_add_u32 s{S_HC+u}, s56, s55'); yield
        e(f's_lshl_b32 s52, s{S_C}, 4'); e(f's_add_u32 s52, s52, s{S_J}'); e('s_mul_i32 s52, s52, 640'); e(f's_add_u32 s52, s52, {WS_EP}'); yield
        e(f's_mov_b32 s55, s52'); e(f's_cmp_lg_u32 s{S_W}, 3'); e(f's_cselect_b32 s{S_PUB}, 0x7ff00000, s52'); yield
        e(f's_lshl_b32 s52, s{S_J}, 6'); e(f's_lshl_b32 s53, s{S_C}, 2'); e('s_add_u32 s52, s52, s53'); e(f's_add_u32 s52, s52, {WS_FL}'); yield
        e(f's_cmp_lg_u32 s{S_W}, 0'); e(f's_cselect_b32 s{S_FO}, 0x7ff00000, s52'); yield
        e(f's_add_u32 s{S_FO+1}, s{S_FO}, 1024'); e(f's_add_u32 s{S_FO+2}, s{S_FO}, 2048'); e(f's_add_u32 s{S_FG}, s{S_FO}, 3072'); yield
        e('s_lshl_b32 s52, s2, 2'); e(f's_add_u32 s52, s52, {WS_FP}'); e(f's_cmp_lg_u32 s{S_W}, 0'); e(f's_cselect_b32 s{S_FPO}, 0x7ff00000, s52'); yield
        e(f's_lshr_b32 s52, s{S_TB}, 1'); e('s_lshl_b32 s52, s52, 6'); e(f's_add_u32 s{S_CF}, s52, {WS_FL}'); yield
        for mp in range(4):
            e(f's_lshl_b32 s52, s{S_W}, 2'); e(f's_add_u32 s52, s52, {1+mp}'); e('s_mul_i32 s53, s52, 640'); e('s_sub_u32 s53, s55, s53'); yield
            e(f's_cmp_ge_u32 s{S_J}, s52'); e(f's_cselect_b32 s{S_EL+mp}, s53, 0x7ff00000'); yield
        e(f's_lshl_b32 s{S_A2}, s{S_TB}, 2'); e(f's_add_u32 s{S_A2}, s{S_A2}, s{S_W}'); e(f's_mul_i32 s{S_A2}, s{S_A2}, {88*1024}'); yield
        e(f's_mul_i32 s{S_W2B}, s{S_DB}, 88'); e(f's_add_u32 s{S_W2B}, s{S_W2B}, s{S_W}'); e(f's_mul_i32 s{S_W2B}, s{S_W2B}, 5120'); e(f's_add_u32 s{S_W2B}, s{S_W2B}, {WS_W2}'); yield
        e(f's_mul_i32 s{S_W5K}, s{S_W}, 5120'); yield
    def job_tags():
        e(f'v_accvgpr_write_b32 a255, s{S_NON}'); yield
        for mp in range(4):
            e(f's_cmp_eq_u32 s{S_EL+mp}, 0x7ff00000'); e(f's_cselect_b32 s{S_TAG[mp]}, 0, s{S_NON}'); yield

    FP_ = Fill(g)
    FP_.add(job_ldsaddr()); FP_.add(job_small_loads()); FP_.add(job_nonce_pub())
    srd(g, R_X, P_X, 2048*1280)
    e(f's_mov_b32 s{S_PH}, s60'); e(f's_mov_b32 s{S_PH2}, s60')
    st0 = dma_stage(0)
    for i_, p in enumerate(st0):
        if i_ == 4:
            e(f's_cmp_ge_u32 s{S_W}, 2')
            e(f's_cselect_b32 s{R_BRE}, s{P_BIM}, s{P_BRE}'); e(f's_cselect_b32 s{R_BRE+1}, s{P_BIM+1}, s{P_BRE+1}')
            e(f's_and_b32 s{R_BRE+1}, s{R_BRE+1}, 0xffff'); e(f's_mov_b32 s{R_BRE+2}, {640*1280}'); e(f's_mov_b32 s{R_BRE+3}, 0x20000')
        if i_ == 7: srd(g, R_WG, P_WG, 640*3072); srd(g, R_WU, P_WU, 640*3072)
        p()
        FP_.run(5)
    while FP_.q and FP_.q[0][0].__name__ != 'job_nonce_pub': FP_.step()
    for p in dma_stage(1): p(); FP_.run(2)
    FP_.drain()
    FP_.add(job_pack_setup()); FP_.add(job_scalars())
    while FP_.q:
        FP_.step()
        if FP_.blocked == 'pack_dma': FP_.release('pack_dma')

    def job_gate():
        GX, GW, VGT = T+24, T+36, T+22
        srd(g, R_T, P_GW, 1280); yield
        e(f'v_lshrrev_b32 v{T+3}, 5, v{VL}'); e(f'v_and_b32 v{T+8}, 31, v{VL}'); yield
        e(f's_lshl_b32 s52, s{S_J}, 7'); e(f's_lshl_b32 s53, s{S_C}, 3'); e('s_add_u32 s52, s52, s53'); yield
        e(f's_lshl_b32 s53, s{S_W}, 1'); e('s_add_u32 s52, s52, s53'); e('s_movk_i32 s55, 1280'); yield
        e(f'v_add_u32 v{VGT}, s52, v{T+3}'); e(f'v_mul_lo_u32 v{T+9}, v{VGT}, s55'); yield
        e(f'v_lshl_add_u32 v{T+9}, v{T+8}, 4, v{T+9}'); e(f'v_lshlrev_b32 v{T+10}, 4, v{T+8}'); yield
        e(f'v_cmp_gt_u32 vcc, 16, v{T+8}'); e(f'v_mov_b32 v{T+11}, 0x7fff0000'); e('s_nop 0')
        e(f'v_cndmask_b32 v{T+11}, v{T+11}, v{T+9}, vcc'); yield
        g.vm(f'buffer_load_dwordx4 {vr(GX,4)}, v{T+9}, s[{R_X}:{R_X+3}], 0 offen', 'gate'); yield 2
        g.vm(f'buffer_load_dwordx4 {vr(GW,4)}, v{T+10}, s[{R_T}:{R_T+3}], 0 offen', 'gate'); yield 2
        g.vm(f'buffer_load_dwordx4 {vr(GX+4,4)}, v{T+9}, s[{R_X}:{R_X+3}], 0 offen offset:512', 'gate'); yield 2
        g.vm(f'buffer_load_dwordx4 {vr(GW+4,4)}, v{T+10}, s[{R_T}:{R_T+3}], 0 offen offset:512', 'gate'); yield 2
        g.vm(f'buffer_load_dwordx4 {vr(GX+8,4)}, v{T+11}, s[{R_X}:{R_X+3}], 0 offen offset:1024', 'gate'); yield 2
        g.vm(f'buffer_load_dwordx4 {vr(GW+8,4)}, v{T+10}, s[{R_T}:{R_T+3}], 0 offen offset:1024', 'gate'); yield 2
        e('s_mov_b32 s52, 0x3f803f80'); e(f'v_mov_b32 v{T+12}, 0'); yield 'nextbar'
        yield 'nextbar'
        g.wv('gate'); yield
        P_ = [T+14, T+16, T+18]
        for d in range(12 + 2):
            if d < 12:
                pr = P_[d % 3]
                e(f'v_and_b32 v{T+4}, 0xffff, v{GW+d}'); e(f'v_and_b32 v{T+5}, 0xffff0000, v{GW+d}'); yield
                e(f'v_dot2_f32_bf16 v{pr}, v{GX+d}, v{T+4}, 0'); e(f'v_dot2_f32_bf16 v{pr+1}, v{GX+d}, v{T+5}, 0'); yield
            else:
                e('s_nop 1'); yield
            if d >= 2:
                pr = P_[(d-2) % 3]
                e(f'v_cvt_pk_bf16_f32 v{T+20}, v{pr}, v{pr+1}'); e(f'v_dot2_f32_bf16 v{T+12}, v{T+20}, s52, v{T+12}'); yield
        e('s_nop 2'); yield
        for sh in (1, 2, 4, 8):
            e('s_nop 1'); e(f'v_add_f32_dpp v{T+12}, v{T+12}, v{T+12} row_ror:{sh} row_mask:0xf bank_mask:0xf'); yield
        e(f'v_mov_b32 v{T+13}, v{T+12}'); e('s_nop 1'); yield
        e(f'v_permlane16_swap_b32 v{T+12}, v{T+13}'); e(f'v_add_f32 v{T+12}, v{T+12}, v{T+13}'); yield
        e(f'v_cvt_pk_bf16_f32 v{T+12}, v{T+12}, v{T+12}'); e(f'v_lshlrev_b32 v{T+12}, 16, v{T+12}'); yield
        e(f'v_mul_f32 v{T+12}, 0xbfb8aa3b, v{T+12}'); e(f'v_exp_f32 v{T+12}, v{T+12}'); yield
        e('s_nop 0'); e(f'v_add_f32 v{T+12}, 1.0, v{T+12}'); e(f'v_rcp_f32 v{T+12}, v{T+12}'); yield
        e('s_nop 0'); e(f'v_cvt_pk_bf16_f32 v{T+12}, v{T+12}, v{T+12}'); e(f'v_lshlrev_b32 v{T+12}, 16, v{T+12}'); yield
        e(f'v_lshlrev_b32 v{T+13}, 2, v{VGT}'); e(f'v_add_u32 v{T+13}, {WS_G}, v{T+13}'); yield
        e(f'v_and_b32 v{T+14}, 31, v{VL}'); e(f'v_cmp_eq_u32 vcc, 0, v{T+14}')
        e('s_and_saveexec_b64 s[52:53], vcc')
        g.vm(f'buffer_store_dword v{T+12}, v{T+13}, s[{R_WS}:{R_WS+3}], 0 offen {o.st}', 'gst')
        e('s_mov_b64 exec, s[52:53]'); yield
        yield 'gate_done_mark'

    def job_lambda():
        g.wv('par'); yield
        A_, B_, DT = T+28, T+29, T+30
        Q = 224
        e(f'v_lshlrev_b32 v{PL}, 16, v{PL}'); e(f'v_lshlrev_b32 v{PL+1}, 16, v{PL+1}'); yield
        e(f'v_lshlrev_b32 v{PL+2}, 16, v{PL+2}'); e(f'v_mul_f32 v{DT}, {LOG2E}, v{PL+2}'); yield
        e(f'v_exp_f32 v{DT}, v{DT}'); e('s_nop 0'); yield
        e(f'v_cvt_pk_bf16_f32 v{DT}, v{DT}, v{DT}'); e(f'v_lshlrev_b32 v{DT}, 16, v{DT}'); yield
        e(f'v_mul_f32 v{A_}, v{DT}, v{PL}'); e(f'v_mul_f32 v{B_}, v{DT}, v{PL+1}'); yield
        e(f'v_mul_f32 v{A_}, {LOG2E}, v{A_}'); e(f'v_mul_f32 v{B_}, {INV2PI}, v{B_}'); yield
        e(f'v_exp_f32 v{A_}, v{A_}'); e(f'v_fract_f32 v{B_}, v{B_}'); yield
        e('s_nop 0'); e(f'v_cos_f32 v{Q}, v{B_}'); yield
        e(f'v_sin_f32 v{Q+1}, v{B_}'); e('s_nop 0'); yield
        e(f'v_mul_f32 v{Q}, v{Q}, v{A_}'); e(f'v_mul_f32 v{Q+1}, v{Q+1}, v{A_}'); yield
        e(f'v_add_f32 v{Q+2}, -1.0, v{Q}'); e(f'v_mul_f32 v{Q+3}, v{PL}, v{PL}'); yield
        e(f'v_fmac_f32 v{Q+3}, v{PL+1}, v{PL+1}'); e(f'v_rcp_f32 v{Q+3}, v{Q+3}'); yield
        e(f'v_mul_f32 v{Q+4}, v{Q+2}, v{PL}'); e(f'v_fmac_f32 v{Q+4}, v{Q+1}, v{PL+1}'); yield
        e(f'v_mul_f32 v{Q+5}, v{Q+1}, v{PL}'); e(f'v_fma_f32 v{Q+5}, -v{Q+2}, v{PL+1}, v{Q+5}'); yield
        e(f'v_mul_f32 v{CFR}, v{Q+4}, v{Q+3}'); e(f'v_mul_f32 v{CFI}, v{Q+5}, v{Q+3}'); yield
        cur = (Q, Q+1)
        slots = {2: (Q+6, Q+7), 4: (Q+8, Q+9), 8: (Q+6, Q+7), 16: (Q+10, Q+11), 32: (Q+12, Q+13), 64: (Q+14, Q+15),
                 128: (D128R, D128I), 256: (Q+6, Q+7), 512: (D512R, D512I)}
        for n_ in (2, 4, 8, 16, 32, 64, 128, 256, 512):
            ro, io = slots[n_]
            cmul_sq(cur[0], cur[1], ro, io, Q+16); cur = (ro, io); yield
        Z = Q + 18
        e(f's_and_b32 s52, s{S_W}, 1'); e('s_cmp_lg_u32 s52, 0'); e('s_cselect_b64 s[52:53], -1, 0'); yield
        e(f'v_mov_b32 v{Z}, 1.0'); e(f'v_mov_b32 v{Z+1}, 0'); yield
        e(f'v_cndmask_b32 v{Z}, v{Z}, v{Q+12}, s[52:53]'); e(f'v_cndmask_b32 v{Z+1}, v{Z+1}, v{Q+13}, s[52:53]'); yield
        e(f's_and_b32 s52, s{S_W}, 2'); e('s_cmp_lg_u32 s52, 0'); e('s_cselect_b64 s[52:53], -1, 0'); yield
        e(f'v_mov_b32 v{Z+2}, 1.0'); e(f'v_mov_b32 v{Z+3}, 0'); yield
        e(f'v_cndmask_b32 v{Z+2}, v{Z+2}, v{Q+14}, s[52:53]'); e(f'v_cndmask_b32 v{Z+3}, v{Z+3}, v{Q+15}, s[52:53]'); yield
        cmul(Z, Z+1, Z+2, Z+3, Z+4, Z+5); yield
        cmul(Z+4, Z+5, Q+10, Q+11, Z+6, Z+7); yield
        for a_, b_, d1, d2 in ((Q, Q, LR, XLR), (Q+1, Q+1, LI, XLI), (Q+10, Q+10, L16R, XL16R), (Q+11, Q+11, L16I, XL16I),
                               (Z+4, Z+6, PWR, XPWR), (Z+5, Z+7, PWI, XPWI)):
            redis(a_, b_, d1, d2); yield
        e(f'v_mov_b32 v{XCFR}, v{CFR}'); e(f'v_mov_b32 v{XCFI}, v{CFI}'); e('s_nop 1'); yield
        e(f'v_permlane32_swap_b32 v{CFR}, v{XCFR}'); e(f'v_permlane32_swap_b32 v{CFI}, v{XCFI}'); yield

    def job_pack():
        assert pack_issued
        g.wv('pk'); yield
        labS = g.newlab('PJS'); labE = g.newlab('PJE')
        e(f's_cmp_eq_u32 s{S_PK}, 2'); e(f's_cbranch_scc1 {labS}')
        e(f'v_lshrrev_b32 v{T+2}, 5, v{VL}'); e(f'v_lshlrev_b32 v{T+2}, 4, v{T+2}')
        e(f'v_bfe_u32 v{T+3}, v{VL}, 4, 1'); e(f'v_lshl_add_u32 v{T+2}, v{T+3}, 2, v{T+2}')
        e(f'v_bfe_u32 v{T+3}, v{VL}, 2, 2'); e(f'v_add_u32 v{T+2}, v{T+2}, v{T+3}')
        e(f'v_lshlrev_b32 v{T+2}, 7, v{T+2}')
        e(f'v_and_b32 v{T+3}, 3, v{VL}'); e(f'v_lshl_add_u32 v{T+2}, v{T+3}, 3, v{T+2}')
        e(f'v_add_u32 v{T+2}, s{S_W4K}, v{T+2}'); e(f'v_add_u32 v{T+2}, {L_TH}, v{T+2}')
        for tp in range(4):
            e(f'ds_read_b64_tr_b16 {vr(T+8+4*tp,2)}, v{T+2} offset:{tp*32}')
            e(f'ds_read_b64_tr_b16 {vr(T+10+4*tp,2)}, v{T+2} offset:{tp*32 + 8*128}')
        e(f's_branch {labE}')
        g.label(labS)
        e(f'v_and_b32 v{T+1}, 15, v{VL}'); e(f'v_lshrrev_b32 v{T}, 4, v{VL}')
        e(f'v_lshlrev_b32 v{T+2}, 8, v{T+1}'); e(f'v_add_u32 v{T+2}, s{S_W4K}, v{T+2}'); e(f'v_add_u32 v{T+2}, {L_TH}, v{T+2}')
        for tp in range(4):
            e(f'v_add_u32 v{T+3}, {4*tp}, v{T}'); e(f'v_xor_b32 v{T+3}, v{T+3}, v{T+1}')
            e(f'v_lshl_add_u32 v{T+3}, v{T+3}, 4, v{T+2}')
            e(f'ds_read_b128 {vr(T+8+4*tp,4)}, v{T+3}')
            e(f'ds_read_b128 {vr(T+8+4*tp,4)}, v{T+3}') if False else None
        for tp in range(4):
            e(f'ds_read_b32 v{T+24+tp}, v{T+2}')
        g.label(labE)
        g.lq += ['pkr'] * 8
        yield 4
        g.wl('pkr'); e(f'v_lshlrev_b32 v{T+4}, 4, v{VL}'); yield
        for tp in range(4):
            e(f's_lshl_b32 s52, s{S_PK+2}, 2'); e(f's_add_u32 s52, s52, {tp}')
            e(f's_add_u32 s53, s{S_PK+1}, {2*tp}')
            e(f's_cmp_eq_u32 s{S_PK}, 2'); e(f's_cselect_b32 s52, s{S_PK+2}, s52'); e(f's_cselect_b32 s53, s53, s{S_PK+1}'); yield
            e('s_mul_i32 s54, s52, 52429'); e('s_lshr_b32 s54, s54, 18')
            e('s_mul_i32 s55, s54, 5'); e('s_sub_u32 s55, s52, s55'); yield
            e('s_mul_i32 s54, s54, 88'); e('s_add_u32 s54, s54, s53'); e('s_mul_i32 s54, s54, 5'); e('s_add_u32 s54, s54, s55'); yield
            e('s_lshl_b32 s54, s54, 10'); e(f's_add_u32 s54, s54, {WS_W2}')
            e(f's_cmp_eq_u32 s{S_PK}, 0'); e('s_cselect_b32 s54, 0x7ff00000, s54')
            g.vm(f'buffer_store_dwordx4 {vr(T+8+4*tp,4)}, v{T+4}, s[{R_WS}:{R_WS+3}], s54 offen {o.st}', 'pst'); yield 2

    def job_nonce_load():
        g.vm(f'buffer_load_dword v{VNON}, off, s[{R_DBG}:{R_DBG+3}], 0 sc0 sc1', 'non'); yield
    def job_nonce_check():
        g.wv('non')
        lab = g.newlab('NP'); lab2 = g.newlab('NPD')
        e(f's_mov_b32 s60, {SPIN_MAX}')
        g.label(lab)
        e(f'v_readfirstlane_b32 s{S_NON}, v{VNON}'); e('s_nop 3')
        e(f's_cmp_lg_u32 s{S_NON}, 0'); e(f's_cbranch_scc1 {lab2}')
        e('s_sub_u32 s60, s60, 1'); e('s_cmp_eq_u32 s60, 0'); e(f's_cbranch_scc1 {lab2}')
        e('s_sleep 2')
        e(f'buffer_load_dword v{VNON}, off, s[{R_DBG}:{R_DBG+3}], 0 sc0 sc1'); e('s_waitcnt vmcnt(0)')
        e(f's_branch {lab}')
        g.label(lab2)
        yield

    def flag_atom(sreg):
        e('s_mov_b64 exec, 1')
        g.vm(f'buffer_store_dword a255, off, s[{R_WS}:{R_WS+3}], s{sreg} sc0 sc1', 'flag')
        e('s_mov_b64 exec, -1')

    tiles = ['R', 'I', 'X', 'G0', 'G1', 'U0', 'U1']
    accs = {'R': aR, 'I': aI, 'X': aX, 'G0': aG[0], 'G1': aG[1], 'U0': aU[0], 'U1': aU[1]}
    def reads(K):
        s, kk = divmod(K, 4); slot = s % 3; fs = AF[K % 2]
        R = []
        R.append((f'x{K}', f'ds_read_b128 {ar(AX+4*K,4)}, v{VXA+kk} offset:{slot*XS}'))
        R.append((f'R{K}', f'ds_read_b128 {ar(fs,4)}, v{VBR+kk} offset:{slot*BS}'))
        R.append((f'I{K}', f'ds_read_b128 {ar(fs+4,4)}, v{VBR+(kk^2)} offset:{slot*BS+5120}'))
        R.append((f'X{K}', f'ds_read_b128 {ar(fs+8,4)}, v{VXX+kk} offset:{slot*BS}'))
        for m in range(2):
            for ft in range(2):
                t = ('G', 'U')[m] + str(ft)
                fr = fs + 12 + 4*(2*m+ft)
                for rd in range(2):
                    R.append((f'{t}{K}', f'ds_read_b64_tr_b16 {ar(fr+2*rd,2)}, v{VWR+ft} offset:{slot*WSZ + m*8192 + kk*2048 + rd*512}'))
        return R
    def mfma1(t, K):
        fs = AF[K % 2]; x = ar(AX+4*K, 4); d = vr(accs[t], 16); cc = d if K else '0'
        idx = tiles.index(t); f = ar(fs + 4*idx, 4)
        if idx < 3: e(f'v_mfma_f32_32x32x16_bf16 {d}, {x}, {f}, {cc}')
        else:       e(f'v_mfma_f32_32x32x16_bf16 {d}, {f}, {x}, {cc}')

    if o.touch: F.add(job_touch())
    lam = job_lambda()
    def job_lambda_wrap():
        for _ in range(o.lam_first):
            yield next(lam)
    def job_lambda_rest():
        yield from lam
    done = set()
    def mark(name):
        done.add(name)
        return
        yield
    F.add(job_nonce_load()); F.add(job_lambda_wrap()); F.add(job_pack()); F.add(job_nonce_check()); F.add(job_tags()); F.add(mark('pack')); F.add(job_lambda_rest())
    g.wl0()
    n = g.wv_n('st0')
    e(f's_waitcnt vmcnt({n})')
    e('s_barrier')
    if o.prefill:
        pack_dma_atom(); F.drain()
    stamp(1)
    for tg, tx in reads(0): g.lds(tx, tg)
    pend = dma_stage(2)
    for K in range(40):
        s, kk = divmod(K, 4)
        nxt = reads(K+1) if K < 39 else []
        gaps = [[] for _ in range(7)]
        rg = (1, 3, 5, 6) if kk < 3 else (3, 4, 5, 6)
        for i_, rd in enumerate(nxt): gaps[rg[i_ // 3]].append(rd)
        dg = (0, 2, 4) if kk < 3 else (0, 1)
        for ti, t in enumerate(tiles):
            need = [f'{t}{K}'] + ([f'x{K}'] if ti == 0 else [])
            if ti % 2 == 0:
                if ti + 1 < 7: need.append(f'{tiles[ti+1]}{K}')
                g.wl(need)
            mfma1(t, K)
            n0 = g.n
            if kk == 3 and ti == 2:
                while pend: pend.pop(0)()
                tags = [f'st{s+1}']
                if s == o.fp_stage: tags.append('pst')
                nv = g.wv_n(tags)
                g.lq = []
                stg_pre()
                e(f's_waitcnt vmcnt({nv}) lgkmcnt(0)' if nv is not None else 's_waitcnt lgkmcnt(0)')
                e('s_barrier')
                stg_post()
                F.barrier()
                if s == o.fp_stage:
                    assert 'pack' in done, 'pack job must be finished before the pack flag'
                    flag_atom(S_FPO)
                if s == o.pk_stage and not o.prefill:
                    pack_dma_atom()
                if s + 3 <= 11: pend = dma_stage(s + 3)
            for tg, tx in gaps[ti]: g.lds(tx, tg)
            if ti in dg and pend and not (kk == 3 and ti == 2):
                pend.pop(0)()
            wcost = 1 if ti in (1, 3, 5, 6) else 0
            if not o.nofill and not (kk == 3 and ti in (1, 2)):
                F.run(o.p1_budget - wcost - (g.n - n0))
    assert not pend
    if o.nofill: F.drain()
    assert F.empty()
    stamp(2)

    def glu_epi(q, tag):
        Gr, Ur = aG[q], aU[q]
        H = T + 16
        for p in range(8):
            if o.mimic:
                e(f'v_cvt_pk_bf16_f32 v{T}, v{Gr+2*p}, v{Gr+2*p+1}'); e(f'v_cvt_pk_bf16_f32 v{T+1}, v{Ur+2*p}, v{Ur+2*p+1}'); yield
                e(f'v_lshlrev_b32 v{T+2}, 16, v{T}'); e(f'v_and_b32 v{T+3}, 0xffff0000, v{T}'); yield
                e(f'v_lshlrev_b32 v{T+4}, 16, v{T+1}'); e(f'v_and_b32 v{T+5}, 0xffff0000, v{T+1}'); yield
                e(f'v_mul_f32 v{T+2}, v{T+2}, v{T+4}'); e(f'v_mul_f32 v{T+3}, v{T+3}, v{T+5}'); yield
            else:
                e(f'v_mul_f32 v{T+2}, v{Gr+2*p}, v{Ur+2*p}'); e(f'v_mul_f32 v{T+3}, v{Gr+2*p+1}, v{Ur+2*p+1}'); yield
            e(f'v_cvt_pk_bf16_f32 v{H+p}, v{T+2}, v{T+3}'); yield
        g.vm(f'buffer_store_dwordx4 {vr(H,4)}, v{VHO}, s[{R_WS}:{R_WS+3}], s{S_HQ+q} offen {o.st}', tag); yield 1
        g.vm(f'buffer_store_dwordx4 {vr(H+4,4)}, v{VHO}, s[{R_WS}:{R_WS+3}], s{S_HQ+q} offen offset:512 {o.st}', tag); e('s_nop 1'); yield

    def job_hoaddr():
        e(f'v_bfe_u32 v{T}, v{VL}, 4, 1'); e(f'v_mul_u32_u24 v{T}, {88*1024}, v{T}'); yield
        e(f'v_lshrrev_b32 v{T+1}, 5, v{VL}'); e(f'v_lshl_add_u32 v{T}, v{T+1}, 8, v{T}'); yield
        e(f'v_and_b32 v{T+1}, 15, v{VL}'); e(f'v_lshl_add_u32 v{VHO}, v{T+1}, 4, v{T}'); yield

    E_RD = T + 16; E_RX = T + 32
    def job_aggr2():
        er, ei, tr_, ti_ = T, T+1, T+2, T+3
        XB = T+4; xo, xt = T+5, T+6
        e(f'v_mov_b32 v{er}, v{aR}'); e(f'v_mov_b32 v{ei}, v{aI}'); yield
        e(f'v_bfe_u32 v{T+7}, v{VL}, 3, 1'); e(f'v_cmp_eq_u32 s[56:57], 1, v{T+7}'); yield
        e(f'v_sub_f32 v{XB}, 0, v{XLI}'); e(f'v_mov_b32 v{xo}, v{aX}'); e(f'v_cndmask_b32 v{XB}, v{XB}, v{XLI}, s[56:57]'); yield
        cur = (er, ei); alt = (tr_, ti_); xc, xa = xo, xt
        for r in range(1, 16):
            e(f'v_fma_f32 v{xa}, v{XLR}, v{xc}, v{aX+r}')
            e(f'v_fma_f32 v{alt[0]}, v{LR}, v{cur[0]}, v{aR+r}'); yield
            e(f'v_fma_f32 v{alt[1]}, v{LR}, v{cur[1]}, v{aI+r}')
            e(f'v_fma_f32 v{alt[0]}, -v{LI}, v{cur[1]}, v{alt[0]}'); yield
            e(f'v_fmac_f32 v{alt[1]}, v{LI}, v{cur[0]}')
            e(f'v_fmac_f32_dpp v{xa}, v{xc}, v{XB} row_ror:8 row_mask:0xf bank_mask:0xf'); yield
            cur, alt = alt, cur; xc, xa = xa, xc
        e(f'v_lshrrev_b32 v{T+8}, 5, v{VL}'); e(f's_lshl_b32 s52, s{S_W}, 1'); e('s_add_u32 s52, s52, 7'); yield
        e(f'v_add_u32 v{T+8}, s52, v{T+8}'); e(f'v_lshlrev_b32 v{T+8}, 9, v{T+8}'); yield
        e(f'v_add_u32 v{T+8}, {L_TE}, v{T+8}'); e(f'v_and_b32 v{T+9}, 31, v{VL}'); yield
        e(f'v_lshl_add_u32 v{T+10}, v{T+9}, 3, v{T+8}')
        g.lds(f'ds_write_b64 v{T+10}, {vr(cur[0],2)}', 'ew'); yield
        e(f'v_and_b32 v{T+11}, 7, v{VL}'); e(f'v_lshl_add_u32 v{T+11}, v{T+11}, 3, v{T+8}'); yield
        e(f'v_add_u32 v{T+11}, 256, v{T+11}'); e(f'v_lshl_add_u32 v{T+12}, v{T+7}, 2, v{T+11}'); yield
        e(f'v_cmp_gt_u32 vcc, 16, v{T+9}')
        e('s_and_saveexec_b64 s[52:53], vcc')
        g.lds(f'ds_write_b32 v{T+12}, v{xc}', 'ew')
        e('s_mov_b64 exec, s[52:53]'); yield
        e(f'v_subrev_u32 v{T+13}, {7*512}, v{T+10}'); e(f'v_subrev_u32 v{T+14}, {7*512}, v{T+11}'); yield 'p2_bar'
        g.lds(f'ds_read_b64 {vr(E_RD,2)}, v{T+10}', 'er'); yield
        for m in range(1, 8):
            g.lds(f'ds_read_b64 {vr(E_RD+2*m,2)}, v{T+13} offset:{(7-m)*512}', 'er'); yield
        def horner(RDb, lr, li, pr_, pi2):
            cur = (RDb+14, RDb+15); alt = (T+48, T+49); alt2 = (T+50, T+51)
            for m in range(6, 0, -1):
                dst = (pr_, pi2) if m == 1 else (alt if cur != alt else alt2)
                e(f'v_fma_f32 v{dst[0]}, v{lr}, v{cur[0]}, v{RDb+2*m}'); e(f'v_fma_f32 v{dst[1]}, v{lr}, v{cur[1]}, v{RDb+2*m+1}'); yield
                e(f'v_fma_f32 v{dst[0]}, -v{li}, v{cur[1]}, v{dst[0]}'); e(f'v_fmac_f32 v{dst[1]}, v{li}, v{cur[0]}'); yield
                cur = dst
        g.lds(f'ds_read_b64 {vr(E_RX,2)}, v{T+11}', 'ex'); yield
        for m in range(1, 8):
            g.lds(f'ds_read_b64 {vr(E_RX+2*m,2)}, v{T+14} offset:{(7-m)*512}', 'ex'); yield
        yield 2
        g.wl('er'); yield
        yield from horner(E_RD, L16R, L16I, PR, PI)
        g.wl('ex'); yield
        yield from horner(E_RX, XL16R, XL16I, XPR, XPI)
        cfma(L16R, L16I, PR, PI, E_RD, E_RD+1, T+48, T+50); yield
        cfma(XL16R, XL16I, XPR, XPI, E_RX, E_RX+1, T+20, T+22); yield
        e(f'v_mov_b32 v{T+49}, s{S_NON}'); e(f'v_mov_b32 v{T+51}, s{S_NON}'); yield
        e(f'v_mov_b32 v{T+21}, s{S_NON}'); e(f'v_mov_b32 v{T+23}, s{S_NON}'); yield
        e(f'v_lshlrev_b32 v{T+12}, 4, v{T+9}'); yield
        e('s_mov_b32 exec_lo, 0')
        g.vm(f'buffer_store_dwordx4 {vr(T+48,4)}, v{T+12}, s[{R_WS}:{R_WS+3}], s{S_PUB} offen sc0 sc1', 'pub')
        e('s_mov_b32 exec_hi, 0xff')
        g.vm(f'buffer_store_dwordx4 {vr(T+20,4)}, v{T+12}, s[{R_WS}:{R_WS+3}], s{S_PUB} offen offset:512 sc0 sc1', 'pub')
        e('s_mov_b64 exec, -1'); yield

    NS = 22
    SLOT = G2_SLOT
    def g2_issue_w(S):
        tag = f'w{S}'; P = []
        def w0():
            e(f's_add_u32 m0, s{S_W5K}, {SLOT[S % 4]}'); e(f's_add_u32 s42, s{S_W2B}, {S*4*5120}')
            g.vm(f'buffer_load_dwordx4 v{VAO2}, s[{R_WS}:{R_WS+3}], s42 offen {o.ld} lds', tag)
        P.append(w0)
        for t in range(1, 4):
            P.append(lambda t=t: g.vm(f'buffer_load_dwordx4 v{VAO2}, s[{R_WS}:{R_WS+3}], s42 offen offset:{t*1024} {o.ld} lds', tag))
        def w4():
            e(f's_add_u32 m0, s{S_W5K}, {SLOT[S % 4] + 4096}'); e('s_add_u32 s42, s42, 4096')
            g.vm(f'buffer_load_dwordx4 v{VAO2}, s[{R_WS}:{R_WS+3}], s42 offen {o.ld} lds', tag)
        P.append(w4)
        return P
    def g2_issue_a(S):
        tag = f'a{S}'; P = []
        def a0():
            e(f's_add_u32 s45, s{S_A2}, {S*4096}')
            g.vm(f'buffer_load_dwordx4 {ar(G2A + 16*(S % 4), 4)}, v{VAO2}, s[{R_WS}:{R_WS+3}], s45 offen {o.ld}', tag)
        P.append(a0)
        for k in range(1, 4):
            P.append(lambda k=k: g.vm(f'buffer_load_dwordx4 {ar(G2A + 16*(S % 4) + 4*k, 4)}, v{VAO2}, s[{R_WS}:{R_WS+3}], s45 offen offset:{k*1024} {o.ld}', tag))
        return P
    FP_LD = f'buffer_load_dwordx4 {vr(T+52,4)}, v{VAO2}, s[{R_WS}:{R_WS+3}], s{S_FPB} offen sc1'
    def fl_ld(kind, vdst): return f'buffer_load_dword v{vdst}, v{VFL}, s[{R_WS}:{R_WS+3}], s{S_CF} offen offset:{kind*1024} sc1'
    def job_g2setup():
        e(f'v_lshlrev_b32 v{VAO2}, 4, v{VL}'); e(f's_mov_b32 s{S_FPB}, {WS_FP}'); yield
        g.vm(FP_LD, 'fp'); yield
        e(f'v_mov_b32 v{VRD[0]}, v{VAO2}'); e(f'v_add_u32 v{VRD[1]}, 49152, v{VAO2}'); e(f'v_add_u32 v{VRD[2]}, 100352, v{VAO2}'); yield
        e(f'v_and_b32 v{VFL}, 15, v{VL}'); e(f'v_lshlrev_b32 v{VFL}, 2, v{VFL}'); yield

    P2F = 160
    def reads2(K):
        ss, kk = divmod(K, 4); base = p2_base(ss); fs = P2F + 8*(K % 4)
        b = base // 49152
        off = base - b*49152
        breg = (VP2, VP2+1, 0)[b]
        R = []
        for m in range(2):
            for rd in range(2):
                R.append((f'p{m}_{K}', f'ds_read_b64_tr_b16 {ar(fs+4*m+2*rd,2)}, v{breg} offset:{off + m*4096 + kk*1024 + rd*256}'))
        return R
    def chain(*gens):
        for x in gens: yield from x
    F.add(job_g2setup()); F.add(job_hoaddr()); F.add(glu_epi(0, 'hA')); F.add(glu_epi(1, 'hA')); F.add(job_aggr2())
    e('s_nop 7')
    for K_ in range(3):
        for tg, tx in reads2(K_): g.lds(tx, tg)
    pend = []
    F2 = Fill(g)
    def job_pre():
        for S in range(3):
            for p in g2_issue_w(S):
                p(); yield
    KB2 = o.p2_ebar; KB1 = 17
    for K in range(40):
        fs = P2F + 8*(K % 4); x = ar(AX+4*K, 4)
        nxt = reads2(K+3) if K + 3 < 40 else []
        for m in range(2):
            if m == 0: g.wl([f'p0_{K}', f'p1_{K}'])
            d = vr((aG[2], aU[2])[m], 16); cc = d if K else '0'
            e(f'v_mfma_f32_32x32x16_bf16 {d}, {ar(fs+4*m,4)}, {x}, {cc}')
            n0 = g.n
            if K == KB1 and m == 0:
                spin_flags(FP_LD, T+52, 4, 'fp')
                nv = g.wv_n(['st11'])
                g.lq = []
                stg_pre()
                e(f's_waitcnt vmcnt({nv}) lgkmcnt(0)' if nv is not None else 's_waitcnt lgkmcnt(0)')
                e('s_barrier')
                stg_post()
                F2.add(job_pre())
            if K == KB2 and m == 0:
                while F.blocked != 'p2_bar': F.step()
                stg_pre()
                g.wl0()
                e('s_barrier')
                stg_post()
                F.release('p2_bar')
            if K == o.p2_fa and m == 0:
                g.wv('hA')
                e('s_barrier')
                flag_atom(S_FO)
            for tg, tx in nxt[2*m:2*m+2]: g.lds(tx, tg)
            if K >= KB1: F2.run(2)
            F.run(o.p2_budget - (g.n - n0))
        if K == KB1 - 1:
            while 'fp' not in g.vq: F.step()
    F.drain()
    F2.drain()
    e('s_nop 7'); e('s_nop 3')
    stamp(3)
    for _ in glu_epi(2, 'hB'): pass
    stamp(4)

    XS_ = 232
    RS_ = 9
    EL = T + 8
    def el(mp): return f'buffer_load_dwordx4 {vr(EL+4*mp,4)}, v{T}, s[{R_WS}:{R_WS+3}], s{S_EL+mp} offen sc0 sc1'
    AW, AR0, AR1, AS = T+44, T+45, T+46, T+47
    XB = T+48; NLI = T+49
    def tail_part1():
        e(f'v_and_b32 v{T}, 7, v{VL}'); e(f'v_add_u32 v{T}, 32, v{T}')
        e(f'v_cmp_gt_u32 vcc, 32, v{VL}'); e('s_nop 1'); e(f'v_cndmask_b32 v{T}, v{T}, v{VL}, vcc'); e(f'v_lshlrev_b32 v{T}, 4, v{T}')
        for mp in range(4): g.vm(el(mp), 'el')
        g.vm(fl_ld(0, T+52), 'fa')
        XA, XBb, NCR, NCI = T+4, T+5, T+6, T+7
        e(f'v_bfe_u32 v{T+1}, v{VL}, 3, 1'); e(f'v_cmp_eq_u32 s[56:57], 1, v{T+1}')
        e(f'v_sub_f32 v{XA}, 0, v{XCFR}'); e(f'v_sub_f32 v{XBb}, 0, v{XCFI}')
        e(f'v_cndmask_b32 v{XA}, v{XCFR}, v{XA}, s[56:57]')
        for p in range(8):
            r = 2*p
            e(f'v_pk_mul_f32 {vr(T+24,2)}, {vr(aR+r,2)}, {vr(CFR,2)} op_sel_hi:[1,0]')
            e(f'v_pk_mul_f32 {vr(T+26,2)}, {vr(aI+r,2)}, {vr(CFR,2)} op_sel_hi:[1,0] neg_lo:[0,1] neg_hi:[0,1]')
            e(f'v_mul_f32 v{XS_+r}, v{XA}, v{aX+r}'); e(f'v_mul_f32 v{XS_+r+1}, v{XA}, v{aX+r+1}')
            e(f'v_pk_fma_f32 {vr(T+24,2)}, {vr(aI+r,2)}, {vr(CFR,2)}, {vr(T+24,2)} op_sel:[0,1,0] op_sel_hi:[1,1,1] neg_lo:[0,1,0] neg_hi:[0,1,0]')
            e(f'v_pk_fma_f32 {vr(aI+r,2)}, {vr(aR+r,2)}, {vr(CFR,2)}, {vr(T+26,2)} op_sel:[0,1,0] op_sel_hi:[1,1,1] neg_lo:[0,1,0] neg_hi:[0,1,0]')
            e(f'v_fmac_f32_dpp v{XS_+r}, v{aX+r}, v{XBb} row_ror:8 row_mask:0xf bank_mask:0xf')
            e(f'v_fmac_f32_dpp v{XS_+r+1}, v{aX+r+1}, v{XBb} row_ror:8 row_mask:0xf bank_mask:0xf')
            e(f'v_pk_mul_f32 {vr(aR+r,2)}, {vr(T+24,2)}, 1.0 op_sel_hi:[1,0]')
        t0 = T + 24
        for (pr_, pi_, cr_, ci_) in ((PR, PI, CFR, CFI), (XPR, XPI, XCFR, XCFI)):
            e(f'v_mul_f32 v{t0}, v{cr_}, v{pr_}'); e(f'v_mul_f32 v{t0+1}, v{cr_}, v{pi_}')
            e(f'v_fma_f32 v{t0}, -v{ci_}, v{pi_}, v{t0}'); e(f'v_fmac_f32 v{t0+1}, v{ci_}, v{pr_}')
            e(f'v_mov_b32 v{pr_}, v{t0}'); e(f'v_sub_f32 v{pi_}, 0, v{t0+1}')
        for (pr_, pi_, cr_, ci_) in ((PWR, PWI, CFR, CFI), (XPWR, XPWI, XCFR, XCFI)):
            cmul(pr_, pi_, cr_, ci_, t0, t0+1)
            e(f'v_mov_b32 v{pr_}, v{t0}'); e(f'v_mov_b32 v{pi_}, v{t0+1}')
    def tail_addr():
        e(f's_mul_i32 s52, s{S_W}, {TH_W}'); e(f's_add_u32 s52, s52, {L_TH}'); e(f'v_and_b32 v{T+28}, 31, v{VL}')
        e(f'v_mul_u32_u24 v{AW}, {TH_PITCH}, v{T+28}'); e(f'v_lshrrev_b32 v{T+29}, 5, v{VL}')
        e(f'v_lshl_add_u32 v{AW}, v{T+29}, 5, v{AW}'); e(f'v_add_u32 v{AW}, s52, v{AW}')
        e(f'v_bfe_u32 v{T+30}, v{VL}, 2, 2'); e(f'v_lshl_add_u32 v{AR0}, v{T+29}, 5, v{T+30}')
        e(f'v_lshl_add_u32 v{AR1}, v{T+29}, 3, v{T+30}'); e(f'v_and_b32 v{T+31}, 1, v{VL}')
        e(f'v_lshlrev_b32 v{T+31}, 5, v{T+31}'); e(f'v_bfe_u32 v{T+30}, v{VL}, 4, 1')
        e(f'v_lshl_add_u32 v{T+31}, v{T+30}, 4, v{T+31}'); e(f'v_mul_u32_u24 v{AS}, {88*1024}, v{T+30}')
        e(f'v_bfe_u32 v{T+30}, v{VL}, 1, 1'); e(f'v_lshl_add_u32 v{T+31}, v{T+30}, 3, v{T+31}')
        e(f'v_add_u32 v{T+31}, s52, v{T+31}'); e(f's_movk_i32 s53, {TH_PITCH}')
        e(f'v_mad_u32_u24 v{AR0}, v{AR0}, s53, v{T+31}'); e(f'v_mad_u32_u24 v{AR1}, v{AR1}, s53, v{T+31}')
        e(f'v_lshl_add_u32 v{AS}, v{T+29}, 10, v{AS}'); e(f'v_and_b32 v{T+30}, 15, v{VL}')
        e(f'v_lshl_add_u32 v{AS}, v{T+30}, 4, v{AS}')
        e(f'v_sub_f32 v{XB}, 0, v{XLI}'); e(f'v_sub_f32 v{NLI}, 0, v{LI}'); e('s_nop 0')
        e(f'v_cndmask_b32 v{XB}, v{XLI}, v{XB}, s[56:57]')
    def tail_part2():
        lab = g.newlab('LB'); lab2 = g.newlab('LBD')
        g.wv('el')
        e(f's_mov_b32 s61, {SPIN_MAX}')
        g.label(lab)
        e('s_mov_b64 s[52:53], 0')
        for mp in range(4):
            e(f'v_cmp_ne_u32 vcc, s{S_TAG[mp]}, v{EL+4*mp+1}'); e('s_or_b64 s[52:53], s[52:53], vcc')
            e(f'v_cmp_ne_u32 vcc, s{S_TAG[mp]}, v{EL+4*mp+3}'); e('s_or_b64 s[52:53], s[52:53], vcc')
        e('s_cmp_eq_u64 s[52:53], 0'); e(f's_cbranch_scc1 {lab2}')
        e('s_sub_u32 s61, s61, 1'); e('s_cmp_eq_u32 s61, 0'); e(f's_cbranch_scc1 {lab2}')
        e('s_sleep 4')
        for mp in range(4): e(el(mp))
        e('s_waitcnt vmcnt(0)')
        e(f's_branch {lab}')
        g.label(lab2)
        cfma(D128R, D128I, EL+12, EL+14, EL+8, EL+10, T+24, T+25)
        cfma(D128R, D128I, T+24, T+25, EL+4, EL+6, T+26, T+27)
        cfma(D128R, D128I, T+26, T+27, EL, EL+2, T+24, T+25)
        e(f'v_lshlrev_b32 v{T+1}, 3, v{VL}'); e(f's_lshl_b32 s52, s{S_W}, 9'); e(f's_add_u32 s52, s52, {L_TQ}')
        e(f'v_add_u32 v{T+2}, s52, v{T+1}')
        g.lds(f'ds_write_b64 v{T+2}, {vr(T+24,2)}', 'q')
        e(f'v_add_u32 v{T+1}, {L_TQ}, v{T+1}')
    def tail_part3():
        def cfma_y(lr, li, hr, hi, ur, ui, ro, io):
            e(f'v_fma_f32 v{ro}, v{lr}, v{hr}, v{ur}'); e(f'v_fma_f32 v{io}, v{lr}, v{hi}, v{ui}'); yield
            e(f'v_fma_f32 v{ro}, -v{li}, v{hi}, v{ro}'); e(f'v_fmac_f32 v{io}, v{li}, v{hr}'); yield
        for k in range(4):
            g.lds(f'ds_read_b64 {vr(T+28+2*k,2)}, v{T+1} offset:{k*512}', 'qr'); yield (3 if k == 3 else None)
        g.wl('qr'); yield
        yield from cfma_y(D512R, D512I, T+34, T+35, T+32, T+33, T+24, T+25)
        yield from cfma_y(D512R, D512I, T+24, T+25, T+30, T+31, T+26, T+27)
        yield from cfma_y(D512R, D512I, T+26, T+27, T+28, T+29, T+24, T+25)
        CR, CI, XCR, XCI = T+36, T+37, T+38, T+39
        redis(T+24, T+24, CR, XCR); yield
        redis(T+25, T+25, CI, XCI); yield
        hr, hy, xp = T+40, T+41, T+17
        e(f'v_fma_f32 v{hr}, v{PWR}, v{CR}, v{PR}'); e(f'v_fma_f32 v{hy}, -v{PWR}, v{CI}, v{PI}'); yield
        e(f'v_fma_f32 v{hr}, -v{PWI}, v{CI}, v{hr}'); e(f'v_fma_f32 v{hy}, -v{PWI}, v{CR}, v{hy}'); yield
        e(f'v_fma_f32 v{T+42}, v{XPWR}, v{XCR}, v{XPR}'); e(f'v_fma_f32 v{T+43}, -v{XPWR}, v{XCI}, v{XPI}'); yield
        e(f'v_fma_f32 v{T+42}, -v{XPWI}, v{XCI}, v{T+42}'); e(f'v_fma_f32 v{T+43}, -v{XPWI}, v{XCR}, v{T+43}'); yield
        e(f'v_cndmask_b32 v{xp}, v{T+42}, v{T+43}, s[56:57]'); e('s_nop 0'); yield
        PK = T + 20
        for r in range(16):
            e(f'v_fmac_f32 v{XS_+r}, v{XLR}, v{xp}'); e(f'v_fmac_f32 v{aR+r}, v{LR}, v{hr}'); yield
            e(f'v_fmac_f32 v{aI+r}, v{LR}, v{hy}'); e(f'v_fmac_f32 v{aR+r}, v{LI}, v{hy}'); yield
            e(f'v_fmac_f32 v{aI+r}, v{NLI}, v{hr}')
            e(f'v_fmac_f32_dpp v{XS_+r}, v{xp}, v{XB} row_ror:8 row_mask:0xf bank_mask:0xf'); yield
            hr, hy, xp = aR+r, aI+r, XS_+r
            if r % 2 == 1:
                p = r // 2
                e(f'v_cvt_pk_bf16_f32 v{PK+p}, v{aR+r-1}, v{aR+r}'); e(f'v_cvt_pk_bf16_f32 v{PK+8+p}, v{aI+r-1}, v{aI+r}'); yield
                e(f'v_cvt_pk_bf16_f32 v{PK+16+p}, v{XS_+r-1}, v{XS_+r}'); yield
        for cmp_ in range(2):
            for k in range(4):
                g.lds(f'ds_write_b64 v{AW}, {vr(PK+8*cmp_+2*k,2)} offset:{cmp_*32*TH_PITCH + k*8}', 'tw'); yield (1 if k % 2 else None)
        e(f'v_and_b32 v{T+12}, 31, v{VL}'); e(f'v_cmp_gt_u32 vcc, 16, v{T+12}')
        e('s_and_saveexec_b64 s[54:55], vcc')
        for k in range(4):
            g.lds(f'ds_write_b64 v{AW}, {vr(PK+16+2*k,2)} offset:{64*TH_PITCH + k*8}', 'tw')
        e('s_mov_b64 exec, s[54:55]'); yield 4
        return
        yield
    def job_tail():
        yield 2
        g.wl('tw'); yield
        HO = T + 20
        for u in range(5):
            for rd in range(2):
                if u < 4: g.lds(f'ds_read_b64_tr_b16 {vr(HO+4*u+2*rd,2)}, v{AR0} offset:{(8*u + 4*rd)*TH_PITCH}', f'tr{u}')
                else:     g.lds(f'ds_read_b64_tr_b16 {vr(HO+4*u+2*rd,2)}, v{AR1} offset:{(64 + 4*rd)*TH_PITCH}', f'tr{u}')
                yield (3 if (u == 4 and rd == 1) else None)
        for u in range(5):
            g.wl(f'tr{u}')
            if o.x_nohc: g.vq.append('hC'); g.vq.pop(); g.vm('s_nop 0', 'hC') if False else None
            else: g.vm(f'buffer_store_dwordx4 {vr(HO+4*u,4)}, v{AS}, s[{R_WS}:{R_WS+3}], s{S_HC+u} offen {o.st}', 'hC')
            yield o.st_gap
        yield 'tail_done_mark'

    OG = T + 8; G2_ = T + 12; VO = T + 16
    L_EX = L_TE
    EXW = 2816
    def job_epi_loads():
        srd(g, R_T, P_DSK, 1280); yield
        e(f's_lshl_b32 s52, s{S_TB}, 6'); e(f's_lshr_b32 s53, s{S_W}, 1'); e('s_lshl_b32 s53, s53, 5'); e('s_add_u32 s52, s52, s53'); yield
        e(f's_and_b32 s53, s{S_W}, 1'); e('s_lshl_b32 s53, s53, 3'); e('s_add_u32 s52, s52, s53'); yield
        e(f'v_bfe_u32 v{VTOK}, v{VL}, 4, 1'); e(f'v_lshlrev_b32 v{VTOK}, 4, v{VTOK}'); yield
        e(f'v_lshrrev_b32 v{VD}, 5, v{VL}'); e(f'v_lshl_add_u32 v{VTOK}, v{VD}, 2, v{VTOK}'); yield
        e(f'v_add_u32 v{VTOK}, s52, v{VTOK}'); e(f'v_and_b32 v{VD}, 15, v{VL}'); yield
        e(f's_mul_i32 s53, s{S_DB}, 80'); e(f'v_add_u32 v{VD}, s53, v{VD}'); yield
        e(f's_mul_i32 s54, s{S_DB}, 160'); e('s_mov_b32 s55, 0x1999999a'); e('s_movk_i32 s56, 1280'); yield
        for i in range(3):
            q, row, c, tk = XV, XV+1, XV+2, XV+3
            e(f'v_add_u32 v{q}, {64*i}, v{VL}'); e(f'v_mul_hi_u32 v{row}, v{q}, s55'); yield
            e(f'v_mul_u32_u24 v{c}, 10, v{row}'); e(f'v_sub_u32 v{c}, v{q}, v{c}'); yield
            e(f'v_bfe_u32 v{tk}, v{row}, 2, 1'); e(f'v_lshlrev_b32 v{tk}, 4, v{tk}'); yield
            e(f'v_bfe_u32 v{q}, v{row}, 3, 1'); e(f'v_lshl_add_u32 v{tk}, v{q}, 2, v{tk}'); yield
            e(f'v_and_b32 v{q}, 3, v{row}'); e(f'v_add3_u32 v{tk}, v{tk}, v{q}, s52'); yield
            e(f'v_mul_lo_u32 v{tk}, v{tk}, s56'); e(f'v_lshl_add_u32 v{tk}, v{c}, 4, v{tk}'); yield
            e(f'v_add_u32 v{XV+4+i}, s54, v{tk}'); yield
        e(f's_mul_i32 s57, s{S_W}, {EXW}'); e(f's_add_u32 s57, s57, {L_EX}'); yield
        yield 'ex_dma'
        e(f'v_lshrrev_b32 v{XV}, 4, v{VL}'); e(f'v_mul_u32_u24 v{XV}, 640, v{XV}'); yield
        e(f'v_and_b32 v{XV+1}, 15, v{VL}'); e(f'v_lshl_add_u32 v{XV}, v{XV+1}, 1, v{XV}'); yield
        e(f'v_add_u32 v{DV+5}, s57, v{XV}'); e(f'v_lshlrev_b32 v{XV+1}, 1, v{XV+1}'); e(f'v_add_u32 v{DV+6}, s57, v{XV+1}'); yield 'nextbar'
        yield 'nextbar'
        g.wv('ex'); yield
        for r in range(4):
            for t in range(5):
                g.lds(f'ds_read_u16_d16_hi v{XV+5*r+t}, v{DV+5} offset:{r*160 + t*32}', 'exr'); yield
        for t in range(5):
            g.lds(f'ds_read_u16_d16_hi v{DV+t}, v{DV+6} offset:{2560 + t*32}', 'exr'); yield
    def ex_dma_atom():
        e('s_mov_b32 m0, s57'); e('s_nop 0')
        g.vm(f'buffer_load_dwordx4 v{XV+4}, s[{R_X}:{R_X+3}], 0 offen lds', 'ex')
        g.vm(f'buffer_load_dwordx4 v{XV+5}, s[{R_X}:{R_X+3}], 0 offen offset:1024 lds', 'ex') if False else None
        e('s_add_u32 m0, s57, 1024'); e('s_nop 0')
        g.vm(f'buffer_load_dwordx4 v{XV+5}, s[{R_X}:{R_X+3}], 0 offen lds', 'ex')
        e('s_add_u32 m0, s57, 2048'); e('s_mov_b32 exec_hi, 0')
        g.vm(f'buffer_load_dwordx4 v{XV+6}, s[{R_X}:{R_X+3}], 0 offen lds', 'ex')
        e('s_add_u32 m0, s57, 2560'); e(f's_mul_i32 s54, s{S_DB}, 160'); e('s_mov_b32 exec_lo, 0x3ff')
        g.vm(f'buffer_load_dwordx4 v{VAO2}, s[{R_T}:{R_T+3}], s54 offen lds', 'ex')
        e('s_mov_b64 exec, -1')
    def job_epi_pre():
        e(f'v_lshlrev_b32 v{T+20}, 2, v{VTOK}'); e(f'v_add_u32 v{T+20}, {WS_G}, v{T+20}')
        g.vm(f'buffer_load_dwordx4 {vr(GV,4)}, v{T+20}, s[{R_WS}:{R_WS+3}], 0 offen sc1', 'epg'); yield
        srd(g, R_T, P_OUT, 2048*2560); yield
        e('s_movk_i32 s53, 2560'); e(f'v_mul_lo_u32 v{VO}, v{VTOK}, s53'); yield
        e(f'v_lshl_add_u32 v{VO}, v{VD}, 2, v{VO}'); e(f'v_add_u32 v{VO+1}, {2*2560}, v{VO}'); yield 'nextbar'
        yield 'nextbar'
        g.wv('epg'); g.wl('exr'); yield
        for r in range(4):
            e(f'v_sub_f32 v{OG+r}, 1.0, v{GV+r}'); e(f'v_add_f32 v{G2_+r}, v{GV+r}, v{GV+r}'); yield
            e(f'v_cvt_pk_bf16_f32 v{OG+r}, v{OG+r}, v{OG+r}'); e(f'v_lshlrev_b32 v{OG+r}, 16, v{OG+r}'); yield
        for t in range(5): e(f'v_and_b32 v{DV+t}, 0xffff0000, v{DV+t}')
        yield
        for t in range(5):
            for r in range(4):
                xv = XV + 5*r + t; b = aB_ + 4*t + r
                e(f'v_and_b32 v{xv}, 0xffff0000, v{xv}'); e(f'v_mul_f32 v{xv}, v{xv}, v{DV+t}'); yield
                e(f'v_cvt_pk_bf16_f32 v{b}, v{b}, v{xv}'); e(f'v_and_b32 v{xv}, 0xffff0000, v{b}'); yield
                e(f'v_lshlrev_b32 v{b}, 16, v{b}'); e(f'v_mul_f32 v{b}, v{OG+r}, v{b}'); yield
                e(f'v_cvt_pk_bf16_f32 v{b}, v{b}, v{b}'); e(f'v_lshlrev_b32 v{b}, 16, v{b}'); yield
                e(f'v_fma_f32 v{xv}, v{GV+r}, v{xv}, v{b}'); yield

    def breads(S, k):
        fs = G2B + 20*((4*S + k) % 2)
        sl = S % 4
        base, o0 = {0: (VRD[0], 0), 1: (VRD[1], 79872-49152), 2: (VRD[1], 0), 3: (VRD[2], 0)}[sl]
        return [(f'b{S}_{k}_{t}', f'ds_read_b128 {ar(fs+4*t,4)}, v{base} offset:{o0 + k*5120 + t*1024}') for t in range(5)]
    tail_part1()
    stamp(5)
    tail_part2()
    stamp(6)
    spin_flags(fl_ld(0, T+52), T+52, 1, 'fa')
    g.wl0()
    e('s_barrier')
    stamp(7)
    for S in range(2):
        for p in g2_issue_a(S): p()
    tail_addr()
    for _ in tail_part3(): pass
    stamp(8)
    nv = g.wv_n(['w0', 'a0'])
    e(f's_waitcnt vmcnt({nv})' if nv is not None else 's_nop 0')
    e('s_barrier')
    stamp(9)
    def last_reads(t):
        S = NS - 1; sl = S % 4
        base, o0 = {0: (VRD[0], 0), 1: (VRD[1], 79872-49152), 2: (VRD[1], 0), 3: (VRD[2], 0)}[sl]
        fs = G2B + 20*(t % 2)
        return [(f'l{t}_{k}', f'ds_read_b128 {ar(fs+4*k,4)}, v{base} offset:{o0 + k*5120 + t*1024}') for k in range(4)]
    F.add(job_tail()); F.add(job_gate()); F.add(job_epi_loads())
    for tg, tx in breads(0, 0): g.lds(tx, tg)
    pend = g2_issue_a(2) + g2_issue_w(3) + g2_issue_a(3)
    FL2 = Fill(g)
    epi_added = False; seen = {}; waiting = []; flagged = {}; a_next = 4
    for S in range(NS - 1):
        for k in range(4):
            ks = 4*S + k
            acc = aB_ if ks < 48 else aA_
            first = ks in (0, 48)
            last_k = (k == 3)
            nxt = [] if last_k else breads(S, k+1)
            fs = G2B + 20*(ks % 2)
            for t in range(5):
                if t % 2 == 0:
                    g.wl([f'b{S}_{k}_{t}'] + ([f'b{S}_{k}_{t+1}'] if t < 4 else []))
                d = vr(acc+4*t, 4); cc = '0' if first else d
                e(f'v_mfma_f32_16x16x32_bf16 {d}, {ar(G2A + 16*(S % 4) + 4*k, 4)}, {ar(fs+4*t,4)}, {cc}')
                n0 = g.n
                if last_k and t == 1 and S + 1 < NS:
                    tags = [f'w{S+1}', f'a{S+1}']
                    if S == 1: tags.append('hB')
                    post = []
                    for mark_, tag_, freg in (('tail_done_mark', 'hC', S_FO+2), ('gate_done_mark', 'gst', S_FG)):
                        if F.blocked == mark_:
                            seen[mark_] = seen.get(mark_, 0) + 1
                            if seen[mark_] == 1: F.release(mark_); waiting.append([mark_, tag_, freg, S])
                    for w_ in list(waiting):
                        if S - w_[3] + 1 >= o.fc_delay:
                            tags.append(w_[1]); post.append(w_); waiting.remove(w_)
                    chk = {o.chk_b: 1, o.chk_c: 2, o.chk_g: 3}.get(S)
                    if chk and o.stg2 and S < 10:
                        e('s_memtime s[62:63]'); g.wl0(); e(f'v_writelane_b32 v{VDIAG}, s62, {62 if chk == 1 else 63}')
                    if chk: spin_flags(fl_ld(chk, DV+7), DV+7, 1, 'fx')
                    nv = g.wv_n(tags)
                    g.lq = []
                    if S < 20: stg_pre()
                    if o.stg2 and S < 10:
                        g2s = S
                        e('s_memtime s[62:63]'); e('s_waitcnt lgkmcnt(0)'); e(f'v_writelane_b32 v{VDIAG}, s62, {32 + 3*S}')
                    e(f's_waitcnt vmcnt({nv}) lgkmcnt(0)' if nv is not None else 's_waitcnt lgkmcnt(0)')
                    if o.stg2 and S < 10:
                        e('s_memtime s[62:63]'); e('s_waitcnt lgkmcnt(0)'); e(f'v_writelane_b32 v{VDIAG}, s62, {33 + 3*S}')
                    e('s_barrier')
                    if o.stg2 and S < 10:
                        e('s_memtime s[62:63]'); e('s_waitcnt lgkmcnt(0)'); e(f'v_writelane_b32 v{VDIAG}, s62, {34 + 3*S}')
                    if S < 20: stg_post()
                    F.barrier()
                    if F.blocked == 'ex_dma': ex_dma_atom(); F.release('ex_dma')
                    if S == 1: flag_atom(S_FO+1)
                    for w_ in post:
                        flag_atom(w_[2]); flagged[w_[0]] = S
                    nxt = breads(S+1, 0) if S + 2 < NS else last_reads(0)
                    assert not pend
                    if S + 4 < NS: pend = g2_issue_w(S + 4)
                    for Sa in range(a_next, min(S + 5, NS)):
                        if Sa >= 12 and S < o.chk_c: break
                        pend += g2_issue_a(Sa); a_next = Sa + 1
                    nchk = {o.chk_b: 1, o.chk_c: 2, o.chk_g: 3}.get(S + 2)
                    if nchk: pend.insert(0, lambda nchk=nchk: g.vm(fl_ld(nchk, DV+7), 'fx'))
                    if S == o.chk_g: F.add(job_epi_pre()); epi_added = True
                if last_k:
                    if t >= 2 and nxt:
                        for _ in range(2):
                            if nxt:
                                tg, tx = nxt.pop(0); g.lds(tx, tg)
                else:
                    tg, tx = nxt[t]; g.lds(tx, tg)
                if pend and not last_k and (t % 2 == 0 or len(pend) > 9):
                    pend.pop(0)()
                wcost = 1 if t in (1, 3, 4) else 0
                if not (last_k and t <= 1):
                    F.run(o.g2_budget - wcost - (g.n - n0))
            if k == 2:
                while pend: pend.pop(0)()
    o.flagged = flagged
    assert 'tail_done_mark' in flagged and flagged['tail_done_mark'] < o.chk_c, flagged
    assert 'gate_done_mark' in flagged and flagged['gate_done_mark'] < o.chk_g, flagged
    assert epi_added
    F.drain()
    S = NS - 1
    def out_tile(t):
        for r in range(4):
            e(f'v_fma_f32 v{XV+5*r+t}, v{G2_+r}, v{aA_+4*t+r}, v{XV+5*r+t}')
        for r in range(4):
            g.vm(f'buffer_store_dword v{XV+5*r+t}, v{VO + (r >> 1)}, s[{R_T}:{R_T+3}], 0 offen offset:{(r % 2)*2560 + t*64} {o.ost}', 'o')
    for t in range(5):
        nxt = last_reads(t+1) if t < 4 else []
        fs = G2B + 20*(t % 2)
        for k in range(4):
            if k % 2 == 0: g.wl([f'l{t}_{k}', f'l{t}_{k+1}'])
            d = vr(aA_+4*t, 4)
            e(f'v_mfma_f32_16x16x32_bf16 {d}, {ar(G2A + 16*(S % 4) + 4*k, 4)}, {ar(fs+4*k,4)}, {d}')
            if nxt:
                tg, tx = nxt.pop(0); g.lds(tx, tg)
            if t >= 1 and k == 2:
                if t == 4: e('s_nop 3')
                out_tile(t-1)
    e('s_nop 7')
    stamp(10)
    out_tile(4)
    if o.hdiag:
        g.wv0()
        stamp(11)
        e(f's_lshl_b32 s42, s2, 2'); e(f's_add_u32 s42, s42, s{S_W}'); e('s_lshl_b32 s42, s42, 8'); e(f's_add_u32 s42, s42, {WS_DIAG}')
        e(f'v_lshlrev_b32 v{T}, 2, v{VL}')
        e(f'buffer_store_dword v{VDIAG}, v{T}, s[{R_WS}:{R_WS+3}], s42 offen')
        lab = g.newlab('HD')
        e(f's_or_b32 s42, s2, s{S_W}'); e('s_cmp_lg_u32 s42, 0'); e(f's_cbranch_scc1 {lab}')
        e('s_mov_b64 exec, 0xff')
        e(f'buffer_store_dword v{VDIAG}, v{T}, s[{R_DBG}:{R_DBG+3}], 0 offen offset:4')
        e('s_mov_b64 exec, -1')
        g.label(lab)
    g.label('K_END')
    e('s_endpgm')
    return g

HEADER = open('cdna_kernels/%s.s.ref' % NAME).read().split('; Override launch geometry')[0]

def build(o):
    k = gen(o)
    s = HEADER
    s += f'; @launch grid=(256,1,1) block=(256,1,1) lds={LDS}\n'
    s += '.amdgcn_target "amdgcn-amd-amdhsa--gfx950"\n.text\n'
    s += f'.globl {KN}\n.p2align 8\n.type {KN},@function\n{KN}:\n' + k.text()
    s += 'CODE_END:\n.fill 64, 4, 0xBF800000\n'
    s += f'''.section .rodata,"a"
.p2align 6
.amdhsa_kernel {KN}
  .amdhsa_next_free_vgpr 512
  .amdhsa_next_free_sgpr 102
  .amdhsa_accum_offset 256
  .amdhsa_group_segment_fixed_size 0
  .amdhsa_kernarg_size 136
  .amdhsa_user_sgpr_count 2
  .amdhsa_user_sgpr_kernarg_segment_ptr 1
  .amdhsa_system_sgpr_workgroup_id_x 1
.end_amdhsa_kernel
'''
    return s

if __name__ == '__main__':
    o = Opt()
    for a in sys.argv[2:]:
        k, v = a.split('=', 1)
        setattr(o, k, eval(v))
    txt = build(o)
    if o.align:
        import align
        txt, p_, n_, m_ = align.align(txt, None, nop_run=o.align)
        print('align: promoted', p_, 'nops', n_, 'misaligned', m_)
    open(sys.argv[1], 'w').write(txt)
    print('flagged', getattr(o, 'flagged', None))
```
